```python
import torch

def _softmax(x, axis=-1):
    return torch.softmax(x, dim=axis)
def _gelu(x):
    return torch.nn.functional.gelu(x, approximate="tanh")
def _silu(x):
    return torch.nn.functional.silu(x)
def _sigmoid(x):
    return torch.sigmoid(x)
def _layernorm(x, axis=-1, eps=1e-5):
    m = x.mean(dim=axis, keepdim=True)
    v = x.var(dim=axis, keepdim=True, unbiased=False)
    return (x - m) / torch.sqrt(v + eps)
def _scatter_add(tgt, idx, src, axis=0):
    return tgt.clone().index_add_(axis, idx, src)
def _segment_sum(src, seg, n):
    out = torch.zeros((n,) + src.shape[1:], dtype=src.dtype)
    return out.index_add_(0, seg, src)
def _pad(x, pw):
    flat = tuple(v for pair in reversed(pw) for v in pair)
    return torch.nn.functional.pad(x, flat)

kernel_name = 'recurrent_scan__mha_block__moe_arch_mod__prompt'

def setup_inputs():

    _w = (lambda a: (lambda t: t.to(torch.bfloat16) if t.is_floating_point() else t)(torch.as_tensor(a)))
    def _A_setup():
        B, S, D, H = 1, 2048, 640, 32
        return {
            "x": _w((lambda *s: torch.randn(*s, dtype=torch.bfloat16) * 0.05)(B, S, D)),
            "wqkv": _w((lambda *s: torch.randn(*s, dtype=torch.bfloat16) * 0.05)(D, 3 * D)),
            "wo": _w((lambda *s: torch.randn(*s, dtype=torch.bfloat16) * 0.05)(D, D)),
        }
    _A_in = _A_setup()

    def _B_setup():
        B, S, D, F, C = 1, 2048, 640, 1536, 8
        return {
            "x": _w((lambda *s: torch.randn(*s, dtype=torch.bfloat16) * 0.05)(B, S, D)),
            "w_r": _w((lambda *s: torch.randn(*s, dtype=torch.bfloat16) * 0.05)(D)),
            "w_gate": _w((lambda *s: torch.randn(*s, dtype=torch.bfloat16) * 0.05)(D, F)),
            "w_up": _w((lambda *s: torch.randn(*s, dtype=torch.bfloat16) * 0.05)(D, F)),
            "w_down": _w((lambda *s: torch.randn(*s, dtype=torch.bfloat16) * 0.05)(F, D)),
        }
    _B_in = _B_setup()

    return {
        "A_x": _A_in["x"],
        "A_wqkv": _A_in["wqkv"],
        "A_wo": _A_in["wo"],
        "B_x": _B_in["x"],
        "B_w_r": _B_in["w_r"],
        "B_w_gate": _B_in["w_gate"],
        "B_w_up": _B_in["w_up"],
        "B_w_down": _B_in["w_down"],
    }

def reference(A_x, A_wqkv, A_wo, B_x, B_w_r, B_w_gate, B_w_up, B_w_down):
    def _A_ref(x, wqkv, wo):
        B, S, D = x.shape
        H = 32
        Dh = D // H
        qkv = (lambda x, *d: x.permute(*d))((x @ wqkv).reshape(B, S, 3, H, Dh), 2, 0, 3, 1, 4)
        q, k, v = qkv[0], qkv[1], qkv[2]
        scores = torch.einsum("bhqd,bhkd->bhqk", q, k) * (Dh ** -0.5)
        p = _softmax(scores, axis=-1)
        o = torch.einsum("bhqk,bhkd->bhqd", p, v)
        return (lambda x, *d: x.permute(*d))(o, 0, 2, 1, 3).reshape(B, S, D) @ wo

    def _B_ref(x, w_r, w_gate, w_up, w_down):
        B, S, D = x.shape
        C = 8
        r = x @ w_r
        idx = torch.argsort(-r, axis=-1)[:, :C]
        idx_e = (lambda x, n, axis: torch.repeat_interleave(x, n, dim=axis))(idx.reshape(B, C, 1), D, axis=2)
        x_sel = (lambda x, i, axis: torch.take_along_dim(x, i, dim=axis))(x, idx_e, axis=1)
        g = _silu(x_sel @ w_gate)
        u = x_sel @ w_up
        y = (g * u) @ w_down
        r_sel = _sigmoid((lambda x, i, axis: torch.take_along_dim(x, i, dim=axis))(r, idx, axis=1))
        y = y * r_sel.reshape(B, C, 1)
        b_off = (torch.arange(B) * S).reshape(B, 1)
        flat_idx = (idx + b_off).reshape(B * C)
        zero = (x * 0.0).reshape(B * S, D)
        upd = _scatter_add(zero, flat_idx, y.reshape(B * C, D), axis=0)
        return x + upd.reshape(B, S, D)

    x = A_x
    xn = _layernorm(x, axis=-1)
    s = _A_ref(xn, A_wqkv, A_wo)
    g = _silu(_B_ref(xn, B_w_r, B_w_gate, B_w_up, B_w_down))
    return x + s * g
```

```python
NAME = "recurrent_scan__mha_block__moe_arch_mod__prompt"

class Asm:
    def __init__(self):
        self.lines = []
    def __call__(self, s):
        for l in s.split("\n"):
            l = l.strip()
            if not l:
                continue
            if l.endswith(":") or l.startswith("."):
                self.lines.append(l)
            else:
                self.lines.append("    " + l)
    def text(self):
        return "\n".join(self.lines) + "\n"

def vr(a, n=1):
    return "v%d" % a if n == 1 else "v[%d:%d]" % (a, a + n - 1)

def sr(a, n=1):
    return "s%d" % a if n == 1 else "s[%d:%d]" % (a, a + n - 1)

def kernel_begin(a, name):
    a(".text")
    a(".globl %s" % name)
    a(".p2align 8")
    a(".type %s,@function" % name)
    a("%s:" % name)

def kernel_desc(name, vgpr, sgpr, accum=None):
    if accum is None:
        accum = (vgpr + 3) // 4 * 4
    return """.section .rodata,"a"
.p2align 6
.amdhsa_kernel %s
  .amdhsa_next_free_vgpr %d
  .amdhsa_next_free_sgpr %d
  .amdhsa_accum_offset %d
  .amdhsa_group_segment_fixed_size 0
  .amdhsa_kernarg_size 88
  .amdhsa_user_sgpr_count 2
  .amdhsa_user_sgpr_kernarg_segment_ptr 1
  .amdhsa_system_sgpr_workgroup_id_x 1
.end_amdhsa_kernel
""" % (name, vgpr, sgpr, accum)

KA_X, KA_WQKV, KA_WO, KA_BX, KA_WR, KA_WG, KA_WU, KA_WD, KA_OUT, KA_DBG, KA_WS = [8 * i for i in range(11)]

WS_KV = 0x000000
WS_Q = 0x500000
WS_O = 0x780000
WS_OB = 0x980000
WS_WOT = 0xA00000
WS_STAT = 0xB00000
WS_CS = 0xB04000
WS_KEY = 0xB08000
WS_SEL = 0xB0A000
WS_FLG = 0xC00000
WS_UPD = 0xD00000
WS_XN = 0xD80000
WS_DIAG = 0x1000000
WS_END = 0x1100000

def srd(a, d, base_lo, base_hi, nbytes, off=0):
    if off:
        a("s_add_u32 s%d, s%d, 0x%x" % (d, base_lo, off))
        a("s_addc_u32 s%d, s%d, 0" % (d + 1, base_hi))
    else:
        a("s_mov_b32 s%d, s%d" % (d, base_lo))
        a("s_mov_b32 s%d, s%d" % (d + 1, base_hi))
    a("s_mov_b32 s%d, 0x%x" % (d + 2, nbytes))
    a("s_mov_b32 s%d, 0x20000" % (d + 3))

import struct
def f2u(x):
    return struct.unpack("<I", struct.pack("<f", x))[0]

def bf16_round(a, d, s):
    a("v_cvt_pk_bf16_f32 v%d, v%d, v%d" % (d, s, s))
    a("v_and_b32 v%d, 0xffff0000, v%d" % (d, d))

def code_prefetch(a, sbase, vtmp, vjunk, start, end, vlane="v0", nmax=4):
    lab = "Lpc_%d" % len(a.lines)
    a("s_getpc_b64 s[%d:%d]" % (sbase, sbase + 1))
    a("%s:" % lab)
    a("s_add_u32 s%d, s%d, %s-%s" % (sbase, sbase, start, lab))
    a("s_addc_u32 s%d, s%d, %s" % (sbase + 1, sbase + 1, "0" if False else "((%s-%s)>>32)" % (start, lab)))
    a("s_mov_b32 s%d, %s-%s" % (sbase + 2, end, start))
    a("s_mov_b32 s%d, 0x20000" % (sbase + 3))
    a("v_lshlrev_b32 v%d, 7, %s" % (vtmp, vlane))
    for i in range(nmax):
        a("buffer_load_dword v%d, v%d, s[%d:%d], 0 offen" % (vjunk, vtmp, sbase, sbase + 3))
        if i + 1 < nmax:
            a("v_add_u32 v%d, 8192, v%d" % (vtmp, vtmp))
```

```python
from common import *
import os
DIAG = os.environ.get("DIAG")
SLOT = 16384 + 4 * 5152
NS = 4
L_ST = NS * SLOT
K1_LDS = L_ST + 1664
POLL_ST = int(os.environ.get('K1_POLL', '9'))
QSCALE = f2u(1.4426950408889634 * 20 ** -0.5)
SPIN_MAX = 1 << 16

S_X, S_W, S_WS, S_DBG = 8, 12, 16, 44
S_WV = 20

def gen_k1(a, name="qkv_kernel"):
    from k1s import gen_spare
    S_RB, S_CB, S_J = 21, 22, 23
    S_T = 24
    S_ST, S_DL, S_MASK, S_STATE = 36, 37, 38, 48
    def stamp(i):
        if DIAG:
            a("s_memtime s[%d:%d]" % (60 + 2 * i, 61 + 2 * i))
    def diag_out():
        if DIAG:
            a("s_memrealtime s[56:57]")
            a("s_waitcnt lgkmcnt(0)")
            a("s_sub_u32 s56, s56, s52")
            a("s_mov_b64 exec, -1")
            a("v_mov_b32 v3, 0")
            for i in range(6):
                a("s_sub_u32 s%d, s%d, s50" % (60 + 2 * i, 60 + 2 * i))
                a("v_mov_b32 v%d, s%d" % (4 + i, 60 + 2 * i))
            a("v_mov_b32 v10, s56")
            a("v_mov_b32 v11, s52")
            a("s_lshl_b32 s58, s2, 3")
            a("s_add_u32 s58, s58, s%d" % S_WV)
            a("s_lshl_b32 s58, s58, 5")
            a("s_add_u32 s58, s58, 0x%x" % (WS_DIAG + 0x60000))
            a("s_mov_b64 exec, 1")
            a("buffer_store_dwordx4 v[4:7], v3, %s, s58 offen" % sr(S_WS, 4))
            a("buffer_store_dwordx4 v[8:11], v3, %s, s58 offen offset:16" % sr(S_WS, 4))
    kernel_begin(a, name)
    a("s_cmp_ge_u32 s2, 256")
    a("s_cbranch_scc1 L1_end")
    a("s_load_dwordx4 s[4:7], s[0:1], 0")
    a("s_load_dwordx4 s[40:43], s[0:1], %d" % KA_DBG)
    if DIAG:
        a("s_memtime s[50:51]")
        a("s_memrealtime s[52:53]")
        for i in range(6):
            a("s_mov_b32 s%d, 0" % (60 + 2 * i))
    a("v_lshrrev_b32 v1, 6, v0")
    a("v_and_b32 v0, 63, v0")
    a("s_cmp_lt_u32 s2, 64")
    a("v_readfirstlane_b32 s%d, v1" % S_WV)
    a("s_cbranch_scc1 L1_spare")
    a("s_sub_u32 s%d, s2, 64" % S_T)
    a("s_lshr_b32 s%d, s%d, 3" % (S_J, S_T))
    a("s_mul_i32 s%d, s%d, 43" % (S_T + 2, S_J))
    a("s_lshr_b32 s%d, s%d, 8" % (S_T + 2, S_T + 2))
    a("s_mul_i32 s%d, s%d, 6" % (S_T + 3, S_T + 2))
    a("s_sub_u32 s%d, s%d, s%d" % (S_T + 3, S_J, S_T + 3))
    a("s_bfe_u32 s%d, s%d, 0x20001" % (S_RB, S_T))
    a("s_lshl_b32 s%d, s%d, 2" % (S_RB, S_RB))
    a("s_add_u32 s%d, s%d, s%d" % (S_RB, S_RB, S_T + 2))
    a("s_and_b32 s%d, s%d, 1" % (S_CB, S_T))
    a("s_mul_i32 s%d, s%d, 6" % (S_CB, S_CB))
    a("s_add_u32 s%d, s%d, s%d" % (S_CB, S_CB, S_T + 3))
    a("s_mov_b32 s39, %d" % SLOT)
    a("s_cmp_ge_u32 s%d, 4" % S_WV)
    a("s_cbranch_scc1 L1_compute")
    VX = [2, 3, 4, 5]; VW = [6, 7, 8, 9, 10]; T0, T1, T2 = 11, 12, 13
    S_LW, S_MX, S_MW, S_SX, S_SW = S_WV, 25, 26, 27, 28
    a("s_lshl_b32 s29, s%d, 7" % S_RB)
    a("s_lshl_b32 s30, s%d, 5" % S_LW)
    a("s_add_u32 s29, s29, s30")
    a("v_lshrrev_b32 v%d, 3, v0" % T0)
    a("v_add_u32 v%d, s29, v%d" % (T0, T0))
    a("v_mul_u32_u24 v%d, 1280, v%d" % (T0, T0))
    a("v_lshrrev_b32 v%d, 4, v0" % T1)
    a("v_and_b32 v%d, 2, v%d" % (T2, T1))
    a("v_lshlrev_b32 v%d, 1, v%d" % (T2, T2))
    a("v_xor_b32 v%d, v%d, v%d" % (T1, T1, T2))
    a("v_and_b32 v%d, 7, v0" % T2)
    a("v_xor_b32 v%d, v%d, v%d" % (T1, T1, T2))
    a("v_lshl_add_u32 v%d, v%d, 4, v%d" % (VX[0], T1, T0))
    a("v_xor_b32 v%d, 4, v%d" % (T1, T1))
    a("v_lshl_add_u32 v%d, v%d, 4, v%d" % (VX[1], T1, T0))
    a("v_add_u32 v%d, %d, v%d" % (VX[1], 8 * 1280 - 1024, VX[1]))
    a("v_add_u32 v%d, %d, v%d" % (VX[2], 16 * 1280 - 2048, VX[0]))
    a("v_add_u32 v%d, %d, v%d" % (VX[3], 16 * 1280 - 2048, VX[1]))
    a("s_mul_i32 s29, s%d, %d" % (S_LW, 16 * 3840))
    a("s_mul_i32 s30, s%d, 320" % S_CB)
    a("s_add_u32 s29, s29, s30")
    a("v_lshlrev_b32 v%d, 4, v0" % T0)
    a("v_add_u32 v%d, s29, v%d" % (T0, T0))
    a("v_mul_u32_u24 v%d, 3277, v0" % T1)
    a("s_movk_i32 s30, %d" % (3840 - 320))
    for i in range(5):
        a("v_add_u32 v%d, %d, v%d" % (T2, 64 * i * 3277, T1))
        a("v_lshrrev_b32 v%d, 16, v%d" % (T2, T2))
        a("v_mad_u32_u24 v%d, v%d, s30, v%d" % (VW[i], T2, T0))
    a("v_add_u32 v%d, 4096, v%d" % (VW[4], VW[4]))
    a("s_lshl_b32 s%d, s%d, 12" % (S_MX, S_LW))
    a("s_mul_i32 s%d, s%d, 5152" % (S_MW, S_LW))
    a("s_add_u32 s%d, s%d, 16384" % (S_MW, S_MW))
    a("s_mov_b32 s%d, 0" % S_SX)
    a("s_mov_b32 s%d, 0" % S_SW)
    a("s_mov_b32 s%d, 0" % S_ST)
    VFL, VZ, VSA, VCA, ST0, ST1 = 14, 15, 16, 17, 20, 24
    a("v_mov_b32 v%d, 0" % VZ)
    a("s_cmp_eq_u32 s%d, 0" % S_WV)
    a("s_cselect_b32 s%d, %d, -1" % (S_MASK, POLL_ST))
    a("s_waitcnt lgkmcnt(0)")
    srd(a, S_X, 4, 5, 2621440)
    srd(a, S_W, 6, 7, 2457600)
    srd(a, S_WS, 42, 43, WS_END)
    srd(a, S_DBG, 40, 41, 256)
    def poll_issue(mode=""):
        a("s_mov_b64 exec, 1")
        a("buffer_load_dword v%d, v%d, %s, 0 offen %s" % (VFL, VZ, sr(S_DBG, 4), mode))
        a("s_mov_b64 exec, -1")
    stamp(0)
    a("L1_ld_loop:")
    a("s_cmp_eq_u32 s%d, s%d" % (S_ST, S_MASK))
    a("s_cbranch_scc1 L1_ld_poll")
    a("L1_ld_issue:")
    a("s_mov_b32 m0, s%d" % S_MX)
    a("s_add_u32 s29, s%d, 4096" % S_MW)
    for i in range(4):
        a("buffer_load_dwordx4 v%d, %s, s%d offen offset:%d lds" % (VX[i], sr(S_X, 4), S_SX, 1024 * i))
    a("s_mov_b32 m0, s%d" % S_MW)
    a("s_add_u32 s%d, s%d, 128" % (S_SX, S_SX))
    for i in range(4):
        a("buffer_load_dwordx4 v%d, %s, s%d offen offset:%d lds" % (VW[i], sr(S_W, 4), S_SW, 1024 * i))
    a("s_mov_b32 m0, s29")
    a("s_add_u32 s%d, s%d, 1" % (S_ST, S_ST))
    a("buffer_load_dwordx4 v%d, %s, s%d offen lds" % (VW[4], sr(S_W, 4), S_SW))
    a("s_add_u32 s%d, s%d, %d" % (S_SW, S_SW, 64 * 3840))
    a("s_and_b32 s29, s%d, 3" % S_ST)
    a("s_cselect_b32 s29, s39, %d" % (-3 * SLOT & 0xffffffff))
    a("s_add_u32 s%d, s%d, s29" % (S_MX, S_MX))
    a("s_add_u32 s%d, s%d, s29" % (S_MW, S_MW))
    a("s_cmp_lt_u32 s%d, 3" % S_ST)
    a("s_cbranch_scc1 L1_ld_loop")
    a("s_waitcnt vmcnt(18)")
    a("s_barrier")
    a("s_cmp_lt_u32 s%d, 10" % S_ST)
    a("s_cbranch_scc1 L1_ld_loop")
    a("s_cmp_eq_u32 s%d, 0" % S_WV)
    a("s_cbranch_scc1 L1_ld_w0")
    a("s_waitcnt vmcnt(9)")
    a("s_barrier")
    a("s_waitcnt vmcnt(0)")
    a("s_barrier")
    stamp(1)
    diag_out()
    a("s_endpgm")
    a("L1_ld_poll:")
    poll_issue()
    a("s_branch L1_ld_issue")
    def stat_loads():
        a("buffer_load_dwordx4 %s, v%d, %s, 0 offen sc1" % (vr(ST0, 4), VSA, sr(S_WS, 4)))
        a("buffer_load_dwordx4 %s, v%d, %s, 0 offen sc1" % (vr(ST1, 4), VCA, sr(S_WS, 4)))
    a("L1_ld_w0:")
    a("v_and_b32 v%d, 31, v0" % VSA)
    a("v_lshlrev_b32 v%d, 4, v%d" % (VSA, VSA))
    a("v_lshrrev_b32 v%d, 5, v0" % VCA)
    a("v_lshl_add_u32 v%d, v%d, 13, v%d" % (VSA, VCA, VSA))
    a("s_lshl_b32 s29, s%d, 9" % S_RB)
    a("s_add_u32 s29, s29, 0x%x" % WS_STAT)
    a("v_add_u32 v%d, s29, v%d" % (VSA, VSA))
    a("s_mul_i32 s29, s%d, 640" % S_CB)
    a("s_add_u32 s29, s29, 0x%x" % WS_CS)
    a("v_min_u32 v%d, 39, v0" % VCA)
    a("v_lshlrev_b32 v%d, 4, v%d" % (VCA, VCA))
    a("v_add_u32 v%d, %d, v%d" % (T1, L_ST + 1024, VCA))
    a("v_add_u32 v%d, s29, v%d" % (VCA, VCA))
    a("v_lshlrev_b32 v%d, 4, v0" % T0)
    a("v_add_u32 v%d, %d, v%d" % (T0, L_ST, T0))
    if POLL_ST == 9:
        a("s_waitcnt vmcnt(9)")
        a("s_barrier")
    a("v_readfirstlane_b32 s29, v%d" % VFL)
    a("s_cmp_lt_u32 s29, 64")
    a("s_cbranch_scc1 L1_ld_late")
    stat_loads()
    stamp(2)
    if POLL_ST < 9:
        a("s_waitcnt vmcnt(11)")
        a("s_barrier")
    a("s_waitcnt vmcnt(2)")
    a("s_barrier")
    a("L1_ld_fin:")
    a("s_waitcnt vmcnt(0)")
    a("ds_write_b128 v%d, %s" % (T0, vr(ST0, 4)))
    a("ds_write_b128 v%d, %s" % (T1, vr(ST1, 4)))
    a("s_waitcnt lgkmcnt(0)")
    a("s_barrier")
    stamp(1)
    diag_out()
    a("s_endpgm")
    a("L1_ld_late:")
    poll_issue("offset:128")
    if POLL_ST < 9:
        a("s_waitcnt vmcnt(10)")
        a("s_barrier")
    a("s_waitcnt vmcnt(1)")
    a("s_barrier")
    a("s_mov_b32 s30, %d" % SPIN_MAX)
    a("L1_ld_spin:")
    a("s_waitcnt vmcnt(0)")
    a("v_readfirstlane_b32 s29, v%d" % VFL)
    a("s_cmp_ge_u32 s29, 64")
    a("s_cbranch_scc1 L1_ld_got")
    a("s_sleep 32")
    poll_issue("sc1")
    a("s_sub_u32 s30, s30, 1")
    a("s_cbranch_scc0 L1_ld_spin")
    a("L1_ld_got:")
    stat_loads()
    stamp(3)
    a("s_branch L1_ld_fin")
    a("L1_compute:")
    ACC = 4
    XF = [84, 120]
    WF = [100, 136]
    MR = 156
    C0 = 188
    AX = [208, 209]; AW = [210, 211]
    T0, T1, T2, T3 = 212, 213, 214, 215
    VSA, VCA, JUNK = 218, 219, 220
    NV = 224
    S_WM, S_WN = 24, 25
    acc = lambda mt, t: ACC + (mt * 5 + t) * 4
    a("s_bfe_u32 s%d, s%d, 0x10001" % (S_WM, S_WV))
    a("s_and_b32 s%d, s%d, 1" % (S_WN, S_WV))
    P0, P1, P2, P3 = 216, 217, 221, 222
    a("s_load_dwordx2 s[30:31], s[0:1], %d" % KA_OUT)
    a("s_lshl_b32 s26, s%d, 2" % S_J)
    a("s_add_u32 s26, s26, s%d" % S_WV)
    a("s_sub_u32 s26, s26, 4")
    a("s_lshr_b32 s27, s%d, 2" % S_RB)
    a("s_mul_i32 s27, s27, 655360")
    a("s_mul_i32 s28, s26, %d" % (8 * 1280))
    a("s_add_u32 s27, s27, s28")
    a("s_add_u32 s27, s27, 384")
    a("v_lshrrev_b32 v%d, 3, v0" % P0)
    a("v_mul_u32_u24 v%d, 1280, v%d" % (P0, P0))
    a("v_and_b32 v%d, 7, v0" % P2)
    a("v_min_u32 v%d, 6, v%d" % (P2, P2))
    a("v_lshl_add_u32 v%d, v%d, 7, v%d" % (P0, P2, P0))
    a("s_cmp_ge_u32 s%d, 6" % S_CB)
    a("s_cselect_b32 s28, 1920, 0")
    a("s_mul_i32 s29, s26, %d" % (4 * 3840))
    a("s_add_u32 s28, s28, s29")
    a("s_add_u32 s29, s28, %d" % ((576 - 256) * 3840))
    a("s_add_u32 s28, s28, %d" % (192 * 3840))
    a("v_lshrrev_b32 v%d, 4, v0" % P1)
    a("v_mul_u32_u24 v%d, 3840, v%d" % (P1, P1))
    a("v_and_b32 v%d, 15, v0" % P2)
    a("v_min_u32 v%d, 14, v%d" % (P2, P2))
    a("v_lshl_add_u32 v%d, v%d, 7, v%d" % (P1, P2, P1))
    a("v_lshlrev_b32 v%d, 21, v0" % P3)
    a("s_waitcnt lgkmcnt(0)")
    srd(a, S_X, 4, 5, 2621440)
    srd(a, S_W, 6, 7, 2457600)
    srd(a, S_WS, 42, 43, WS_END)
    PF = os.environ.get("K1_PF", "1")
    a("buffer_load_dword v%d, v%d, %s, 0 offen" % (JUNK, P3, sr(S_X, 4)))
    a("buffer_load_dword v%d, v%d, %s, 0 offen" % (JUNK, P3, sr(S_W, 4)))
    a("s_cmp_lg_u32 s%d, 4" % S_WV)
    a("s_cbranch_scc1 L1_notouch0")
    a("buffer_load_dword v%d, v%d, %s, 0 offen" % (JUNK, P3, sr(S_WS, 4)))
    srd(a, S_DBG, 30, 31, 2621440)
    a("buffer_load_dword v%d, v%d, %s, 0 offen" % (JUNK, P3, sr(S_DBG, 4)))
    if os.environ.get("K1_CPF", "1") == "1":
        code_prefetch(a, S_DBG, P2, JUNK, name, "L1_spare", nmax=2)
    a("L1_notouch0:")
    a("v_and_b32 v%d, 15, v0" % T0)
    a("v_lshrrev_b32 v%d, 4, v0" % T1)
    a("v_lshrrev_b32 v%d, 1, v%d" % (T2, T0))
    a("v_and_b32 v%d, 2, v%d" % (T3, T2))
    a("v_lshlrev_b32 v%d, 1, v%d" % (T3, T3))
    a("v_xor_b32 v%d, v%d, v%d" % (T2, T2, T3))
    a("v_lshlrev_b32 v%d, 1, v%d" % (T3, T1))
    a("v_xor_b32 v%d, v%d, v%d" % (T2, T2, T3))
    a("v_lshlrev_b32 v%d, 7, v%d" % (T3, T0))
    a("v_lshl_add_u32 v%d, v%d, 4, v%d" % (AX[0], T2, T3))
    a("s_lshl_b32 s32, s%d, 13" % S_WM)
    a("v_add_u32 v%d, s32, v%d" % (AX[0], AX[0]))
    a("v_xor_b32 v%d, 16, v%d" % (AX[1], AX[0]))
    a("v_mul_u32_u24 v%d, 5152, v%d" % (T2, T1))
    a("v_lshrrev_b32 v%d, 2, v%d" % (T3, T0))
    a("v_mul_u32_u24 v%d, 320, v%d" % (T3, T3))
    a("v_add_u32 v%d, v%d, v%d" % (T2, T2, T3))
    a("v_and_b32 v%d, 3, v0" % T3)
    a("v_mul_u32_u24 v%d, 40, v%d" % (T3, T3))
    a("v_add_u32 v%d, v%d, v%d" % (T2, T2, T3))
    a("s_mul_i32 s32, s%d, 160" % S_WN)
    a("s_add_u32 s32, s32, 16384")
    a("v_add_u32 v%d, s32, v%d" % (AW[0], T2))
    for i in range(80):
        a("v_mov_b32 v%d, 0" % (ACC + i))
    a("s_cmp_lg_u32 s%d, 4" % S_WV)
    a("s_cbranch_scc1 L1_notouch")
    a("s_waitcnt vmcnt(%d)" % (4 if os.environ.get("K1_CPF", "1") == "1" else 2))
    a("s_branch L1_touched")
    a("L1_notouch:")
    a("s_waitcnt vmcnt(0)")
    a("L1_touched:")
    if PF != "0":
        for off in ((0, 64) if PF == "2" else (0,)):
            a("buffer_load_dword v%d, v%d, %s, s28 offen offset:%d" % (JUNK, P1, sr(S_W, 4), off))
        a("s_cmp_ge_u32 s26, 64")
        a("s_cbranch_scc1 L1_pfw")
        for off in ((0, 64) if PF == "2" else (0,)):
            a("buffer_load_dword v%d, v%d, %s, s27 offen offset:%d" % (JUNK, P0, sr(S_X, 4), off))
        a("s_branch L1_pfd")
        a("L1_pfw:")
        for off in ((0, 64) if PF == "2" else (0,)):
            a("buffer_load_dword v%d, v%d, %s, s29 offen offset:%d" % (JUNK, P1, sr(S_W, 4), off))
        a("L1_pfd:")
    stamp(3)
    a("s_mov_b32 s%d, 0" % S_ST)
    a("s_lshl_b32 s26, s%d, 8" % S_WM)
    a("s_add_u32 s26, s26, %d" % L_ST)
    a("s_mul_i32 s27, s%d, 320" % S_WN)
    a("s_add_u32 s27, s27, %d" % (L_ST + 1024))
    def reads(b):
        L = []
        for t in range(5):
            for h in range(2):
                L.append("ds_read_b64_tr_b16 %s, v%d offset:%d" % (vr(WF[b] + 4 * t + 2 * h, 2), AW[0], 2560 * b + 1280 * h + 8 * t))
        X = ["ds_read_b128 %s, v%d offset:%d" % (vr(XF[b] + 4 * mt, 4), AX[b], 2048 * mt) for mt in range(4)]
        return [X[0]] + L + X[1:]
    def stat_reads(vt):
        if vt == 0:
            for mt in range(4):
                a("ds_read2st64_b32 %s, v%d offset0:0 offset1:2" % (vr(MR + 2 * mt, 2), VSA))
                if mt < 3:
                    a("v_add_u32 v%d, 64, v%d" % (VSA, VSA))
            for t in range(5):
                a("ds_read_b128 %s, v%d offset:%d" % (vr(C0 + 4 * t, 4), VCA, 16 * t))
        else:
            for mt in range(4):
                a("ds_read_b128 %s, v%d offset:%d" % (vr(MR + 8 * mt, 4), VSA, 64 * mt))
                a("ds_read_b128 %s, v%d offset:%d" % (vr(MR + 8 * mt + 4, 4), VSA, 512 + 64 * mt))
            for t in range(5):
                a("ds_read_b32 v%d, v%d offset:%d" % (C0 + t, VCA, 16 * t))
    a("s_cmp_ge_u32 s%d, 8" % S_CB)
    a("s_cbranch_scc1 L1_preV")
    for vt in (0, 1):
        sfx = "V" if vt else "Q"
        a("L1_pre%s:" % sfx)
        if vt == 0:
            a("v_lshl_add_u32 v%d, v%d, 2, s26" % (VSA, T0))
            a("v_mul_u32_u24 v%d, 80, v%d" % (VCA, T1))
            a("v_add_u32 v%d, s27, v%d" % (VCA, VCA))
        else:
            a("v_lshl_add_u32 v%d, v%d, 4, s26" % (VSA, T1))
            a("v_lshrrev_b32 v%d, 2, v%d" % (VCA, T0))
            a("v_mul_u32_u24 v%d, 80, v%d" % (VCA, VCA))
            a("v_and_b32 v%d, 3, v0" % T3)
            a("v_lshl_add_u32 v%d, v%d, 2, v%d" % (VCA, T3, VCA))
            a("v_add_u32 v%d, s27, v%d" % (VCA, VCA))
        a("s_barrier")
        stamp(0)
        for l in reads(0):
            a(l)
        a(".p2align 6")
        a("L1_loop%s:" % sfx)
        for b in (0, 1):
            mf = []
            for mt in range(4):
                for t in range(5):
                    c = vr(acc(mt, t), 4)
                    x, w = vr(XF[b] + 4 * mt, 4), vr(WF[b] + 4 * t, 4)
                    mf.append("v_mfma_f32_16x16x32_bf16 %s, %s, %s, %s" % ((c, x, w, c) if vt else (c, w, x, c)))
            rd = reads(1 - b)
            if b == 0:
                rd += ["s_add_u32 s%d, s%d, 1" % (S_ST, S_ST), "s_and_b32 s%d, s%d, 3" % (S_DL, S_ST),
                       "s_cselect_b32 s%d, s39, %d" % (S_DL, -3 * SLOT & 0xffffffff),
                       "v_add_u32 v%d, s%d, v%d" % (AX[0], S_DL, AX[0]), "v_add_u32 v%d, s%d, v%d" % (AW[0], S_DL, AW[0]),
                       "v_add_u32 v%d, s%d, v%d" % (AX[1], S_DL, AX[1])]
                a("s_waitcnt lgkmcnt(0)")
            else:
                a("s_waitcnt lgkmcnt(0)")
                a(mf.pop(0))
                a("s_barrier")
            for m in mf:
                a(m)
                if rd:
                    a(rd.pop(0))
            assert not rd
        a("s_cmp_lt_u32 s%d, 10" % S_ST)
        a("s_cbranch_scc1 L1_loop%s" % sfx)
        stamp(1)
        a("s_waitcnt lgkmcnt(0)")
        stat_reads(vt)
        pkfma = "v_pk_fma_f32 %s, %s, %s, %s op_sel:[%d,%d,0] op_sel_hi:[%d,%d,1] neg_lo:[1,0,0] neg_hi:[1,0,0]"
        pkmul = "v_pk_mul_f32 %s, %s, %s op_sel:[%d,0] op_sel_hi:[%d,1]"
        if vt == 0:
            assert WS_KV == 0
            a("s_cmp_lt_u32 s%d, 4" % S_CB)
            a("s_cselect_b32 s31, 0x%x, 1.0" % QSCALE)
            a("s_cselect_b32 s28, 0x%x, 0" % WS_Q)
            a("s_cselect_b32 s29, 0, 1")
            a("s_lshl_b32 s26, 81920, s29")
            a("s_lshl_b32 s27, 1280, s29")
            a("s_and_b32 s29, s%d, 3" % S_CB)
            a("s_lshl_b32 s29, s29, 3")
            a("s_lshl_b32 s30, s%d, 2" % S_WN)
            a("s_add_u32 s29, s29, s30")
            a("s_mul_i32 s29, s29, s26")
            a("s_add_u32 s28, s28, s29")
            a("s_lshl_b32 s29, s%d, 2" % S_RB)
            a("s_lshl_b32 s30, s%d, 1" % S_WM)
            a("s_add_u32 s29, s29, s30")
            a("s_mul_i32 s29, s29, s27")
            a("s_add_u32 s28, s28, s29")
            a("s_add_u32 s29, s28, s27")
            a("v_mul_lo_u32 v%d, s26, v%d" % (T3, T1))
            a("v_and_b32 v%d, 8, v%d" % (T2, T0))
            a("v_add_u32 v%d, v%d, v%d" % (T2, T2, T0))
            a("v_lshl_add_u32 v%d, v%d, 5, v%d" % (T0, T2, T3))
            a("v_lshl_add_u32 v%d, v%d, 3, v%d" % (T1, T2, T3))
            a("s_waitcnt lgkmcnt(0)")
            stamp(4)
            for mt in range(4):
                a("v_mul_f32 v%d, s31, v%d" % (MR + 2 * mt + 1, MR + 2 * mt + 1))
            for mt in range(4):
                mr = vr(MR + 2 * mt, 2)
                for t in range(5):
                    for e in (0, 2):
                        c = vr(acc(mt, t) + e, 2)
                        a(pkfma % (c, mr, vr(C0 + 4 * t + e, 2), c, 0, 0, 0, 1))
                for t in range(5):
                    for e in (0, 2):
                        c = vr(acc(mt, t) + e, 2)
                        a(pkmul % (c, mr, c, 1, 1))
                P = 84 + 12 * mt
                for t in range(5):
                    a("v_cvt_pk_bf16_f32 v%d, v%d, v%d" % (P + 2 * t, acc(mt, t), acc(mt, t) + 1))
                    a("v_cvt_pk_bf16_f32 v%d, v%d, v%d" % (P + 2 * t + 1, acc(mt, t) + 2, acc(mt, t) + 3))
                so = 28 + (mt >> 1)
                a("buffer_store_dwordx4 %s, v%d, %s, s%d offen offset:%d" % (vr(P, 4), T0, sr(S_WS, 4), so, 256 * (mt & 1)))
                a("buffer_store_dwordx4 %s, v%d, %s, s%d offen offset:%d" % (vr(P + 4, 4), T0, sr(S_WS, 4), so, 256 * (mt & 1) + 16))
                a("buffer_store_dwordx2 %s, v%d, %s, s%d offen offset:%d" % (vr(P + 8, 2), T1, sr(S_WS, 4), so, 1024 + 64 * (mt & 1)))
        else:
            a("s_and_b32 s29, s%d, 3" % S_CB)
            a("s_lshl_b32 s29, s29, 3")
            a("s_lshl_b32 s30, s%d, 2" % S_WN)
            a("s_add_u32 s29, s29, s30")
            a("s_mul_i32 s28, s29, 163840")
            a("s_lshl_b32 s29, s%d, 2" % S_RB)
            a("s_lshl_b32 s30, s%d, 1" % S_WM)
            a("s_add_u32 s29, s29, s30")
            a("s_mul_i32 s29, s29, 2560")
            a("s_add_u32 s28, s28, s29")
            a("s_add_u32 s28, s28, %d" % (WS_KV + 1280))
            a("s_mov_b32 s26, 163840")
            a("v_lshrrev_b32 v%d, 2, v%d" % (T2, T0))
            a("v_mul_lo_u32 v%d, s26, v%d" % (T0, T2))
            a("v_mul_u32_u24 v%d, 320, v%d" % (T2, T1))
            a("v_add_u32 v%d, v%d, v%d" % (T0, T0, T2))
            a("v_and_b32 v%d, 3, v0" % T2)
            a("v_lshl_add_u32 v%d, v%d, 4, v%d" % (T0, T2, T0))
            a("s_waitcnt lgkmcnt(0)")
            stamp(4)
            for u in range(2):
                for mt in (2 * u, 2 * u + 1):
                    for t in range(5):
                        for e in (0, 2):
                            c = vr(acc(mt, t) + e, 2)
                            a(pkfma % (c, vr(MR + 8 * mt + e, 2), vr(C0 + (t & ~1), 2), c, 0, t & 1, 1, t & 1))
                    for t in range(5):
                        for e in (0, 2):
                            c = vr(acc(mt, t) + e, 2)
                            a(pkmul % (c, vr(MR + 8 * mt + 4 + e, 2), c, 0, 1))
                for t in range(5):
                    P = 84 + 20 * u + 4 * t
                    for h in range(2):
                        mt = 2 * u + h
                        a("v_cvt_pk_bf16_f32 v%d, v%d, v%d" % (P + 2 * h, acc(mt, t), acc(mt, t) + 1))
                        a("v_cvt_pk_bf16_f32 v%d, v%d, v%d" % (P + 2 * h + 1, acc(mt, t) + 2, acc(mt, t) + 3))
                    a("buffer_store_dwordx4 %s, v%d, %s, s28 offen offset:%d" % (vr(P, 4), T0, sr(S_WS, 4), 2560 * u + 64 * t))
        stamp(2)
        diag_out()
        a("s_endpgm")
    a("L1_spare:")
    nv2 = gen_spare(a, stamp, diag_out)
    a("L1_end:")
    a("s_endpgm")
    return kernel_desc(name, max(NV, nv2), 80)
```

```python
from common import *
import os
S_X, S_W, S_WS, S_DBG = 8, 12, 16, 44
S_WV = 20
L_CP = 65536
L_CNT = 66048

def ln_scalars(a, SUM, SQ, M, RS, T):
    a("v_mul_f32 v%d, 0x%x, v%d" % (M, f2u(1.0 / 640), SUM))
    a("v_mul_f32 v%d, 0x%x, v%d" % (T, f2u(1.0 / 640), SQ))
    a("v_fma_f32 v%d, -v%d, v%d, v%d" % (T, M, M, T))
    a("v_max_f32 v%d, 0, v%d" % (T, T))
    bf16_round(a, T, T)
    a("v_add_f32 v%d, 0x%x, v%d" % (T, f2u(1e-5), T))
    bf16_round(a, T, T)
    a("v_sqrt_f32 v%d, v%d" % (T, T))
    bf16_round(a, M, M)
    bf16_round(a, T, T)
    a("v_rcp_f32 v%d, v%d" % (RS, T))

def row16_sum(a, regs):
    for mode in ("quad_perm:[1,0,3,2]", "quad_perm:[2,3,0,1]", "row_half_mirror", "row_mirror"):
        if len(regs) < 3:
            a("s_nop %d" % (2 - len(regs)))
        for r in regs:
            a("v_add_f32_dpp v%d, v%d, v%d %s row_mask:0xf bank_mask:0xf" % (r, r, r, mode))

def gen_spare(a, stamp, diag_out):
    S_XC, S_IDX = 21, 22
    S_G = 24
    a("s_load_dwordx2 s[36:37], s[0:1], %d" % KA_WR)
    a("s_load_dwordx2 s[78:79], s[0:1], %d" % KA_WO)
    a("s_and_b32 s%d, s2, 7" % S_XC)
    a("s_lshr_b32 s%d, s2, 3" % S_IDX)
    a("v_mov_b32 v3, %d" % L_CNT)
    def signal1(T0, T1):
        n = len(a.lines)
        a("v_mov_b32 v%d, 1" % T1)
        a("s_mov_b64 exec, 1")
        a("ds_add_rtn_u32 v%d, v3, v%d offset:4" % (T0, T1))
        a("s_mov_b64 exec, 3")
        a("s_waitcnt lgkmcnt(0)")
        a("v_readfirstlane_b32 s38, v%d" % T0)
        a("v_lshlrev_b32 v%d, 7, v0" % T0)
        a("s_cmp_lg_u32 s38, 4")
        a("s_cbranch_scc1 LS_ns%d" % n)
        a("buffer_atomic_add v%d, v%d, %s, 0 offen sc1" % (T1, T0, sr(S_DBG, 4)))
        a("LS_ns%d:" % n)
        a("s_mov_b64 exec, -1")
    a("s_cmp_ge_u32 s%d, 4" % S_WV)
    a("s_cbranch_scc1 LS_cw")
    X = [4, 24]
    WR = 44
    F = 64
    SU = [104, 105]; SQ = [106, 107]; M = [108, 110]; RS = [109, 111]; RR = [112, 113]
    VA, VB, T0, T1, ROW, T2 = 114, 115, 116, 117, 118, 119
    a("s_lshr_b32 s38, s%d, 1" % S_XC)
    a("s_lshl_b32 s38, s38, 9")
    a("s_and_b32 s39, s%d, 1" % S_XC)
    a("s_lshl_b32 s39, s39, 3")
    a("s_add_u32 s39, s39, s%d" % S_IDX)
    a("s_lshl_b32 s39, s39, 5")
    a("s_add_u32 s38, s38, s39")
    a("s_lshl_b32 s39, s%d, 3" % S_WV)
    a("s_add_u32 s38, s38, s39")
    a("v_lshrrev_b32 v%d, 4, v0" % ROW)
    a("v_add_u32 v%d, s38, v%d" % (ROW, ROW))
    a("v_and_b32 v%d, 15, v0" % T0)
    a("v_lshlrev_b32 v%d, 4, v%d" % (VB, T0))
    a("v_mul_u32_u24 v%d, 1280, v%d" % (VA, ROW))
    a("v_add_u32 v%d, v%d, v%d" % (VA, VA, VB))
    for i in range(4):
        a("v_mov_b32 v%d, 0" % (F + i))
    a("ds_write_b128 v3, %s" % vr(F, 4))
    a("s_movk_i32 s39, 5120")
    a("s_waitcnt lgkmcnt(0)")
    srd(a, S_X, 4, 5, 2621440)
    for j in range(5):
        a("buffer_load_dwordx4 %s, v%d, %s, 0 offen offset:%d" % (vr(X[0] + 4 * j, 4), VA, sr(S_X, 4), 256 * j))
    for j in range(5):
        a("buffer_load_dwordx4 %s, v%d, %s, s39 offen offset:%d" % (vr(X[1] + 4 * j, 4), VA, sr(S_X, 4), 256 * j))
    srd(a, S_W, 36, 37, 1280)
    for j in range(5):
        a("buffer_load_dwordx4 %s, v%d, %s, 0 offen offset:%d" % (vr(WR + 4 * j, 4), VB, sr(S_W, 4), 256 * j))
    srd(a, S_WS, 42, 43, WS_END)
    srd(a, S_DBG, 40, 41, 256)
    a("s_barrier")
    a("s_mov_b32 s38, 0x3f803f80")
    for r in SU + SQ + RR:
        a("v_mov_b32 v%d, 0" % r)
    a("v_lshl_add_u32 v%d, v%d, 2, v%d" % (ROW, T0, ROW))
    a("v_cmp_eq_u32 s[32:33], 1, v%d" % T0)
    a("v_cmp_gt_u32 s[34:35], 2, v%d" % T0)
    a("v_lshlrev_b32 v%d, 2, v%d" % (T2, ROW))
    a("s_waitcnt vmcnt(5)")
    stamp(0)
    for j in range(20):
        for p in range(2):
            a("v_dot2c_f32_bf16 v%d, s38, v%d" % (SU[p], X[p] + j))
            a("v_dot2c_f32_bf16 v%d, v%d, v%d" % (SQ[p], X[p] + j, X[p] + j))
    a("s_nop 2")
    row16_sum(a, SU + SQ)
    for p in range(2):
        ln_scalars(a, SU[p], SQ[p], M[p], RS[p], T0)
    a("s_mov_b32 s38, 0x%x" % WS_STAT)
    a("s_mov_b32 s39, 0x%x" % (WS_STAT + 8192))
    a("v_cndmask_b32 v%d, v%d, v%d, s[32:33]" % (T0, M[0], M[1]))
    a("v_cndmask_b32 v%d, v%d, v%d, s[32:33]" % (T1, RS[0], RS[1]))
    a("s_mov_b64 exec, s[34:35]")
    a("buffer_store_dword v%d, v%d, %s, s38 offen sc1" % (T0, T2, sr(S_WS, 4)))
    a("buffer_store_dword v%d, v%d, %s, s39 offen sc1" % (T1, T2, sr(S_WS, 4)))
    a("s_mov_b64 exec, -1")
    for p in range(2):
        mr = vr(M[p], 2)
        for j in range(20):
            a("v_lshlrev_b32 v%d, 16, v%d" % (F + 2 * j, X[p] + j))
            a("v_and_b32 v%d, 0xffff0000, v%d" % (F + 2 * j + 1, X[p] + j))
        for j in range(20):
            a("v_pk_add_f32 %s, %s, %s op_sel:[0,0] op_sel_hi:[1,0] neg_lo:[0,1] neg_hi:[0,1]" % (vr(F + 2 * j, 2), vr(F + 2 * j, 2), mr))
        for j in range(20):
            a("v_cvt_pk_bf16_f32 v%d, v%d, v%d" % (X[p] + j, F + 2 * j, F + 2 * j + 1))
        for j in range(20):
            a("v_lshlrev_b32 v%d, 16, v%d" % (F + 2 * j, X[p] + j))
            a("v_and_b32 v%d, 0xffff0000, v%d" % (F + 2 * j + 1, X[p] + j))
        for j in range(20):
            a("v_pk_mul_f32 %s, %s, %s op_sel:[0,1] op_sel_hi:[1,1]" % (vr(F + 2 * j, 2), vr(F + 2 * j, 2), mr))
        for j in range(20):
            a("v_cvt_pk_bf16_f32 v%d, v%d, v%d" % (X[p] + j, F + 2 * j, F + 2 * j + 1))
        if p == 0:
            a("s_waitcnt vmcnt(0)")
            signal1(T0, T1)
            stamp(1)
        for j in range(20):
            a("v_dot2c_f32_bf16 v%d, v%d, v%d" % (RR[p], X[p] + j, WR + j))
    a("s_nop 2")
    row16_sum(a, RR)
    a("v_cndmask_b32 v%d, v%d, v%d, s[32:33]" % (RR[0], RR[0], RR[1]))
    bf16_round(a, RR[0], RR[0])
    a("v_ashrrev_i32 v%d, 31, v%d" % (T1, RR[0]))
    a("v_or_b32 v%d, 0x80000000, v%d" % (T1, T1))
    a("v_xor_b32 v%d, v%d, v%d" % (RR[0], RR[0], T1))
    a("v_and_b32 v%d, 0xffff0000, v%d" % (RR[0], RR[0]))
    a("v_sub_u32 v%d, 0xffff, v%d" % (T1, ROW))
    a("v_or_b32 v%d, v%d, v%d" % (RR[0], RR[0], T1))
    a("s_mov_b32 s49, 0x%x" % WS_KEY)
    a("s_mov_b64 exec, s[34:35]")
    a("buffer_store_dword v%d, v%d, %s, s49 offen sc1" % (RR[0], T2, sr(S_WS, 4)))
    a("s_mov_b64 exec, -1")
    a("s_mov_b32 s39, 0x%x" % (WS_XN + 5120))
    a("s_mov_b32 s38, 0x%x" % WS_XN)
    for p in range(2):
        for j in range(5):
            a("buffer_store_dwordx4 %s, v%d, %s, s%d offen offset:%d" % (vr(X[p] + 4 * j, 4), VA, sr(S_WS, 4), 38 + p, 256 * j))
    stamp(2)
    a("v_mov_b32 v%d, 1" % T1)
    a("s_waitcnt vmcnt(10)")
    a("s_mov_b64 exec, 1")
    a("ds_add_rtn_u32 v%d, v3, v%d offset:8" % (T0, T1))
    a("s_waitcnt lgkmcnt(0)")
    a("v_readfirstlane_b32 s38, v%d" % T0)
    a("v_mov_b32 v%d, 192" % T0)
    a("s_cmp_lg_u32 s38, 3")
    a("s_cbranch_scc1 LS_rdone")
    a("buffer_atomic_add v%d, v%d, %s, 0 offen sc0 sc1" % (T1, T0, sr(S_DBG, 4)))
    a("s_waitcnt vmcnt(0)")
    a("v_readfirstlane_b32 s38, v%d" % T1)
    a("s_cmp_lg_u32 s38, 63")
    a("s_cbranch_scc1 LS_rdone")
    a("s_mov_b64 exec, -1")
    stamp(3)
    K = 4
    a("v_lshlrev_b32 v%d, 4, v0" % VB)
    a("s_mov_b32 s38, 0x%x" % WS_KEY)
    a("s_mov_b32 s39, 0x%x" % (WS_KEY + 4096))
    for j in range(8):
        a("buffer_load_dwordx4 %s, v%d, %s, s%d offen offset:%d sc1" % (vr(K + 4 * j, 4), VB, sr(S_WS, 4), 38 + (j >> 2), 1024 * (j & 3)))
    a("s_mov_b32 s38, 0")
    a("s_mov_b32 s39, 0")
    a("v_mov_b32 v%d, 0" % VA)
    a("s_waitcnt vmcnt(0)")
    stamp(4)
    a("LS_top:")
    for j in range(4):
        a("v_max3_u32 v%d, v%d, v%d, v%d" % (F + j, K + 8 * j, K + 8 * j + 1, K + 8 * j + 2))
    for j in range(4):
        a("v_max3_u32 v%d, v%d, v%d, v%d" % (F + j, F + j, K + 8 * j + 3, K + 8 * j + 4))
    for j in range(4):
        a("v_max3_u32 v%d, v%d, v%d, v%d" % (F + j, F + j, K + 8 * j + 5, K + 8 * j + 6))
    a("v_max3_u32 v%d, v%d, v%d, v%d" % (F, F, K + 7, K + 15))
    a("v_max3_u32 v%d, v%d, v%d, v%d" % (F + 1, F + 1, K + 23, K + 31))
    a("v_max3_u32 v%d, v%d, v%d, v%d" % (F, F, F + 2, F + 3))
    a("v_max_u32 v%d, v%d, v%d" % (F, F, F + 1))
    for mode in ("quad_perm:[1,0,3,2] row_mask:0xf", "quad_perm:[2,3,0,1] row_mask:0xf", "row_half_mirror row_mask:0xf", "row_mirror row_mask:0xf",
                 "row_bcast:15 row_mask:0xa", "row_bcast:31 row_mask:0xc"):
        a("s_nop 1")
        a("v_max_u32_dpp v%d, v%d, v%d %s bank_mask:0xf" % (F, F, F, mode))
    a("s_nop 0")
    a("v_readlane_b32 s49, v%d, 63" % F)
    a("s_mov_b32 m0, s39")
    a("s_add_u32 s38, s38, s49")
    a("s_add_u32 s39, s39, 1")
    a("v_writelane_b32 v%d, s38, m0" % VA)
    for j in range(32):
        a("v_subrev_u32 v%d, s49, v%d" % (K + j, K + j))
    a("s_cmp_lt_u32 s39, 8")
    a("s_cbranch_scc1 LS_top")
    a("v_and_b32 v%d, 0xffff, v%d" % (T0, VA))
    a("v_sub_u32 v%d, 0xffff, v%d" % (T0, T0))
    a("v_and_b32 v%d, 0x7ff, v%d" % (T0, T0))
    a("v_lshlrev_b32 v%d, 2, v0" % VB)
    a("s_mov_b64 exec, 0xff")
    a("v_ashrrev_i32 v%d, 31, v%d" % (T1, VA))
    a("v_not_b32 v%d, v%d" % (T1, T1))
    a("v_or_b32 v%d, 0x80000000, v%d" % (T1, T1))
    a("v_xor_b32 v%d, v%d, v%d" % (VA, VA, T1))
    a("v_and_b32 v%d, 0xffff0000, v%d" % (VA, VA))
    a("v_mul_f32 v%d, 0xbfb8aa3b, v%d" % (VA, VA))
    a("v_exp_f32 v%d, v%d" % (VA, VA))
    a("s_mov_b32 s38, 0x%x" % WS_SEL)
    a("v_add_f32 v%d, 1.0, v%d" % (VA, VA))
    a("v_rcp_f32 v%d, v%d" % (VA, VA))
    a("buffer_store_dword v%d, v%d, %s, s38 offen" % (T0, VB, sr(S_WS, 4)))
    bf16_round(a, VA, VA)
    a("buffer_store_dword v%d, v%d, %s, s38 offen offset:32" % (VA, VB, sr(S_WS, 4)))
    a("LS_rdone:")
    stamp(5)
    diag_out()
    a("s_endpgm")
    a("LS_cw:")
    a("s_setprio 2")
    CW = 4
    CA = 44
    VC, VD, T0, T1, TR = 114, 115, 116, 117, 118
    a("s_sub_u32 s48, s%d, 4" % S_WV)
    a("s_lshr_b32 s38, s%d, 1" % S_XC)
    a("s_lshl_b32 s38, s38, 3")
    a("s_add_u32 s38, s38, s%d" % S_IDX)
    a("s_min_u32 s38, s38, 29")
    a("s_lshl_b32 s38, s38, 6")
    a("s_and_b32 s39, s%d, 1" % S_XC)
    a("s_mul_i32 s39, s39, 1920")
    a("s_add_u32 s23, s38, s39")
    a("s_mul_i32 s39, s48, %d" % (160 * 3840))
    a("s_add_u32 s38, s23, s39")
    a("v_lshrrev_b32 v%d, 2, v0" % T0)
    a("v_and_b32 v%d, 3, v0" % T1)
    a("v_lshlrev_b32 v%d, 4, v%d" % (T1, T1))
    a("v_mul_u32_u24 v%d, 3840, v%d" % (VC, T0))
    a("v_add_u32 v%d, v%d, v%d" % (VC, VC, T1))
    a("s_waitcnt lgkmcnt(0)")
    srd(a, S_W, 6, 7, 2457600)
    for j in range(10):
        a("buffer_load_dwordx4 %s, v%d, %s, s38 offen" % (vr(CW + 4 * j, 4), VC, sr(S_W, 4)))
        if j < 9:
            a("s_add_u32 s38, s38, %d" % (16 * 3840))
    if os.environ.get("K1_CPF", "1") == "1":
        code_prefetch(a, S_DBG, T0, 119, "L1_spare", "L_code_end", nmax=3)
        NPF = 3
    else:
        NPF = 0
    srd(a, S_WS, 42, 43, WS_END)
    srd(a, S_DBG, 40, 41, 256)
    srd(a, S_G, 78, 79, 819200)
    a("v_lshlrev_b32 v%d, 21, v0" % T0)
    a("v_mov_b32 v%d, 0" % T1)
    a("buffer_load_dword v119, v%d, %s, 0 offen" % (T0, sr(S_WS, 4)))
    a("buffer_load_dword v119, v%d, %s, 0 offen" % (T0, sr(S_G, 4)))
    a("s_cmp_lg_u32 s48, 0")
    a("s_cselect_b32 s38, 256, 64")
    a("buffer_atomic_add v%d, v%d, %s, s38 offen sc1" % (T1, T0, sr(S_DBG, 4)))
    NPF += 3
    a("s_barrier")
    a("s_cmp_ge_u32 s2, 5")
    a("s_cbranch_scc1 LS_noclr")
    for i in range(4):
        a("v_mov_b32 v%d, 0" % (CA + i))
    a("s_lshl_b32 s38, s2, 2")
    a("s_add_u32 s38, s38, s48")
    a("s_lshl_b32 s38, s38, 10")
    a("s_add_u32 s38, s38, 0x%x" % WS_UPD)
    a("v_lshlrev_b32 v%d, 4, v0" % T1)
    a("buffer_store_dwordx4 %s, v%d, %s, s38 offen" % (vr(CA, 4), T1, sr(S_WS, 4)))
    a("LS_noclr:")
    a("s_waitcnt vmcnt(%d)" % NPF)
    a("LS_cs:")
    stamp(0)
    F = 64
    for j in range(10):
        for d in range(4):
            if j == 0:
                a("v_lshlrev_b32 v%d, 16, v%d" % (CA + 2 * d, CW + d))
                a("v_and_b32 v%d, 0xffff0000, v%d" % (CA + 2 * d + 1, CW + d))
            else:
                a("v_lshlrev_b32 v%d, 16, v%d" % (F + 2 * d, CW + 4 * j + d))
                a("v_and_b32 v%d, 0xffff0000, v%d" % (F + 2 * d + 1, CW + 4 * j + d))
        if j:
            for d in range(4):
                a("v_pk_add_f32 %s, %s, %s" % (vr(CA + 2 * d, 2), vr(CA + 2 * d, 2), vr(F + 2 * d, 2)))
    a("s_nop 0")
    for mode in ("row_ror:4", "row_ror:8"):
        for d in range(8):
            a("v_add_f32_dpp v%d, v%d, v%d %s row_mask:0xf bank_mask:0xf" % (CA + d, CA + d, CA + d, mode))
    for d in range(4):
        a("v_permlane32_swap_b32 v%d, v%d" % (CA + d, CA + 4 + d))
    for d in range(4):
        a("v_add_f32 v%d, v%d, v%d" % (CA + d, CA + d, CA + 4 + d))
    a("s_nop 0")
    for d in range(2):
        a("v_permlane16_swap_b32 v%d, v%d" % (CA + d, CA + 2 + d))
    a("s_nop 0")
    for d in range(2):
        a("v_add_f32 v%d, v%d, v%d" % (CA + d, CA + d, CA + 2 + d))
    a("s_lshl_b32 s38, s48, 7")
    a("s_add_u32 s38, s38, %d" % L_CP)
    a("v_and_b32 v%d, 3, v0" % T0)
    a("v_lshlrev_b32 v%d, 5, v%d" % (T0, T0))
    a("v_lshrrev_b32 v%d, 4, v0" % T1)
    a("v_lshl_add_u32 v%d, v%d, 3, v%d" % (T0, T1, T0))
    a("v_add_u32 v%d, s38, v%d" % (T0, T0))
    a("v_mov_b32 v%d, 1" % T1)
    a("ds_write_b64 v%d, %s" % (T0, vr(CA, 2)))
    a("s_mov_b64 exec, 1")
    a("s_waitcnt lgkmcnt(0)")
    a("ds_add_rtn_u32 v%d, v3, v%d" % (T0, T1))
    a("s_mov_b64 exec, -1")
    a("s_waitcnt lgkmcnt(0)")
    a("v_readfirstlane_b32 s38, v%d" % T0)
    a("s_cmp_lg_u32 s38, 3")
    a("s_cbranch_scc1 LS_cs_done")
    a("v_and_b32 v%d, 31, v0" % T0)
    a("v_lshlrev_b32 v%d, 2, v%d" % (T0, T0))
    a("v_add_u32 v%d, %d, v%d" % (T1, L_CP, T0))
    for j in range(4):
        a("ds_read_b32 v%d, v%d offset:%d" % (F + j, T1, 128 * j))
    a("s_lshl_b32 s38, s23, 1")
    a("s_add_u32 s38, s38, 0x%x" % WS_CS)
    a("s_waitcnt lgkmcnt(0)")
    a("v_add_f32 v%d, v%d, v%d" % (F, F, F + 1))
    a("v_add_f32 v%d, v%d, v%d" % (F + 2, F + 2, F + 3))
    a("v_add_f32 v%d, v%d, v%d" % (F, F, F + 2))
    a("s_mov_b32 exec_hi, 0")
    a("buffer_store_dword v%d, v%d, %s, s38 offen sc1" % (F, T0, sr(S_WS, 4)))
    a("s_mov_b64 exec, -1")
    a("s_waitcnt vmcnt(0)")
    signal1(T0, T1)
    a("LS_cs_done:")
    stamp(1)
    a("s_cmp_lg_u32 s%d, 7" % S_WV)
    a("s_cbranch_scc1 LS_end")
    a("s_setprio 0")
    a("s_lshr_b32 s36, s2, 2")
    a("s_and_b32 s48, s2, 3")
    a("s_lshr_b32 s38, s36, 1")
    a("s_mul_i32 s38, s38, 160")
    a("s_and_b32 s39, s36, 1")
    a("s_mul_i32 s39, s39, %d" % (320 * 1280))
    a("s_add_u32 s38, s38, s39")
    a("s_mul_i32 s39, s48, %d" % (80 * 1280))
    a("s_add_u32 s38, s38, s39")
    a("s_mov_b32 s39, 0")
    a("s_movk_i32 s37, %d" % (1280 - 160))
    a("v_lshlrev_b32 v%d, 4, v0" % T1)
    a("v_mul_u32_u24 v%d, 6554, v0" % TR)
    a("s_mov_b32 s49, 13")
    a("LS_wo_ld:")
    a("v_lshrrev_b32 v%d, 16, v%d" % (T0, TR))
    a("v_mad_u32_u24 v%d, v%d, s37, v%d" % (VD, T0, T1))
    a("s_mov_b32 m0, s39")
    a("v_add_u32 v%d, %d, v%d" % (TR, 64 * 6554, TR))
    a("s_cmp_eq_u32 s49, 1")
    a("s_cselect_b32 exec_hi, 0, -1")
    a("s_add_u32 s39, s39, 1024")
    a("buffer_load_dwordx4 v%d, %s, s38 offen lds" % (VD, sr(S_G, 4)))
    a("s_add_u32 s38, s38, 1024")
    a("s_sub_u32 s49, s49, 1")
    a("s_cmp_lg_u32 s49, 0")
    a("s_cbranch_scc1 LS_wo_ld")
    a("s_mov_b64 exec, -1")
    a("v_bfe_u32 v%d, v0, 4, 1" % T0)
    a("v_bfe_u32 v%d, v0, 2, 2" % T1)
    a("v_lshl_add_u32 v%d, v%d, 3, v%d" % (TR, T0, T1))
    a("v_mul_u32_u24 v%d, 160, v%d" % (TR, TR))
    a("v_and_b32 v%d, 3, v0" % T1)
    a("v_mul_u32_u24 v%d, 40, v%d" % (T1, T1))
    a("v_add_u32 v%d, v%d, v%d" % (TR, TR, T1))
    a("v_lshrrev_b32 v%d, 5, v0" % T1)
    a("v_lshl_add_u32 v%d, v%d, 3, v%d" % (TR, T1, TR))
    a("v_and_b32 v%d, 31, v0" % VD)
    a("v_lshlrev_b32 v%d, 4, v%d" % (VD, VD))
    a("v_lshl_add_u32 v%d, v%d, 10, v%d" % (VD, T1, VD))
    a("s_mul_i32 s36, s36, 51200")
    a("s_add_u32 s36, s36, 0x%x" % WS_WOT)
    a("s_mul_i32 s37, s48, 5")
    a("s_mov_b32 s49, 5")
    a("s_waitcnt vmcnt(0)")
    a("LS_wo_loop:")
    for ps in range(3):
        a("ds_read_b64_tr_b16 %s, v%d offset:%d" % (vr(4 + 4 * ps, 2), TR, 16 * ps))
        a("ds_read_b64_tr_b16 %s, v%d offset:%d" % (vr(6 + 4 * ps, 2), TR, 16 * ps + 640))
    a("s_lshr_b32 s38, s37, 1")
    a("s_mul_i32 s38, s38, 5120")
    a("s_and_b32 s39, s37, 1")
    a("s_lshl_b32 s39, s39, 9")
    a("s_add_u32 s38, s38, s39")
    a("s_add_u32 s38, s38, s36")
    a("s_add_u32 s39, s38, 4096")
    a("v_add_u32 v%d, 2560, v%d" % (TR, TR))
    a("s_add_u32 s37, s37, 1")
    a("s_waitcnt lgkmcnt(0)")
    a("buffer_store_dwordx4 v[4:7], v%d, %s, s38 offen" % (VD, sr(S_WS, 4)))
    a("buffer_store_dwordx4 v[8:11], v%d, %s, s38 offen offset:2048" % (VD, sr(S_WS, 4)))
    a("s_mov_b32 exec_hi, 0")
    a("buffer_store_dwordx4 v[12:15], v%d, %s, s39 offen" % (VD, sr(S_WS, 4)))
    a("s_mov_b64 exec, -1")
    a("s_sub_u32 s49, s49, 1")
    a("s_cmp_lg_u32 s49, 0")
    a("s_cbranch_scc1 LS_wo_loop")
    a("LS_end:")
    stamp(5)
    diag_out()
    a("s_endpgm")
    return 120
```

```python
from common import *
import os
DIAG = os.environ.get("DIAG")
K2_PRIO = os.environ.get("K2_PRIO", "10,14,15")
K2_K0 = int(os.environ.get("K2_K0", "4"))
K2_NW = 12

def gen_k2(a, name="attn_kernel"):
    QBW, NG, KS, NT, UN = 2, 4, 2, 32, int(os.environ.get('K2_UN', '2'))
    NIT = NT // UN
    r = [4]
    def alloc(n):
        b = r[0]; r[0] += (n + 1) // 2 * 2; return b
    QA = [alloc(4) for _ in range(QBW)]
    QB = [alloc(2) for _ in range(QBW)]
    KA, KB = alloc(4), alloc(2)
    V0, V1 = alloc(4), alloc(4)
    P0, P1 = alloc(4), alloc(4)
    SA, SB = alloc(16), alloc(16)
    O = [alloc(16) for _ in range(QBW)]
    AKA, AKB, AV, LANE = alloc(1), r[0] - 1, alloc(1), r[0] - 1
    T0, T1, T2, T3 = alloc(1), r[0] - 1, alloc(1), r[0] - 1
    M = [alloc(1), r[0] - 1]
    NV = r[0]
    S_KV, S_Q = 8, 12
    S_H, S_QB, S_W, S_T = 16, 17, 18, 19
    S_VM, S_HI = 20, 22
    S_IT, S_FB, S_KS, S_G = 24, 25, 26, 27
    S_TMP = 28
    qk1 = lambda S, q: a("v_mfma_f32_32x32x16_bf16 %s, %s, %s, 0" % (vr(S, 16), vr(KA, 4), vr(QA[q], 4)))
    qk2 = lambda S, q: a("v_mfma_f32_32x32x8_bf16 %s, %s, %s, %s" % (vr(S, 16), vr(KB, 2), vr(QB[q], 2), vr(S, 16)))
    pv0 = lambda q: a("v_mfma_f32_32x32x16_bf16 %s, %s, %s, %s" % (vr(O[q], 16), vr(V0, 4), vr(P0, 4), vr(O[q], 16)))
    pv1 = lambda q: a("v_mfma_f32_32x32x16_bf16 %s, %s, %s, %s" % (vr(O[q], 16), vr(V1, 4), vr(P1, 4), vr(O[q], 16)))
    rka = lambda t: a("ds_read_b128 %s, v%d offset:%d" % (vr(KA, 4), AKA, t * 2560))
    rkb = lambda t: a("ds_read_b32 v%d, v%d offset:%d" % (KB, AKB, t * 2560 + 1024))
    rv0 = lambda t: a("ds_read_b128 %s, v%d offset:%d" % (vr(V0, 4), AV, t * 2560 + 1280))
    rv1 = lambda t: a("ds_read_b128 %s, v%d offset:%d" % (vr(V1, 4), AV, t * 2560 + 1920))
    mon = lambda: a("s_mov_b64 exec, %s" % sr(S_VM, 2))
    moff = lambda: a("s_mov_b64 exec, -1")
    wl = lambda k: a("s_waitcnt lgkmcnt(%d)" % k)
    def diag(regs, base):
        if DIAG:
            a("s_memtime s[46:47]")
            a("s_memrealtime s[48:49]")
            a("s_waitcnt lgkmcnt(0)")
            a("s_sub_u32 s44, s44, s40")
            a("s_sub_u32 s46, s46, s40")
            a("s_sub_u32 s48, s48, s42")
            a("s_sub_u32 s52, s52, s40")
            a("v_mov_b32 v%d, s44" % regs)
            a("v_mov_b32 v%d, s46" % (regs + 1))
            a("v_mov_b32 v%d, s48" % (regs + 2))
            a("v_mov_b32 v%d, s52" % (regs + 3))
            a("s_lshl_b32 s50, s2, 4")
            a("s_add_u32 s50, s50, s%d" % S_W)
            a("s_lshl_b32 s50, s50, 4")
            a("s_add_u32 s50, s50, 0x%x" % WS_DIAG)
            a("v_mov_b32 v%d, 0" % base)
            a("buffer_store_dwordx4 %s, v%d, %s, s50 offen" % (vr(regs, 4), base, sr(S_Q, 4)))

    kernel_begin(a, name)
    a("s_cmp_ge_u32 s2, 256")
    a("s_cbranch_scc1 L2_end")
    a("s_load_dwordx2 s[4:5], s[0:1], %d" % KA_WS)
    if DIAG:
        a("s_memtime s[40:41]")
        a("s_memrealtime s[42:43]")
    a("s_setprio 3")
    a("v_lshrrev_b32 v%d, 6, v0" % T0)
    a("v_and_b32 v%d, 63, v0" % LANE)
    a("s_and_b32 s%d, s2, 31" % S_H)
    a("v_readfirstlane_b32 s%d, v%d" % (S_W, T0))
    a("s_mul_i32 s%d, s%d, 163840" % (S_TMP + 1, S_H))
    a("s_mov_b32 s%d, 163840" % (S_KV + 2))
    a("s_mov_b32 s%d, 0x20000" % (S_KV + 3))
    a("s_cmp_lt_u32 s%d, 4" % S_W)
    a("s_cbranch_scc1 L2_helper")
    a("s_lshr_b32 s%d, s2, 5" % S_QB)
    a("s_mov_b32 s%d, 0x000fffff" % S_VM)
    a("s_mov_b32 s%d, 0x000fffff" % (S_VM + 1))
    a("s_mov_b32 s%d, 0" % S_HI)
    a("s_mov_b32 s%d, -1" % (S_HI + 1))
    a("v_and_b32 v%d, 31, v%d" % (T0, LANE))
    a("v_lshrrev_b32 v%d, 5, v%d" % (T1, LANE))
    a("v_lshlrev_b32 v%d, 5, v%d" % (AKA, T0))
    a("v_lshl_add_u32 v%d, v%d, 4, v%d" % (AKA, T1, AKA))
    a("v_lshrrev_b32 v%d, 2, v%d" % (AKB, AKA))
    a("s_and_b32 s%d, s%d, 3" % (S_G, S_W))
    a("s_lshr_b32 s%d, s%d, 3" % (S_KS, S_W))
    a("s_lshl_b32 s%d, s%d, 3" % (S_T, S_QB))
    a("s_lshl_b32 s%d, s%d, 1" % (S_TMP, S_G))
    a("s_add_u32 s%d, s%d, s%d" % (S_T, S_T, S_TMP))
    a("s_mul_i32 s%d, s%d, 81920" % (S_TMP, S_H))
    a("s_mul_i32 s%d, s%d, 1280" % (S_TMP + 2, S_T))
    a("s_add_u32 s%d, s%d, s%d" % (S_TMP, S_TMP, S_TMP + 2))
    a("s_add_u32 s%d, s%d, 0x%x" % (S_TMP, S_TMP, WS_Q))
    a("s_mul_i32 s%d, s%d, %d" % (S_TMP + 3, S_KS, NT * 2560))
    a("s_waitcnt lgkmcnt(0)")
    srd(a, S_Q, 4, 5, WS_END)
    for q in range(QBW):
        a("buffer_load_dwordx4 %s, v%d, %s, s%d offen offset:%d" % (vr(QA[q], 4), AKA, sr(S_Q, 4), S_TMP, 1280 * q))
        a("buffer_load_dword v%d, v%d, %s, s%d offen offset:%d" % (QB[q], AKB, sr(S_Q, 4), S_TMP, 1280 * q + 1024))
    a("s_add_u32 s%d, s4, s%d" % (S_KV, S_TMP + 1))
    a("s_addc_u32 s%d, s5, 0" % (S_KV + 1))
    a("v_mul_u32_u24 v%d, 320, v%d" % (AV, T1))
    a("v_lshl_add_u32 v%d, v%d, 4, v%d" % (AV, T0, AV))
    a("v_add_u32 v%d, s%d, v%d" % (AKA, S_TMP + 3, AKA))
    a("v_add_u32 v%d, s%d, v%d" % (AKB, S_TMP + 3, AKB))
    a("v_add_u32 v%d, s%d, v%d" % (AV, S_TMP + 3, AV))
    a("v_mov_b32 v%d, 0x3f80" % (KB + 1))
    for q in range(QBW):
        a("v_mov_b32 v%d, 0" % (QB[q] + 1))
    for i in range(4):
        a("v_mov_b32 v%d, 0" % (P1 + i))
    for q in range(QBW):
        for i in range(16):
            a("v_mov_b32 v%d, 0" % (O[q] + i))
    a("v_mov_b32 v%d, 0x3f803f80" % T3)
    a("v_cmp_eq_u32 vcc, 20, v%d" % T0)
    a("v_cmp_eq_u32 s[%d:%d], 24, v%d" % (S_TMP + 4, S_TMP + 5, T0))
    a("s_or_b64 vcc, vcc, s[%d:%d]" % (S_TMP + 4, S_TMP + 5))
    a("s_mov_b32 s%d, 0" % S_IT)
    a("s_mov_b32 s%d, 0" % S_FB)
    a("v_cndmask_b32 v%d, 0, v%d, vcc" % (T3, T3))
    for i in range(8):
        a("v_mov_b32 v%d, v%d" % (V0 + i, T3))
    a("s_barrier")
    if DIAG:
        a("s_memtime s[52:53]")
    rka(0); rkb(0)
    mon(); rv0(0); moff()
    a("s_waitcnt vmcnt(0) lgkmcnt(%d)" % (0 if DIAG else 1))
    def rowmax(dst, S, first):
        a("v_max3_f32 v%d, v%d, v%d, v%d" % (T0, S, S + 1, S + 2))
        a("v_max3_f32 v%d, v%d, v%d, v%d" % (T1, S + 3, S + 4, S + 5))
        a("v_max3_f32 v%d, v%d, v%d, v%d" % (T0, T0, S + 6, S + 7))
        a("v_max3_f32 v%d, v%d, v%d, v%d" % (T1, T1, S + 8, S + 9))
        a("v_max3_f32 v%d, v%d, v%d, v%d" % (T0, T0, S + 10, S + 11))
        a("v_max3_f32 v%d, v%d, v%d, v%d" % (T1, T1, S + 12, S + 13))
        a("v_max3_f32 v%d, v%d, v%d, v%d" % (T0, T0, S + 14, S + 15))
        if first:
            a("v_max_f32 v%d, v%d, v%d" % (dst, T0, T1))
        else:
            a("v_max3_f32 v%d, v%d, v%d, v%d" % (dst, T0, T1, dst))
    def xhalf_max(rr):
        a("v_mov_b32 v%d, v%d" % (T1, rr))
        a("s_nop 1")
        a("v_permlane32_swap_b32 v%d, v%d" % (rr, T1))
        a("s_nop 1")
        a("v_max_f32 v%d, v%d, v%d" % (rr, rr, T1))
    SS = [SA, SB]
    for q in range(QBW):
        qk1(SS[q], q); qk2(SS[q], q)
    a("s_nop 9")
    for q in range(QBW):
        rowmax(M[q], SS[q], True)
        xhalf_max(M[q])
        a("v_and_b32 v%d, 0xffff0000, v%d" % (T0, M[q]))
        a("v_sub_f32 v%d, v%d, v%d" % (T1, M[q], T0))
        a("v_and_b32 v%d, 0xffff0000, v%d" % (T1, T1))
        a("v_add_f32 v%d, v%d, v%d" % (M[q], T0, T1))
        a("v_cndmask_b32 v%d, v%d, v%d, %s" % (T0, T0, T1, sr(S_HI, 2)))
        a("v_xor_b32 v%d, 0x80000000, v%d" % (T0, T0))
        a("v_lshrrev_b32 v%d, 16, v%d" % (QB[q] + 1, T0))
        if q == 0:
            qk1(SA, 0)
            a("s_nop 0")
            qk2(SA, 0)
    if DIAG:
        a("s_memtime s[44:45]")
        a("s_waitcnt lgkmcnt(0)")
    a(".p2align 6")
    a("L2_loop:")
    def adv():
        a("v_add_u32 v%d, %d, v%d" % (AKA, UN * 2560, AKA))
        a("v_add_u32 v%d, %d, v%d" % (AKB, UN * 2560, AKB))
        a("v_add_u32 v%d, %d, v%d" % (AV, UN * 2560, AV))
    for n in range(UN):
        for ph in range(2):
            Sc, Sn = (SA, SB) if ph == 0 else (SB, SA)
            ex = lambda i: a("v_exp_f32 v%d, v%d" % (Sc + i, Sc + i))
            cv = lambda i: a("v_cvt_pk_bf16_f32 v%d, v%d, v%d" % (P0 + i, Sc + 2 * i, Sc + 2 * i + 1))
            if ph == 0:
                qk1(Sn, 1); rka(n + 1); ex(0); ex(1); ex(2); ex(3); cv(0); cv(1)
                pv1(1); mon(); rv1(n); moff(); ex(4); ex(5); ex(6); ex(7); cv(2); cv(3)
                qk2(Sn, 1); rkb(n + 1); ex(8); ex(9); ex(10); ex(11); cv(4); cv(5); wl(2)
                pv0(0); ex(12); ex(13); ex(14); ex(15); cv(6); cv(7)
            else:
                qk1(Sn, 0); ex(0); ex(1); ex(2); ex(3); cv(0); cv(1); wl(0)
                pv1(0); ex(4); ex(5); ex(6); ex(7); cv(2); cv(3)
                qk2(Sn, 0); ex(8); ex(9); ex(10); ex(11); cv(4); cv(5)
                pv0(1); mon(); rv0(n + 1); moff(); ex(12); ex(13); ex(14); ex(15)
                if n == UN - 1:
                    adv()
                cv(6); cv(7)
    if DIAG == "2":
        a("s_sub_u32 s54, s54, s40")
        a("s_mov_b32 m0, s%d" % S_IT)
        a("s_nop 0")
        a("v_writelane_b32 v2, s54, m0")
        a("s_memtime s[54:55]")
    a("s_add_u32 s%d, s%d, 1" % (S_IT, S_IT))
    pr = [int(x) for x in K2_PRIO.split(",")]
    SYNC_IT = 4 // UN
    special = sorted(set([SYNC_IT] + [p for p in pr if p < NIT] + [NIT]))
    mask = sum(1 << s for s in special)
    a("s_bitcmp1_b32 0x%x, s%d" % (mask, S_IT))
    a("s_cbranch_scc0 L2_loop")
    for s in special:
        if s == NIT:
            continue
        a("s_cmp_lg_u32 s%d, %d" % (S_IT, s))
        a("s_cbranch_scc1 L2_sp%d" % s)
        if s in pr:
            a("s_setprio %d" % (2 - pr.index(s)))
        if s == SYNC_IT:
            a("s_barrier")
        a("s_branch L2_loop")
        a("L2_sp%d:" % s)
    wl(0)
    pv1(QBW - 1)
    a("L2_epi:")
    if DIAG == "2":
        a("s_lshl_b32 s50, s2, 4")
        a("s_add_u32 s50, s50, s%d" % S_W)
        a("s_lshl_b32 s50, s50, 8")
        a("s_add_u32 s50, s50, 0x%x" % (WS_DIAG - 0x100000))
        a("v_lshlrev_b32 v3, 2, v%d" % LANE)
        a("buffer_store_dword v2, v3, %s, s50 offen" % sr(S_Q, 4))
    diag(P0, T0)
    a("s_nop 15")
    a("v_mov_b32 v%d, 0" % T2)
    a("s_mov_b64 vcc, 0")
    for q in range(QBW):
        Oq = O[q]
        a("v_cndmask_b32 v%d, v%d, v%d, %s" % (T0, Oq + 12, Oq + 8, sr(S_HI, 2)))
        a("v_rcp_f32 v%d, v%d" % (T1, T0))
        a("v_log_f32 v%d, v%d" % (Oq + 12, T0))
        a("v_mov_b32 v%d, 0x%x" % (T3, (127 - 40) << 23))
        a("v_cmp_nge_f32 s[%d:%d], v%d, v%d" % (S_TMP + 4, S_TMP + 5, T0, T3))
        a("s_or_b64 vcc, vcc, s[%d:%d]" % (S_TMP + 4, S_TMP + 5))
        a("v_mov_b32 v%d, 0x%x" % (T3, (127 + 40) << 23))
        a("v_cmp_nle_f32 s[%d:%d], v%d, v%d" % (S_TMP + 4, S_TMP + 5, T0, T3))
        a("s_or_b64 vcc, vcc, s[%d:%d]" % (S_TMP + 4, S_TMP + 5))
        for i in range(12):
            a("v_mul_f32 v%d, v%d, v%d" % (Oq + i, Oq + i, T1))
        a("v_add_f32 v%d, v%d, v%d" % (Oq + 12, Oq + 12, M[q]))
        for i in range(12):
            a("v_fmac_f32 v%d, 0, v%d" % (T2, Oq + i))
    a("v_cmp_u_f32 s[%d:%d], v%d, v%d" % (S_TMP + 4, S_TMP + 5, T2, T2))
    a("s_or_b64 vcc, vcc, s[%d:%d]" % (S_TMP + 4, S_TMP + 5))
    a("s_cselect_b32 s%d, 1, 0" % S_TMP)
    a("s_andn2_b32 s%d, s%d, s%d" % (S_TMP, S_TMP, S_FB))
    a("s_cbranch_scc1 L2_fallback")
    a("s_barrier")
    a("s_lshl_b32 s%d, s%d, 13" % (S_TMP, S_G))
    a("v_lshlrev_b32 v%d, 4, v%d" % (T0, LANE))
    a("v_add_u32 v%d, s%d, v%d" % (T0, S_TMP, T0))
    a("s_cmp_eq_u32 s%d, 0" % S_KS)
    a("s_cbranch_scc1 L2_c0")
    for c in range(3):
        a("ds_write_b128 v%d, %s offset:%d" % (T0, vr(O[0] + 4 * c, 4), 1024 * c))
    a("ds_write_b32 v%d, v%d offset:%d" % (T0, O[0] + 12, 3072))
    for i in range(13):
        a("v_mov_b32 v%d, v%d" % (O[0] + i, O[1] + i))
    a("v_add_u32 v%d, 4096, v%d" % (T0, T0))
    a("s_add_u32 s%d, s%d, 1" % (S_T, S_T))
    a("s_branch L2_c1")
    a("L2_c0:")
    for c in range(3):
        a("ds_write_b128 v%d, %s offset:%d" % (T0, vr(O[1] + 4 * c, 4), 4096 + 1024 * c))
    a("ds_write_b32 v%d, v%d offset:%d" % (T0, O[1] + 12, 4096 + 3072))
    a("L2_c1:")
    wl(0)
    a("s_barrier")
    Oq = O[0]
    for c in range(3):
        a("ds_read_b128 %s, v%d offset:%d" % (vr(SA + 4 * c, 4), T0, 1024 * c))
    a("ds_read_b32 v%d, v%d offset:%d" % (SA + 12, T0, 3072))
    A = AKA
    a("v_bfe_u32 v%d, v%d, 3, 1" % (A, LANE))
    a("v_mul_u32_u24 v%d, 20480, v%d" % (A, A))
    a("v_bfe_u32 v%d, v%d, 4, 1" % (T1, LANE))
    a("v_lshl_add_u32 v%d, v%d, 7, v%d" % (A, T1, A))
    a("v_and_b32 v%d, 7, v%d" % (T1, LANE))
    a("v_lshl_add_u32 v%d, v%d, 4, v%d" % (A, T1, A))
    a("s_mul_i32 s%d, s%d, 5" % (S_TMP, S_H))
    a("v_lshrrev_b32 v%d, 5, v%d" % (T1, LANE))
    a("v_add_u32 v%d, s%d, v%d" % (T1, S_TMP, T1))
    a("v_lshrrev_b32 v%d, 1, v%d" % (T2, T1))
    a("v_lshl_add_u32 v%d, v%d, 8, v%d" % (A, T2, A))
    a("v_and_b32 v%d, 1, v%d" % (T1, T1))
    a("v_lshl_add_u32 v%d, v%d, 3, v%d" % (A, T1, A))
    a("s_mul_i32 s%d, s%d, 40960" % (S_TMP, S_T))
    a("s_add_u32 s%d, s%d, 0x%x" % (S_TMP, S_TMP, WS_O))
    wl(0)
    a("v_max_f32 v%d, v%d, v%d" % (T1, Oq + 12, SA + 12))
    a("v_sub_f32 v%d, v%d, v%d" % (T2, Oq + 12, T1))
    a("v_sub_f32 v%d, v%d, v%d" % (T3, SA + 12, T1))
    a("v_exp_f32 v%d, v%d" % (T2, T2))
    a("v_exp_f32 v%d, v%d" % (T3, T3))
    a("s_nop 0")
    a("v_add_f32 v%d, v%d, v%d" % (SB, T2, T3))
    a("v_rcp_f32 v%d, v%d" % (SB + 1, SB))
    a("s_nop 0")
    a("v_mul_f32 v%d, v%d, v%d" % (T2, T2, SB + 1))
    a("v_mul_f32 v%d, v%d, v%d" % (T3, T3, SB + 1))
    for i in range(12):
        a("v_mul_f32 v%d, v%d, v%d" % (Oq + i, Oq + i, T2))
    for i in range(12):
        a("v_fmac_f32 v%d, v%d, v%d" % (Oq + i, SA + i, T3))
    for i in range(6):
        a("v_cvt_pk_bf16_f32 v%d, v%d, v%d" % (SB + i, Oq + 2 * i, Oq + 2 * i + 1))
    a("buffer_store_dwordx2 %s, v%d, %s, s%d offen" % (vr(SB, 2), A, sr(S_Q, 4), S_TMP))
    a("buffer_store_dwordx2 %s, v%d, %s, s%d offen offset:256" % (vr(SB + 2, 2), A, sr(S_Q, 4), S_TMP))
    a("s_mov_b32 exec_hi, 0")
    a("buffer_store_dwordx2 %s, v%d, %s, s%d offen offset:512" % (vr(SB + 4, 2), A, sr(S_Q, 4), S_TMP))
    a("L2_end:")
    a("s_endpgm")
    a("L2_fallback:")
    gka = lambda: a("buffer_load_dwordx4 %s, v%d, %s, 0 offen" % (vr(KA, 4), AKA, sr(S_KV, 4)))
    gkb = lambda: a("buffer_load_dword v%d, v%d, %s, 0 offen offset:1024" % (KB, AKB, sr(S_KV, 4)))
    def back(regs):
        for x in regs:
            a("v_subrev_u32 v%d, %d, v%d" % (x, NT * 2560, x))
    back([AKA, AKB, AV])
    for q in range(QBW):
        a("v_mov_b32 v%d, 0" % (QB[q] + 1))
        a("v_mov_b32 v%d, 0xff800000" % M[q])
    a("s_mov_b32 s%d, 0" % S_IT)
    wl(0)
    a("L2_fb1:")
    gka(); gkb()
    a("s_waitcnt vmcnt(0)")
    for q in range(QBW):
        qk1(SS[q], q); qk2(SS[q], q)
    a("v_add_u32 v%d, 2560, v%d" % (AKA, AKA))
    a("v_add_u32 v%d, 2560, v%d" % (AKB, AKB))
    a("s_nop 15")
    for q in range(QBW):
        rowmax(M[q], SS[q], False)
    a("s_add_u32 s%d, s%d, 1" % (S_IT, S_IT))
    a("s_cmp_lt_u32 s%d, %d" % (S_IT, NT))
    a("s_cbranch_scc1 L2_fb1")
    for q in range(QBW):
        xhalf_max(M[q])
        for i in range(16):
            a("v_mov_b32 v%d, 0" % (O[q] + i))
    back([AKA, AKB])
    a("s_mov_b32 s%d, 0" % S_IT)
    a("L2_fb2:")
    gka(); gkb(); mon()
    a("buffer_load_dwordx4 %s, v%d, %s, 0 offen offset:1280" % (vr(V0, 4), AV, sr(S_KV, 4)))
    a("buffer_load_dwordx4 %s, v%d, %s, 0 offen offset:1920" % (vr(V1, 4), AV, sr(S_KV, 4)))
    moff()
    a("s_waitcnt vmcnt(0)")
    for q in range(QBW):
        qk1(SA, q); qk2(SA, q)
        a("s_nop 15")
        for i in range(16):
            a("v_sub_f32 v%d, v%d, v%d" % (SA + i, SA + i, M[q]))
        for i in range(16):
            a("v_exp_f32 v%d, v%d" % (SA + i, SA + i))
        a("s_nop 0")
        for i in range(8):
            a("v_cvt_pk_bf16_f32 v%d, v%d, v%d" % (P0 + i, SA + 2 * i, SA + 2 * i + 1))
        a("s_nop 1")
        pv0(q); pv1(q)
    a("v_add_u32 v%d, 2560, v%d" % (AKA, AKA))
    a("v_add_u32 v%d, 2560, v%d" % (AKB, AKB))
    a("v_add_u32 v%d, 2560, v%d" % (AV, AV))
    a("s_add_u32 s%d, s%d, 1" % (S_IT, S_IT))
    a("s_cmp_lt_u32 s%d, %d" % (S_IT, NT))
    a("s_cbranch_scc1 L2_fb2")
    a("s_mov_b32 s%d, 1" % S_FB)
    a("s_branch L2_epi")

    a("L2_helper:")
    VL = 1
    a("v_mov_b32 v0, v%d" % LANE)
    LANE = 0
    a("s_load_dwordx4 s[56:59], s[0:1], %d" % KA_WG)
    a("s_load_dwordx2 s[60:61], s[0:1], %d" % KA_WD)
    a("s_load_dwordx2 s[62:63], s[0:1], %d" % KA_X)
    a("v_lshlrev_b32 v%d, 4, v%d" % (VL, LANE))
    a("s_lshr_b32 s%d, s%d, 1" % (S_TMP + 2, S_W))
    a("s_mul_i32 s%d, s%d, 81920" % (S_TMP + 2, S_TMP + 2))
    a("s_and_b32 s%d, s%d, 1" % (S_TMP + 3, S_W))
    a("s_lshl_b32 s%d, s%d, 12" % (S_TMP + 3, S_TMP + 3))
    a("s_add_u32 s%d, s%d, s%d" % (S_TMP + 2, S_TMP + 2, S_TMP + 3))
    a("s_mov_b32 m0, s%d" % (S_TMP + 2))
    a("s_mov_b32 s%d, 0" % S_IT)
    a("s_waitcnt lgkmcnt(0)")
    a("s_add_u32 s%d, s4, s%d" % (S_KV, S_TMP + 1))
    a("s_addc_u32 s%d, s5, 0" % (S_KV + 1))
    a("L2_hld:")
    for j in range(4):
        a("buffer_load_dwordx4 v%d, %s, s%d offen offset:%d lds" % (VL, sr(S_KV, 4), S_TMP + 2, 1024 * j))
    a("s_add_u32 s%d, s%d, 8192" % (S_TMP + 2, S_TMP + 2))
    a("s_add_u32 s%d, s%d, 1" % (S_IT, S_IT))
    a("s_mov_b32 m0, s%d" % (S_TMP + 2))
    a("s_cmp_lg_u32 s%d, %d" % (S_IT, K2_K0))
    a("s_cbranch_scc1 L2_hnb")
    a("s_waitcnt vmcnt(%d)" % (4 * (K2_K0 - 2)))
    a("s_barrier")
    a("L2_hnb:")
    a("s_cmp_lt_u32 s%d, 10" % S_IT)
    a("s_cbranch_scc1 L2_hld")
    srd(a, S_Q, 4, 5, WS_END)
    a("s_add_u32 s36, s4, 0x%x" % WS_SEL)
    a("s_addc_u32 s37, s5, 0")
    a("s_lshr_b32 s%d, s2, 3" % S_G)
    a("s_and_b32 s%d, s2, 7" % S_KS)
    if DIAG:
        a("s_memtime s[52:53]")
    a("s_waitcnt vmcnt(0)")
    if DIAG:
        a("s_memtime s[44:45]")
    a("s_barrier")
    a("s_setprio %s" % os.environ.get("K2_HPRIO", "0"))
    a("s_and_b32 s%d, s%d, 3" % (S_TMP, S_G))
    a("s_cmp_lg_u32 s%d, s%d" % (S_TMP, S_W))
    a("s_cbranch_scc1 L2_hwarm")
    a("s_cmp_ge_u32 s2, %s" % os.environ.get("K2_MOE", "192"))
    a("s_cbranch_scc1 L2_hend")
    XS, AF, D, U, H = 4, 84, 104, 108, 112
    TA, TB, TC, TR = 2, 3, 114, 115
    S_GT, S_UP, S_DN = 64, 68, 72
    a("s_mul_i32 s%d, s%d, 24" % (S_FB, S_KS))
    a("s_add_u32 s%d, s%d, s%d" % (S_FB, S_FB, S_G))
    srd(a, S_GT, 56, 57, 1966080)
    srd(a, S_UP, 58, 59, 1966080)
    srd(a, S_DN, 60, 61, 1966080)
    a("v_and_b32 v%d, 7, v%d" % (TA, LANE))
    a("v_lshlrev_b32 v%d, 2, v%d" % (TA, TA))
    a("s_mov_b32 s%d, 0x%x" % (S_TMP, WS_SEL))
    a("buffer_load_dword v%d, v%d, %s, s%d offen" % (TA, TA, sr(S_Q, 4), S_TMP))
    a("v_mul_u32_u24 v%d, 3072, v%d" % (TB, LANE))
    a("s_lshl_b32 s%d, s%d, 4" % (S_TMP + 1, S_FB))
    a("s_and_b32 s%d, s%d, 7" % (S_TMP + 2, S_G))
    a("s_mov_b32 s%d, 10" % S_IT)
    a("L2_hgu:")
    a("s_mul_i32 s%d, s%d, %d" % (S_TMP + 3, S_TMP + 2, 64 * 3072))
    a("s_add_u32 s%d, s%d, s%d" % (S_TMP + 3, S_TMP + 3, S_TMP + 1))
    a("s_lshl_b32 s%d, s%d, 10" % (S_TMP + 4, S_TMP + 2))
    a("s_mov_b32 m0, s%d" % (S_TMP + 4))
    a("s_add_u32 s%d, s%d, 81920" % (S_TMP + 4, S_TMP + 4))
    a("buffer_load_dwordx4 v%d, %s, s%d offen lds" % (TB, sr(S_GT, 4), S_TMP + 3))
    a("s_mov_b32 m0, s%d" % (S_TMP + 4))
    a("s_add_u32 s%d, s%d, 1" % (S_TMP + 2, S_TMP + 2))
    a("buffer_load_dwordx4 v%d, %s, s%d offen lds" % (TB, sr(S_UP, 4), S_TMP + 3))
    a("s_cmp_eq_u32 s%d, 10" % (S_TMP + 2))
    a("s_cselect_b32 s%d, 0, s%d" % (S_TMP + 2, S_TMP + 2))
    a("s_sub_u32 s%d, s%d, 1" % (S_IT, S_IT))
    a("s_cmp_lg_u32 s%d, 0" % S_IT)
    a("s_cbranch_scc1 L2_hgu")
    a("v_lshrrev_b32 v%d, 4, v%d" % (TC, LANE))
    a("s_waitcnt vmcnt(20)")
    a("v_mul_u32_u24 v%d, 1280, v%d" % (TA, TA))
    a("v_lshl_add_u32 v%d, v%d, 4, v%d" % (TA, TC, TA))
    a("s_mov_b32 s%d, 0x%x" % (S_TMP, WS_XN))
    for j in range(20):
        a("buffer_load_dwordx4 %s, v%d, %s, s%d offen offset:%d" % (vr(XS + 4 * j, 4), TA, sr(S_Q, 4), S_TMP, 64 * j))
    a("v_bfe_u32 v%d, v%d, 2, 2" % (TB, LANE))
    a("v_lshl_add_u32 v%d, v%d, 3, v%d" % (TR, TC, TB))
    a("v_lshlrev_b32 v%d, 4, v%d" % (TR, TR))
    a("v_and_b32 v%d, 1, v%d" % (TA, LANE))
    a("v_lshl_add_u32 v%d, v%d, 3, v%d" % (TR, TA, TR))
    a("v_bfe_u32 v%d, v%d, 1, 1" % (TA, LANE))
    a("v_mul_u32_u24 v%d, 81920, v%d" % (TA, TA))
    a("v_add_u32 v%d, v%d, v%d" % (TR, TR, TA))
    a("s_waitcnt vmcnt(0)")
    for c in range(4):
        for j in range(5):
            for h in range(2):
                a("ds_read_b64_tr_b16 %s, v%d offset:%d" % (vr(AF + 4 * j + 2 * h, 2), TR, 512 * (5 * c + j) + 64 * h))
        wl(0)
        for j in range(5):
            a("v_mfma_f32_16x16x32_bf16 %s, %s, %s, %s" % (vr(D, 4), vr(AF + 4 * j, 4), vr(XS + 4 * (5 * c + j), 4), "0" if c + j == 0 else vr(D, 4)))
    a("s_mul_i32 s%d, s%d, 10240" % (S_TMP + 3, S_FB))
    for j in range(10):
        if j % 4 == 0:
            a("s_mov_b32 m0, %d" % (1024 * j))
            if j:
                a("s_add_u32 s%d, s%d, 4096" % (S_TMP + 3, S_TMP + 3))
            else:
                a("s_nop 0")
        a("buffer_load_dwordx4 v%d, %s, s%d offen offset:%d lds" % (VL, sr(S_DN, 4), S_TMP + 3, 1024 * (j % 4)))
    for e in range(4):
        bf16_round(a, D + e, D + e)
    for e in range(4):
        a("v_mov_b32 v%d, v%d" % (U + e, D + e))
    a("s_nop 0")
    for e in range(4):
        a("v_permlane32_swap_b32 v%d, v%d" % (D + e, U + e))
    E = XS
    for e in range(4):
        a("v_mul_f32 v%d, 0xbfb8aa3b, v%d" % (E + e, D + e))
    for e in range(4):
        a("v_exp_f32 v%d, v%d" % (E + e, E + e))
    for e in range(4):
        a("v_add_f32 v%d, 1.0, v%d" % (E + e, E + e))
    for e in range(4):
        a("v_rcp_f32 v%d, v%d" % (E + e, E + e))
    for e in range(4):
        a("v_mul_f32 v%d, v%d, v%d" % (D + e, D + e, E + e))
    for e in range(4):
        bf16_round(a, D + e, D + e)
    for e in range(4):
        a("v_mul_f32 v%d, v%d, v%d" % (D + e, D + e, U + e))
    a("v_cvt_pk_bf16_f32 v%d, v%d, v%d" % (H, D, D + 1))
    a("v_cvt_pk_bf16_f32 v%d, v%d, v%d" % (H + 1, D + 2, D + 3))
    a("s_mov_b32 exec_lo, 0")
    a("v_mov_b32 v%d, 0" % H)
    a("v_mov_b32 v%d, 0" % (H + 1))
    a("s_mov_b64 exec, -1")
    a("v_and_b32 v%d, 1, v%d" % (TA, TC))
    a("v_lshl_add_u32 v%d, v%d, 2, v%d" % (TR, TA, TB))
    a("v_mul_u32_u24 v%d, 1280, v%d" % (TR, TR))
    a("v_and_b32 v%d, 3, v%d" % (TA, LANE))
    a("v_lshl_add_u32 v%d, v%d, 3, v%d" % (TR, TA, TR))
    a("v_mul_u32_u24 v%d, 10240, v%d" % (TB, TC))
    a("v_and_b32 v%d, 15, v%d" % (TA, LANE))
    a("v_lshl_add_u32 v%d, v%d, 2, v%d" % (TB, TA, TB))
    for e in range(4):
        a("s_mov_b32 s%d, 0x%x" % (S_TMP + e, WS_UPD + 2560 * e))
    a("s_mov_b32 s%d, 5" % S_IT)
    a("s_waitcnt vmcnt(0)")
    Y = 8
    a("L2_hdn:")
    for j in range(8):
        a("ds_read_b64_tr_b16 %s, v%d offset:%d" % (vr(AF + 2 * j, 2), TR, 32 * j))
    wl(0)
    for j in range(8):
        a("v_mfma_f32_16x16x16_bf16 %s, %s, %s, 0" % (vr(Y + 4 * j, 4), vr(H, 2), vr(AF + 2 * j, 2)))
    a("v_add_u32 v%d, 256, v%d" % (TR, TR))
    a("s_mov_b32 exec_hi, 0")
    for j in range(8):
        for e in range(4):
            a("buffer_atomic_add_f32 v%d, v%d, %s, s%d offen offset:%d" % (Y + 4 * j + e, TB, sr(S_Q, 4), S_TMP + e, 64 * j))
    a("s_mov_b64 exec, -1")
    a("v_add_u32 v%d, 512, v%d" % (TB, TB))
    a("s_sub_u32 s%d, s%d, 1" % (S_IT, S_IT))
    a("s_cmp_lg_u32 s%d, 0" % S_IT)
    a("s_cbranch_scc1 L2_hdn")
    a("s_branch L2_hend")
    a("L2_hwarm:")
    if os.environ.get("K2_WARM", "1") == "1":
        a("s_add_u32 s%d, s%d, 1" % (S_TMP, S_TMP))
        a("s_and_b32 s%d, s%d, 3" % (S_TMP, S_TMP))
        a("s_cmp_lg_u32 s%d, s%d" % (S_TMP, S_W))
        a("s_cbranch_scc1 L2_hend")
        a("v_lshlrev_b32 v2, 7, v%d" % LANE)
        a("s_and_b32 s%d, s%d, 1" % (S_TMP, S_KS))
        a("s_mul_i32 s%d, s%d, 409600" % (S_TMP + 1, S_TMP))
        a("s_mul_i32 s%d, s%d, 12800" % (S_TMP + 2, S_G))
        a("s_add_u32 s%d, s%d, s%d" % (S_TMP + 1, S_TMP + 1, S_TMP + 2))
        a("s_add_u32 s%d, s%d, 0x%x" % (S_TMP + 1, S_TMP + 1, WS_WOT))
        a("s_add_u32 s%d, s%d, 4608" % (S_TMP + 2, S_TMP + 1))
        a("buffer_load_dword v4, v2, %s, s%d offen" % (sr(S_Q, 4), S_TMP + 1))
        a("buffer_load_dword v4, v2, %s, s%d offen" % (sr(S_Q, 4), S_TMP + 2))
        a("v_lshrrev_b32 v2, 3, v%d" % LANE)
        a("v_mul_u32_u24 v2, 1280, v2")
        a("v_and_b32 v3, 7, v%d" % LANE)
        a("v_min_u32 v3, 4, v3")
        a("v_lshl_add_u32 v2, v3, 7, v2")
        a("s_mul_i32 s%d, s%d, 640" % (S_TMP + 1, S_TMP))
        a("s_lshr_b32 s%d, s%d, 1" % (S_TMP + 2, S_KS))
        a("s_mul_i32 s%d, s%d, 655360" % (S_TMP + 2, S_TMP + 2))
        a("s_add_u32 s%d, s%d, s%d" % (S_TMP + 1, S_TMP + 1, S_TMP + 2))
        a("s_mul_i32 s%d, s%d, 20480" % (S_TMP + 2, S_G))
        a("s_add_u32 s%d, s%d, s%d" % (S_TMP + 1, S_TMP + 1, S_TMP + 2))
        a("s_add_u32 s%d, s%d, 10240" % (S_TMP + 2, S_TMP + 1))
        a("s_add_u32 s%d, s%d, 0x%x" % (S_TMP + 3, S_TMP + 1, WS_XN))
        a("s_add_u32 s%d, s%d, 0x%x" % (S_TMP + 4, S_TMP + 2, WS_XN))
        srd(a, 64, 62, 63, 2621440)
        a("buffer_load_dword v4, v2, s[64:67], s%d offen" % (S_TMP + 1))
        a("buffer_load_dword v4, v2, s[64:67], s%d offen" % (S_TMP + 2))
        a("buffer_load_dword v4, v2, %s, s%d offen" % (sr(S_Q, 4), S_TMP + 3))
        a("buffer_load_dword v4, v2, %s, s%d offen" % (sr(S_Q, 4), S_TMP + 4))
        code_prefetch(a, 64, 2, 4, "L2_code_end", "L_code_end", vlane="v%d" % LANE, nmax=1)
    a("L2_hend:")
    diag(4, 8)
    a("s_endpgm")
    a("L2_code_end:")
    return kernel_desc(name, max(NV, 116), 80)
```

```python
from common import *
import os
DIAG = os.environ.get("DIAG")
K3_LDS = 61440

def gen_k3(a, name="oproj_kernel"):
    ACC = 4
    X = 84
    XN = 94
    U = 104
    XF = 124
    R = 144
    LANE, VL16, VX, VU, T0, T1, VW, VR = 204, 205, 206, 207, 208, 209, 210, 211
    SG = 212
    NV = 216
    AO = lambda j, ks: (ks * 9 + j) * 4
    AW = lambda t, ks: (ks * 9 + 4 + t) * 4
    ar = lambda b: "a[%d:%d]" % (b, b + 3)
    S_WS, S_X, S_OUT = 8, 12, 16
    S_SEL = 24
    S_RB, S_CB, S_W = 32, 33, 34
    S_O = 36
    S_WT = 40
    S_T = 42
    def stamp(i):
        if DIAG:
            a("s_memtime s[%d:%d]" % (60 + 2 * i, 61 + 2 * i))
    kernel_begin(a, name)
    a("s_cmp_ge_u32 s2, 256")
    a("s_cbranch_scc1 L3_end")
    a("s_load_dwordx2 s[4:5], s[0:1], %d" % KA_WS)
    a("s_load_dwordx2 s[6:7], s[0:1], %d" % KA_X)
    a("s_load_dwordx2 s[20:21], s[0:1], %d" % KA_OUT)
    if DIAG:
        a("s_memtime s[50:51]")
        a("s_memrealtime s[52:53]")
    a("v_lshrrev_b32 v%d, 6, v0" % T0)
    a("v_and_b32 v%d, 63, v0" % LANE)
    a("s_bfe_u32 s%d, s2, 0x20001" % S_RB)
    a("v_readfirstlane_b32 s%d, v%d" % (S_W, T0))
    a("s_lshl_b32 s%d, s%d, 3" % (S_RB, S_RB))
    a("s_lshr_b32 s%d, s2, 5" % S_T)
    a("s_add_u32 s%d, s%d, s%d" % (S_RB, S_RB, S_T))
    a("s_and_b32 s%d, s2, 1" % S_CB)
    a("s_lshl_b32 s%d, s%d, 2" % (S_CB, S_CB))
    a("s_bfe_u32 s%d, s2, 0x20003" % S_T)
    a("s_add_u32 s%d, s%d, s%d" % (S_CB, S_CB, S_T))
    a("v_lshlrev_b32 v%d, 4, v%d" % (VL16, LANE))
    a("s_mul_i32 s%d, s%d, 81920" % (S_T, S_RB))
    a("s_mul_i32 s%d, s%d, 5120" % (S_T + 1, S_W))
    a("s_add_u32 s%d, s%d, s%d" % (S_T, S_T, S_T + 1))
    a("s_add_u32 s%d, s%d, 0x%x" % (S_T, S_T, WS_O))
    for j in range(4):
        a("s_add_u32 s%d, s%d, %d" % (S_T + 1, S_W, j))
        a("s_and_b32 s%d, s%d, 3" % (S_T + 1, S_T + 1))
        a("s_mul_i32 s%d, s%d, 20480" % (S_T + 1, S_T + 1))
        a("s_add_u32 s%d, s%d, s%d" % (S_O + j, S_T, S_T + 1))
    a("s_mul_i32 s%d, s%d, 102400" % (S_WT, S_CB))
    a("s_mul_i32 s%d, s%d, 25600" % (S_T + 1, S_W))
    a("s_add_u32 s%d, s%d, s%d" % (S_WT, S_WT, S_T + 1))
    a("s_add_u32 s%d, s%d, 0x%x" % (S_WT, S_WT, WS_WOT))
    a("s_lshl_b32 s%d, s%d, 6" % (S_T, S_RB))
    a("s_lshl_b32 s%d, s%d, 4" % (S_T + 1, S_W))
    a("s_add_u32 s%d, s%d, s%d" % (S_T, S_T, S_T + 1))
    a("v_and_b32 v%d, 15, v%d" % (T0, LANE))
    a("v_add_u32 v%d, s%d, v%d" % (T0, S_T, T0))
    a("v_mul_u32_u24 v%d, 1280, v%d" % (VX, T0))
    a("v_lshrrev_b32 v%d, 4, v%d" % (T1, LANE))
    a("v_mul_u32_u24 v%d, 40, v%d" % (T1, T1))
    a("s_mul_i32 s%d, s%d, 160" % (S_T, S_CB))
    a("v_add_u32 v%d, s%d, v%d" % (T1, S_T, T1))
    a("v_add_u32 v%d, v%d, v%d" % (VX, VX, T1))
    a("s_waitcnt lgkmcnt(0)")
    stamp(0)
    a("s_add_u32 s22, s4, 0x%x" % WS_SEL)
    a("s_addc_u32 s23, s5, 0")
    a("s_load_dwordx8 %s, s[22:23], 0" % sr(S_SEL, 8))
    a("s_load_dwordx8 s[80:87], s[22:23], 32")
    srd(a, S_WS, 4, 5, WS_END)
    srd(a, S_X, 6, 7, 2621440)
    srd(a, S_OUT, 20, 21, 2621440)
    a("s_mov_b32 s%d, 0x%x" % (S_T, WS_XN))
    a("buffer_load_dwordx4 %s, v%d, %s, s%d offen" % (vr(XN, 4), VX, sr(S_WS, 4), S_T))
    a("buffer_load_dwordx4 %s, v%d, %s, s%d offen offset:16" % (vr(XN + 4, 4), VX, sr(S_WS, 4), S_T))
    a("buffer_load_dwordx2 %s, v%d, %s, s%d offen offset:32" % (vr(XN + 8, 2), VX, sr(S_WS, 4), S_T))
    a("buffer_load_dwordx4 %s, v%d, %s, 0 offen" % (vr(X, 4), VX, sr(S_X, 4)))
    a("buffer_load_dwordx4 %s, v%d, %s, 0 offen offset:16" % (vr(X + 4, 4), VX, sr(S_X, 4)))
    a("buffer_load_dwordx2 %s, v%d, %s, 0 offen offset:32" % (vr(X + 8, 2), VX, sr(S_X, 4)))
    def frag_loads(ks):
        for j in range(4):
            if ks < 4:
                a("buffer_load_dwordx4 %s, v%d, %s, s%d offen offset:%d" % (ar(AO(j, ks)), VL16, sr(S_WS, 4), S_O + j, 1024 * ks))
            else:
                a("s_add_u32 s%d, s%d, 4096" % (S_O + j, S_O + j))
                a("buffer_load_dwordx4 %s, v%d, %s, s%d offen" % (ar(AO(j, ks)), VL16, sr(S_WS, 4), S_O + j))
        for t in range(5):
            n = ks * 5 + t
            if n and n % 4 == 0:
                a("s_add_u32 s%d, s%d, 4096" % (S_WT, S_WT))
            a("buffer_load_dwordx4 %s, v%d, %s, s%d offen offset:%d" % (ar(AW(t, ks)), VL16, sr(S_WS, 4), S_WT, 1024 * (n % 4)))
    frag_loads(0)
    frag_loads(1)
    a("s_waitcnt lgkmcnt(0)")
    a("v_mov_b32 v%d, 0x7f000000" % VU)
    a("v_mov_b32 v%d, 0" % SG)
    for s in range(8):
        a("v_cmp_eq_u32 vcc, s%d, v%d" % (S_SEL + s, T0))
        a("v_mov_b32 v%d, %d" % (VW, 2560 * s))
        a("v_mov_b32 v%d, s%d" % (VR, 80 + s))
        a("v_cndmask_b32 v%d, v%d, v%d, vcc" % (VU, VU, VW))
        a("v_cndmask_b32 v%d, v%d, v%d, vcc" % (SG, SG, VR))
    a("v_lshl_add_u32 v%d, v%d, 1, v%d" % (VU, T1, VU))
    a("s_mov_b32 s%d, 0x%x" % (S_T, WS_UPD))
    for c in range(5):
        a("buffer_load_dwordx4 %s, v%d, %s, s%d offen offset:%d" % (vr(U + 4 * c, 4), VU, sr(S_WS, 4), S_T, 16 * c))
    frag_loads(2)
    frag_loads(3)
    frag_loads(4)
    a("s_mul_i32 s%d, s%d, 15360" % (S_T, S_W))
    a("v_add_u32 v%d, s%d, v%d" % (VR, S_T, VL16))
    def mfmas(ks):
        for j in range(4):
            for t in range(5):
                c = vr(ACC + (j * 5 + t) * 4, 4)
                a("v_mfma_f32_16x16x32_bf16 %s, %s, %s, %s" % (c, ar(AW(t, ks)), ar(AO(j, ks)), "0" if ks == 0 else c))
    stamp(1)
    a("s_waitcnt vmcnt(41)")
    stamp(2)
    mfmas(0)
    a("s_waitcnt vmcnt(32)")
    mfmas(1)
    a("s_waitcnt vmcnt(27)")
    stamp(3)
    for i in range(10):
        a("v_lshlrev_b32 v%d, 16, v%d" % (R + 2 * i, XN + i))
        a("v_and_b32 v%d, 0xffff0000, v%d" % (R + 2 * i + 1, XN + i))
        a("v_lshlrev_b32 v%d, 16, v%d" % (XF + 2 * i, X + i))
        a("v_and_b32 v%d, 0xffff0000, v%d" % (XF + 2 * i + 1, X + i))
    for i in range(20):
        a("v_fma_f32 v%d, v%d, v%d, v%d" % (U + i, U + i, SG, R + i))
    for i in range(20):
        a("v_mul_f32 v%d, 0xbfb8aa3b, v%d" % (R + i, U + i))
    for i in range(20):
        a("v_exp_f32 v%d, v%d" % (R + i, R + i))
    a("s_waitcnt vmcnt(18)")
    mfmas(2)
    for i in range(20):
        a("v_add_f32 v%d, 1.0, v%d" % (R + i, R + i))
    for i in range(20):
        a("v_rcp_f32 v%d, v%d" % (R + i, R + i))
    a("s_waitcnt vmcnt(9)")
    mfmas(3)
    for i in range(20):
        a("v_mul_f32 v%d, v%d, v%d" % (U + i, U + i, R + i))
    stamp(4)
    a("s_waitcnt vmcnt(0)")
    stamp(5)
    for j in (1, 2, 3, 0):
        for t in range(5):
            c = vr(ACC + (j * 5 + t) * 4, 4)
            a("v_mfma_f32_16x16x32_bf16 %s, %s, %s, %s" % (c, ar(AW(t, 4)), ar(AO(j, 4)), c))
    for j in (1, 2, 3):
        a("s_add_u32 s%d, s%d, %d" % (S_T, S_W, j))
        a("s_and_b32 s%d, s%d, 3" % (S_T, S_T))
        a("s_mul_i32 s%d, s%d, 15360" % (S_T, S_T))
        a("v_add_u32 v%d, s%d, v%d" % (VW, S_T, VL16))
        if j == 3:
            a("s_nop 1")
        for t in range(5):
            a("ds_write_b128 v%d, %s offset:%d" % (VW, vr(ACC + (j * 5 + t) * 4, 4), (j - 1) * 5120 + t * 1024))
    a("s_waitcnt lgkmcnt(0)")
    a("s_barrier")
    stamp(6)
    if DIAG: a("s_waitcnt lgkmcnt(0)")
    for n in range(15):
        a("ds_read_b128 %s, v%d offset:%d" % (vr(R + 4 * n, 4), VR, n * 1024))
    for src in range(3):
        a("s_waitcnt lgkmcnt(%d)" % (10 - 5 * src))
        for i in range(20):
            a("v_add_f32 v%d, v%d, v%d" % (ACC + i, ACC + i, R + 20 * src + i))
    for i in range(20):
        a("v_fmac_f32 v%d, v%d, v%d" % (XF + i, ACC + i, U + i))
    for i in range(10):
        a("v_cvt_pk_bf16_f32 v%d, v%d, v%d" % (X + i, XF + 2 * i, XF + 2 * i + 1))
    a("buffer_store_dwordx4 %s, v%d, %s, 0 offen" % (vr(X, 4), VX, sr(S_OUT, 4)))
    a("buffer_store_dwordx4 %s, v%d, %s, 0 offen offset:16" % (vr(X + 4, 4), VX, sr(S_OUT, 4)))
    a("buffer_store_dwordx2 %s, v%d, %s, 0 offen offset:32" % (vr(X + 8, 2), VX, sr(S_OUT, 4)))
    if DIAG:
        a("s_memtime s[54:55]")
        a("s_memrealtime s[56:57]")
        a("s_waitcnt lgkmcnt(0)")
        a("s_sub_u32 s54, s54, s50")
        a("s_sub_u32 s56, s56, s52")
        a("v_mov_b32 v4, s54")
        a("v_mov_b32 v5, s56")
        a("v_mov_b32 v6, s52")
        a("v_mov_b32 v7, 0")
        a("s_lshl_b32 s58, s2, 4")
        a("s_add_u32 s58, s58, s%d" % S_W)
        a("s_lshl_b32 s58, s58, 4")
        a("s_add_u32 s58, s58, 0x%x" % (WS_DIAG + 0x20000))
        a("buffer_store_dwordx4 v[4:7], v7, %s, s58 offen" % sr(S_WS, 4))
        for i in range(8):
            a("s_sub_u32 s%d, s%d, s50" % (60 + 2 * i, 60 + 2 * i))
            a("v_mov_b32 v%d, s%d" % (8 + i, 60 + 2 * i))
        a("s_lshl_b32 s58, s2, 4")
        a("s_add_u32 s58, s58, s%d" % S_W)
        a("s_lshl_b32 s58, s58, 5")
        a("s_add_u32 s58, s58, 0x%x" % (WS_DIAG + 0x40000))
        a("buffer_store_dwordx4 v[8:11], v7, %s, s58 offen" % sr(S_WS, 4))
        a("buffer_store_dwordx4 v[12:15], v7, %s, s58 offen offset:16" % sr(S_WS, 4))
    a("L3_end:")
    a("s_endpgm")
    return kernel_desc(name, NV + 180, 96, accum=NV)
```

```python
import sys
from common import *
from k2 import gen_k2, K2_NW

HEADER = open("cdna_kernels/%s.s.ref" % NAME).read().split("; Override launch")[0]

def build(which):
    a = Asm()
    launches = []
    descs = []
    if "1" in which:
        from k1 import gen_k1, K1_LDS
        launches.append("; @launch kernel=qkv_kernel grid=(256,1,1) block=(512,1,1) lds=%d" % K1_LDS)
        descs.append(gen_k1(a))
    if "2" in which:
        launches.append("; @launch kernel=attn_kernel grid=(256,1,1) block=(%d,1,1) lds=163840" % (64 * K2_NW))
        descs.append(gen_k2(a))
    if "3" in which:
        from k3 import gen_k3, K3_LDS
        launches.append("; @launch kernel=oproj_kernel grid=(256,1,1) block=(256,1,1) lds=%d" % K3_LDS)
        descs.append(gen_k3(a))
    a("L_code_end:")
    a("s_endpgm")
    out = HEADER + "\n".join(launches) + "\n" + '.amdgcn_target "amdgcn-amd-amdhsa--gfx950"\n' + a.text() + "".join(descs)
    return out

if __name__ == "__main__":
    which = sys.argv[1] if len(sys.argv) > 1 else "123"
    path = sys.argv[2] if len(sys.argv) > 2 else "cdna_kernels/%s.s" % NAME
    open(path, "w").write(build(which))
    print("wrote", path)
```

```python
from common import *
import os
DIAG = os.environ.get("DIAG")
SLOT = 16384 + 4 * 5152
NS = 4
L_ST = NS * SLOT
K1_LDS = L_ST + 1664
POLL_ST = int(os.environ.get('K1_POLL', '8'))
QSCALE = f2u(1.4426950408889634 * 20 ** -0.5)
SPIN_MAX = 1 << 16
QM = ' ' + os.environ.get('K1_QM', 'sc1')

S_X, S_W, S_WS, S_DBG = 8, 12, 16, 44
S_WV = 20

def gen_k1(a, name="qkv_kernel"):
    from k1s import gen_spare
    S_RB, S_CB, S_J = 21, 22, 23
    S_T = 24
    S_R4, S_C6 = 33, 34
    S_ST, S_DL, S_MASK, S_STATE = 36, 37, 38, 48
    def stamp(i):
        if DIAG:
            a("s_memtime s[%d:%d]" % (60 + 2 * i, 61 + 2 * i))
    def diag_out():
        if DIAG:
            a("s_memrealtime s[56:57]")
            a("s_waitcnt lgkmcnt(0)")
            a("s_sub_u32 s56, s56, s52")
            a("s_mov_b64 exec, -1")
            a("v_mov_b32 v3, 0")
            for i in range(6):
                a("s_sub_u32 s%d, s%d, s50" % (60 + 2 * i, 60 + 2 * i))
                a("v_mov_b32 v%d, s%d" % (4 + i, 60 + 2 * i))
            a("v_mov_b32 v10, s56")
            a("v_mov_b32 v11, s52")
            a("s_lshl_b32 s58, s2, 3")
            a("s_add_u32 s58, s58, s%d" % S_WV)
            a("s_lshl_b32 s58, s58, 5")
            a("s_add_u32 s58, s58, 0x%x" % (WS_DIAG + 0x60000))
            a("s_mov_b64 exec, 1")
            a("buffer_store_dwordx4 v[4:7], v3, %s, s58 offen" % sr(S_WS, 4))
            a("buffer_store_dwordx4 v[8:11], v3, %s, s58 offen offset:16" % sr(S_WS, 4))
    kernel_begin(a, name)
    a("s_cmp_ge_u32 s2, 256")
    a("s_cbranch_scc1 L1_end")
    a("s_load_dwordx4 s[4:7], s[0:1], 0")
    a("s_load_dwordx4 s[40:43], s[0:1], %d" % KA_DBG)
    if DIAG:
        a("s_memtime s[50:51]")
        a("s_memrealtime s[52:53]")
        for i in range(6):
            a("s_mov_b32 s%d, 0" % (60 + 2 * i))
    a("v_lshrrev_b32 v1, 6, v0")
    a("v_and_b32 v0, 63, v0")
    a("s_cmp_lt_u32 s2, 64")
    a("v_readfirstlane_b32 s%d, v1" % S_WV)
    a("s_cbranch_scc1 L1_spare")
    a("s_sub_u32 s%d, s2, 64" % S_T)
    a("s_lshr_b32 s%d, s%d, 3" % (S_J, S_T))
    a("s_mul_i32 s%d, s%d, 43" % (S_T + 2, S_J))
    a("s_lshr_b32 s%d, s%d, 8" % (S_T + 2, S_T + 2))
    a("s_mul_i32 s%d, s%d, 6" % (S_T + 3, S_T + 2))
    a("s_sub_u32 s%d, s%d, s%d" % (S_T + 3, S_J, S_T + 3))
    a("s_bfe_u32 s%d, s%d, 0x20001" % (S_RB, S_T))
    a("s_lshl_b32 s%d, s%d, 2" % (S_RB, S_RB))
    a("s_add_u32 s%d, s%d, s%d" % (S_RB, S_RB, S_T + 2))
    a("s_and_b32 s%d, s%d, 1" % (S_CB, S_T))
    a("s_mul_i32 s%d, s%d, 6" % (S_CB, S_CB))
    a("s_add_u32 s%d, s%d, s%d" % (S_CB, S_CB, S_T + 3))
    a("s_mov_b32 s%d, s%d" % (S_R4, S_T + 2))
    a("s_mov_b32 s%d, s%d" % (S_C6, S_T + 3))
    a("s_mov_b32 s39, %d" % SLOT)
    a("s_cmp_ge_u32 s%d, 4" % S_WV)
    a("s_cbranch_scc1 L1_compute")
    VX = [2, 3, 4, 5]; VW = [6, 7, 8, 9, 10]; T0, T1, T2 = 11, 12, 13
    S_LW, S_MX, S_MW, S_SX, S_SW = S_WV, 25, 26, 27, 28
    a("s_lshl_b32 s29, s%d, 7" % S_RB)
    a("s_lshl_b32 s30, s%d, 5" % S_LW)
    a("s_add_u32 s29, s29, s30")
    a("v_lshrrev_b32 v%d, 3, v0" % T0)
    a("v_add_u32 v%d, s29, v%d" % (T0, T0))
    a("v_mul_u32_u24 v%d, 1280, v%d" % (T0, T0))
    a("v_lshrrev_b32 v%d, 4, v0" % T1)
    a("v_and_b32 v%d, 2, v%d" % (T2, T1))
    a("v_lshlrev_b32 v%d, 1, v%d" % (T2, T2))
    a("v_xor_b32 v%d, v%d, v%d" % (T1, T1, T2))
    a("v_and_b32 v%d, 7, v0" % T2)
    a("v_xor_b32 v%d, v%d, v%d" % (T1, T1, T2))
    a("v_lshl_add_u32 v%d, v%d, 4, v%d" % (VX[0], T1, T0))
    a("v_xor_b32 v%d, 4, v%d" % (T1, T1))
    a("v_lshl_add_u32 v%d, v%d, 4, v%d" % (VX[1], T1, T0))
    a("v_add_u32 v%d, %d, v%d" % (VX[1], 8 * 1280 - 1024, VX[1]))
    a("v_add_u32 v%d, %d, v%d" % (VX[2], 16 * 1280 - 2048, VX[0]))
    a("v_add_u32 v%d, %d, v%d" % (VX[3], 16 * 1280 - 2048, VX[1]))
    a("s_mul_i32 s29, s%d, %d" % (S_LW, 16 * 3840))
    a("s_mul_i32 s30, s%d, 320" % S_CB)
    a("s_add_u32 s29, s29, s30")
    a("v_lshlrev_b32 v%d, 4, v0" % T0)
    a("v_add_u32 v%d, s29, v%d" % (T0, T0))
    a("v_mul_u32_u24 v%d, 3277, v0" % T1)
    a("s_movk_i32 s30, %d" % (3840 - 320))
    for i in range(5):
        a("v_add_u32 v%d, %d, v%d" % (T2, 64 * i * 3277, T1))
        a("v_lshrrev_b32 v%d, 16, v%d" % (T2, T2))
        a("v_mad_u32_u24 v%d, v%d, s30, v%d" % (VW[i], T2, T0))
    a("v_add_u32 v%d, 4096, v%d" % (VW[4], VW[4]))
    a("s_lshl_b32 s%d, s%d, 12" % (S_MX, S_LW))
    a("s_mul_i32 s%d, s%d, 5152" % (S_MW, S_LW))
    a("s_add_u32 s%d, s%d, 16384" % (S_MW, S_MW))
    if os.environ.get("K1_ROT", "1") == "1":
        a("s_lshl_b32 s29, s%d, 1" % S_C6)
        a("s_min_u32 s29, s29, 9")
        a("s_mul_i32 s30, s%d, 5" % S_R4)
        a("s_add_u32 s30, s30, 1")
        a("s_lshr_b32 s30, s30, 1")
        a("s_add_u32 s29, s29, s30")
        a("s_cmp_ge_u32 s29, 10")
        a("s_cselect_b32 s30, 10, 0")
        a("s_sub_u32 s29, s29, s30")
    else:
        a("s_mov_b32 s29, 0")
    a("s_lshl_b32 s%d, s29, 7" % S_SX)
    a("s_mul_i32 s%d, s29, %d" % (S_SW, 64 * 3840))
    VFL, VZ, VSA, VCA, ST0, ST1, ST2 = 14, 15, 16, 17, 20, 24, 28
    a("s_lshl_b32 s30, s%d, 12" % S_WV)
    a("v_mov_b32 v%d, s30" % VZ)
    a("s_waitcnt lgkmcnt(0)")
    srd(a, S_X, 4, 5, 2621440)
    srd(a, S_W, 6, 7, 2457600)
    def poll_issue(mode=""):
        a("s_mov_b64 exec, 1")
        a("buffer_load_dword v%d, v%d, %s, 0 offen %s" % (VFL, VZ, sr(S_DBG, 4), mode))
        a("s_mov_b64 exec, -1")
    stamp(0)
    def half(h):
        n = h // 2
        base = (n % NS) * SLOT
        if h % 2 == 0:
            a("s_add_u32 m0, s%d, %d" % (S_MX, base))
            a("s_nop 0")
            for i in range(4):
                a("buffer_load_dwordx4 v%d, %s, s%d offen offset:%d lds" % (VX[i], sr(S_X, 4), S_SX, 1024 * i))
            a("s_add_u32 s%d, s%d, 128" % (S_SX, S_SX))
            a("s_cmp_eq_u32 s%d, 1280" % S_SX)
            a("s_cselect_b32 s%d, 0, s%d" % (S_SX, S_SX))
            return 4
        a("s_add_u32 m0, s%d, %d" % (S_MW, base))
        a("s_nop 0")
        for i in range(4):
            a("buffer_load_dwordx4 v%d, %s, s%d offen offset:%d lds" % (VW[i], sr(S_W, 4), S_SW, 1024 * i))
        a("s_add_u32 m0, s%d, %d" % (S_MW, base + 4096))
        a("s_nop 0")
        a("buffer_load_dwordx4 v%d, %s, s%d offen lds" % (VW[4], sr(S_W, 4), S_SW))
        a("s_add_u32 s%d, s%d, %d" % (S_SW, S_SW, 64 * 3840))
        a("s_cmp_eq_u32 s%d, %d" % (S_SW, 640 * 3840))
        a("s_cselect_b32 s%d, 0, s%d" % (S_SW, S_SW))
        return 5
    AH = [int(x) for x in os.environ.get("K1_AHEAD", "1,1,1,2,2,2,2,2,2,2").split(",")]
    ops = []
    issued = 0
    for st in range(10):
        upto = min(20, 2 * st + 2 + AH[st])
        while issued < upto:
            ops.append((issued, half(issued)))
            if issued == 1:
                srd(a, S_WS, 42, 43, WS_END)
                srd(a, S_DBG, 40, 41, 256)
            if issued == 2 * POLL_ST + 1:
                poll_issue()
                ops.append((issued + 0.5, 1))
            issued += 1
        a("s_waitcnt vmcnt(%d)" % sum(c for h, c in ops if h > 2 * st + 1))
        if st == POLL_ST + 1:
            break
        a("s_barrier")
    assert issued == 20, "stat loads must follow the last staging load"
    left = 9 - st
    a("s_cmp_eq_u32 s%d, 0" % S_WV)
    a("s_cbranch_scc1 L1_ld_w0")
    def tail(extra):
        a("s_barrier")
        for s2 in range(st + 1, 10):
            a("s_waitcnt vmcnt(%d)" % (extra + sum(c for h, c in ops if h > 2 * s2 + 1)))
            a("s_barrier")
    tail(0)
    stamp(1)
    diag_out()
    a("s_endpgm")
    def stat_loads():
        a("buffer_load_dwordx4 %s, v%d, %s, 0 offen sc1" % (vr(ST0, 4), VSA, sr(S_WS, 4)))
        a("buffer_load_dwordx4 %s, v%d, %s, 0 offen sc1" % (vr(ST1, 4), VCA, sr(S_WS, 4)))
        a("buffer_load_dwordx4 %s, v%d, %s, s32 offen sc1" % (vr(ST2, 4), VCA, sr(S_WS, 4)))
    a("L1_ld_w0:")
    a("v_readfirstlane_b32 s31, v%d" % VFL)
    a("s_movk_i32 s32, 7680")
    a("v_and_b32 v%d, 31, v0" % VSA)
    a("v_lshlrev_b32 v%d, 4, v%d" % (VSA, VSA))
    a("v_lshrrev_b32 v%d, 5, v0" % VCA)
    a("v_lshl_add_u32 v%d, v%d, 13, v%d" % (VSA, VCA, VSA))
    a("s_lshl_b32 s29, s%d, 9" % S_RB)
    a("s_add_u32 s29, s29, 0x%x" % WS_STAT)
    a("v_add_u32 v%d, s29, v%d" % (VSA, VSA))
    a("s_mul_i32 s29, s%d, 640" % S_CB)
    a("s_add_u32 s29, s29, 0x%x" % WS_CS)
    a("v_min_u32 v%d, 39, v0" % VCA)
    a("v_lshlrev_b32 v%d, 4, v%d" % (VCA, VCA))
    a("v_add_u32 v%d, %d, v%d" % (T1, L_ST + 1024, VCA))
    a("v_add_u32 v%d, s29, v%d" % (VCA, VCA))
    a("v_lshlrev_b32 v%d, 4, v0" % T0)
    a("v_add_u32 v%d, %d, v%d" % (T0, L_ST, T0))
    a("s_cmp_lt_u32 s31, 64")
    a("s_cbranch_scc1 L1_ld_late")
    stat_loads()
    stamp(2)
    tail(3)
    a("s_barrier")
    a("L1_ld_fin:")
    a("s_waitcnt vmcnt(0)")
    a("ds_write_b128 v%d, %s" % (T0, vr(ST0, 4)))
    for i in range(4):
        a("v_add_f32 v%d, v%d, v%d" % (ST1 + i, ST1 + i, ST2 + i))
    a("ds_write_b128 v%d, %s" % (T1, vr(ST1, 4)))
    a("s_waitcnt lgkmcnt(0)")
    a("s_barrier")
    stamp(1)
    diag_out()
    a("s_endpgm")
    a("L1_ld_late:")
    poll_issue("offset:128")
    tail(1)
    a("s_barrier")
    a("s_mov_b32 s30, %d" % SPIN_MAX)
    a("L1_ld_spin:")
    a("s_waitcnt vmcnt(0)")
    a("v_readfirstlane_b32 s29, v%d" % VFL)
    a("s_cmp_ge_u32 s29, 64")
    a("s_cbranch_scc1 L1_ld_got")
    a("s_sleep 32")
    poll_issue("sc1")
    a("s_sub_u32 s30, s30, 1")
    a("s_cbranch_scc0 L1_ld_spin")
    a("L1_ld_got:")
    stat_loads()
    stamp(3)
    a("s_branch L1_ld_fin")
    a("L1_compute:")
    ACC = 4
    XF = [84, 120]
    WF = [100, 136]
    MR = 156
    C0 = 188
    AX = [208, 209]; AW = [210, 211]
    T0, T1, T2, T3 = 212, 213, 214, 215
    VSA, VCA, JUNK = 218, 219, 220
    NV = 224
    S_WM, S_WN = 24, 25
    acc = lambda mt, t: ACC + (mt * 5 + t) * 4
    a("s_bfe_u32 s%d, s%d, 0x10001" % (S_WM, S_WV))
    a("s_and_b32 s%d, s%d, 1" % (S_WN, S_WV))
    P2, P3 = 221, 222
    a("s_load_dwordx2 s[30:31], s[0:1], %d" % KA_OUT)
    a("v_lshlrev_b32 v%d, 21, v0" % P3)
    a("s_waitcnt lgkmcnt(0)")
    srd(a, S_WS, 42, 43, WS_END)
    a("s_cmp_lg_u32 s%d, 4" % S_WV)
    a("s_cbranch_scc1 L1_notouch0")
    if os.environ.get("K1_CPF", "1") == "1":
        code_prefetch(a, S_DBG, P2, JUNK, name, "L1_spare", nmax=1)
    a("buffer_load_dword v%d, v%d, %s, 0 offen" % (JUNK, P3, sr(S_WS, 4)))
    srd(a, S_DBG, 30, 31, 2621440)
    a("buffer_load_dword v%d, v%d, %s, 0 offen" % (JUNK, P3, sr(S_DBG, 4)))
    a("L1_notouch0:")
    a("v_and_b32 v%d, 15, v0" % T0)
    a("v_lshrrev_b32 v%d, 4, v0" % T1)
    a("v_lshrrev_b32 v%d, 1, v%d" % (T2, T0))
    a("v_and_b32 v%d, 2, v%d" % (T3, T2))
    a("v_lshlrev_b32 v%d, 1, v%d" % (T3, T3))
    a("v_xor_b32 v%d, v%d, v%d" % (T2, T2, T3))
    a("v_lshlrev_b32 v%d, 1, v%d" % (T3, T1))
    a("v_xor_b32 v%d, v%d, v%d" % (T2, T2, T3))
    a("v_lshlrev_b32 v%d, 7, v%d" % (T3, T0))
    a("v_lshl_add_u32 v%d, v%d, 4, v%d" % (AX[0], T2, T3))
    a("s_lshl_b32 s32, s%d, 13" % S_WM)
    a("v_add_u32 v%d, s32, v%d" % (AX[0], AX[0]))
    a("v_xor_b32 v%d, 16, v%d" % (AX[1], AX[0]))
    a("v_mul_u32_u24 v%d, 5152, v%d" % (T2, T1))
    a("v_lshrrev_b32 v%d, 2, v%d" % (T3, T0))
    a("v_mul_u32_u24 v%d, 320, v%d" % (T3, T3))
    a("v_add_u32 v%d, v%d, v%d" % (T2, T2, T3))
    a("v_and_b32 v%d, 3, v0" % T3)
    a("v_mul_u32_u24 v%d, 40, v%d" % (T3, T3))
    a("v_add_u32 v%d, v%d, v%d" % (T2, T2, T3))
    a("s_mul_i32 s32, s%d, 160" % S_WN)
    a("s_add_u32 s32, s32, 16384")
    a("v_add_u32 v%d, s32, v%d" % (AW[0], T2))
    for i in range(80):
        a("v_mov_b32 v%d, 0" % (ACC + i))
    a("s_mov_b32 s%d, 0" % S_ST)
    a("s_lshl_b32 s26, s%d, 8" % S_WM)
    a("s_add_u32 s26, s26, %d" % L_ST)
    a("s_mul_i32 s27, s%d, 320" % S_WN)
    a("s_add_u32 s27, s27, %d" % (L_ST + 1024))
    def reads(b):
        L = []
        for t in range(5):
            for h in range(2):
                L.append("ds_read_b64_tr_b16 %s, v%d offset:%d" % (vr(WF[b] + 4 * t + 2 * h, 2), AW[0], 2560 * b + 1280 * h + 8 * t))
        X = ["ds_read_b128 %s, v%d offset:%d" % (vr(XF[b] + 4 * mt, 4), AX[b], 2048 * mt) for mt in range(4)]
        return [X[0]] + L + X[1:]
    def stat_reads(vt):
        if vt == 0:
            for mt in range(4):
                a("ds_read2st64_b32 %s, v%d offset0:0 offset1:2" % (vr(MR + 2 * mt, 2), VSA))
                if mt < 3:
                    a("v_add_u32 v%d, 64, v%d" % (VSA, VSA))
            for t in range(5):
                a("ds_read_b128 %s, v%d offset:%d" % (vr(C0 + 4 * t, 4), VCA, 16 * t))
        else:
            for mt in range(4):
                a("ds_read_b128 %s, v%d offset:%d" % (vr(MR + 8 * mt, 4), VSA, 64 * mt))
                a("ds_read_b128 %s, v%d offset:%d" % (vr(MR + 8 * mt + 4, 4), VSA, 512 + 64 * mt))
            for t in range(5):
                a("ds_read_b32 v%d, v%d offset:%d" % (C0 + t, VCA, 16 * t))
    a("s_cmp_ge_u32 s%d, 8" % S_CB)
    a("s_cbranch_scc1 L1_preV")
    for vt in (0, 1):
        sfx = "V" if vt else "Q"
        a("L1_pre%s:" % sfx)
        if vt == 0:
            a("v_lshl_add_u32 v%d, v%d, 2, s26" % (VSA, T0))
            a("v_mul_u32_u24 v%d, 80, v%d" % (VCA, T1))
            a("v_add_u32 v%d, s27, v%d" % (VCA, VCA))
        else:
            a("v_lshl_add_u32 v%d, v%d, 4, s26" % (VSA, T1))
            a("v_lshrrev_b32 v%d, 2, v%d" % (VCA, T0))
            a("v_mul_u32_u24 v%d, 80, v%d" % (VCA, VCA))
            a("v_and_b32 v%d, 3, v0" % T3)
            a("v_lshl_add_u32 v%d, v%d, 2, v%d" % (VCA, T3, VCA))
            a("v_add_u32 v%d, s27, v%d" % (VCA, VCA))
        a("s_barrier")
        stamp(0)
        for l in reads(0):
            a(l)
        a(".p2align 6")
        a("L1_loop%s:" % sfx)
        for b in (0, 1):
            mf = []
            for mt in range(4):
                for t in range(5):
                    c = vr(acc(mt, t), 4)
                    x, w = vr(XF[b] + 4 * mt, 4), vr(WF[b] + 4 * t, 4)
                    mf.append("v_mfma_f32_16x16x32_bf16 %s, %s, %s, %s" % ((c, x, w, c) if vt else (c, w, x, c)))
            rd = reads(1 - b)
            if b == 0:
                rd += ["s_add_u32 s%d, s%d, 1" % (S_ST, S_ST), "s_and_b32 s%d, s%d, 3" % (S_DL, S_ST),
                       "s_cselect_b32 s%d, s39, %d" % (S_DL, -3 * SLOT & 0xffffffff),
                       "v_add_u32 v%d, s%d, v%d" % (AX[0], S_DL, AX[0]), "v_add_u32 v%d, s%d, v%d" % (AW[0], S_DL, AW[0]),
                       "v_add_u32 v%d, s%d, v%d" % (AX[1], S_DL, AX[1])]
                a("s_waitcnt lgkmcnt(0)")
            else:
                a("s_waitcnt lgkmcnt(0)")
                a(mf.pop(0))
                a("s_barrier")
            for m in mf:
                a(m)
                if rd:
                    a(rd.pop(0))
            assert not rd
        a("s_cmp_lt_u32 s%d, 10" % S_ST)
        a("s_cbranch_scc1 L1_loop%s" % sfx)
        stamp(1)
        a("s_waitcnt lgkmcnt(0)")
        a("s_barrier")
        stat_reads(vt)
        pkfma = "v_pk_fma_f32 %s, %s, %s, %s op_sel:[%d,%d,0] op_sel_hi:[%d,%d,1] neg_lo:[1,0,0] neg_hi:[1,0,0]"
        pkmul = "v_pk_mul_f32 %s, %s, %s op_sel:[%d,0] op_sel_hi:[%d,1]"
        if vt == 0:
            assert WS_KV == 0
            a("s_cmp_lt_u32 s%d, 4" % S_CB)
            a("s_cselect_b32 s31, 0x%x, 1.0" % QSCALE)
            a("s_cselect_b32 s28, 0x%x, 0" % WS_Q)
            a("s_cselect_b32 s29, 0, 1")
            a("s_lshl_b32 s26, 81920, s29")
            a("s_lshl_b32 s27, 1280, s29")
            a("s_and_b32 s29, s%d, 3" % S_CB)
            a("s_lshl_b32 s29, s29, 3")
            a("s_lshl_b32 s30, s%d, 2" % S_WN)
            a("s_add_u32 s29, s29, s30")
            a("s_mul_i32 s29, s29, s26")
            a("s_add_u32 s28, s28, s29")
            a("s_lshl_b32 s29, s%d, 2" % S_RB)
            a("s_lshl_b32 s30, s%d, 1" % S_WM)
            a("s_add_u32 s29, s29, s30")
            a("s_mul_i32 s29, s29, s27")
            a("s_add_u32 s28, s28, s29")
            a("s_add_u32 s29, s28, s27")
            a("v_mul_lo_u32 v%d, s26, v%d" % (T3, T1))
            a("v_and_b32 v%d, 8, v%d" % (T2, T0))
            a("v_add_u32 v%d, v%d, v%d" % (T2, T2, T0))
            a("v_lshl_add_u32 v%d, v%d, 4, v%d" % (T1, T0, T3))
            a("v_lshl_add_u32 v%d, v%d, 4, v%d" % (T0, T2, T3))
            a("s_waitcnt lgkmcnt(0)")
            stamp(4)
            for mt in range(4):
                a("v_mul_f32 v%d, s31, v%d" % (MR + 2 * mt + 1, MR + 2 * mt + 1))
            for mt in range(4):
                mr = vr(MR + 2 * mt, 2)
                for t in range(5):
                    for e in (0, 2):
                        c = vr(acc(mt, t) + e, 2)
                        a(pkfma % (c, mr, vr(C0 + 4 * t + e, 2), c, 0, 0, 0, 1))
                for t in range(5):
                    for e in (0, 2):
                        c = vr(acc(mt, t) + e, 2)
                        a(pkmul % (c, mr, c, 1, 1))
                P = 84 + 8 * mt
                PB = 116 + 2 * mt
                for t in range(5):
                    d = P + 2 * t if t < 4 else PB
                    a("v_cvt_pk_bf16_f32 v%d, v%d, v%d" % (d, acc(mt, t), acc(mt, t) + 1))
                    a("v_cvt_pk_bf16_f32 v%d, v%d, v%d" % (d + 1, acc(mt, t) + 2, acc(mt, t) + 3))
                so = 28 + (mt >> 1)
                a("buffer_store_dwordx4 %s, v%d, %s, s%d offen offset:%d%s" % (vr(P, 4), T0, sr(S_WS, 4), so, 128 * (mt & 1), QM))
                a("buffer_store_dwordx4 %s, v%d, %s, s%d offen offset:%d%s" % (vr(P + 4, 4), T0, sr(S_WS, 4), so, 128 * (mt & 1) + 512, QM))
                if mt & 1:
                    a("buffer_store_dwordx4 %s, v%d, %s, s%d offen offset:1024%s" % (vr(PB - 2, 4), T1, sr(S_WS, 4), so, QM))
        else:
            a("s_and_b32 s29, s%d, 3" % S_CB)
            a("s_lshl_b32 s29, s29, 3")
            a("s_lshl_b32 s30, s%d, 2" % S_WN)
            a("s_add_u32 s29, s29, s30")
            a("s_mul_i32 s28, s29, 163840")
            a("s_lshl_b32 s29, s%d, 2" % S_RB)
            a("s_lshl_b32 s30, s%d, 1" % S_WM)
            a("s_add_u32 s29, s29, s30")
            a("s_mul_i32 s29, s29, 2560")
            a("s_add_u32 s28, s28, s29")
            a("s_add_u32 s28, s28, %d" % (WS_KV + 1280))
            a("s_mov_b32 s26, 163840")
            a("v_lshrrev_b32 v%d, 2, v%d" % (T2, T0))
            a("v_mul_lo_u32 v%d, s26, v%d" % (T0, T2))
            a("v_and_b32 v%d, 3, v0" % T2)
            a("v_lshl_add_u32 v%d, v%d, 4, v%d" % (T0, T2, T0))
            VT = [AX[0], AX[1], AW[0], AW[1]]
            for t in range(4):
                a("v_add_u32 v%d, %d, v%d" % (T2, t, T1))
                a("v_and_b32 v%d, 3, v%d" % (T2, T2))
                a("v_lshl_add_u32 v%d, v%d, 6, v%d" % (VT[t], T2, T0))
            a("s_waitcnt lgkmcnt(0)")
            stamp(4)
            for u in range(2):
                for mt in (2 * u, 2 * u + 1):
                    for t in range(5):
                        for e in (0, 2):
                            c = vr(acc(mt, t) + e, 2)
                            a(pkfma % (c, vr(MR + 8 * mt + e, 2), vr(C0 + (t & ~1), 2), c, 0, t & 1, 1, t & 1))
                    for t in range(5):
                        for e in (0, 2):
                            c = vr(acc(mt, t) + e, 2)
                            a(pkmul % (c, vr(MR + 8 * mt + 4 + e, 2), c, 0, 1))
                for t in range(5):
                    P = 84 + 20 * u + 4 * t
                    for h in range(2):
                        mt = 2 * u + h
                        a("v_cvt_pk_bf16_f32 v%d, v%d, v%d" % (P + 2 * h, acc(mt, t), acc(mt, t) + 1))
                        a("v_cvt_pk_bf16_f32 v%d, v%d, v%d" % (P + 2 * h + 1, acc(mt, t) + 2, acc(mt, t) + 3))
                    a("buffer_store_dwordx4 %s, v%d, %s, s28 offen offset:%d%s" % (vr(P, 4), VT[t & 3], sr(S_WS, 4), 2560 * u + 256 * t, QM))
        stamp(2)
        diag_out()
        a("s_endpgm")
    a("L1_spare:")
    nv2 = gen_spare(a, stamp, diag_out)
    a("L1_end:")
    a("s_endpgm")
    return kernel_desc(name, max(NV, nv2), 80)
```

```python
from common import *
import os
S_X, S_W, S_WS, S_DBG = 8, 12, 16, 44
S_WV = 20
XM = ' ' + os.environ.get('K1_XM', 'sc1')
L_CP = 65536
L_CNT = 66560

def ln_scalars(a, SUM, SQ, M, RS, T):
    a("v_mul_f32 v%d, 0x%x, v%d" % (M, f2u(1.0 / 640), SUM))
    a("v_mul_f32 v%d, 0x%x, v%d" % (T, f2u(1.0 / 640), SQ))
    a("v_fma_f32 v%d, -v%d, v%d, v%d" % (T, M, M, T))
    a("v_max_f32 v%d, 0, v%d" % (T, T))
    bf16_round(a, T, T)
    a("v_add_f32 v%d, 0x%x, v%d" % (T, f2u(1e-5), T))
    bf16_round(a, T, T)
    a("v_sqrt_f32 v%d, v%d" % (T, T))
    bf16_round(a, M, M)
    bf16_round(a, T, T)
    a("v_rcp_f32 v%d, v%d" % (RS, T))

def row16_sum(a, regs):
    for mode in ("quad_perm:[1,0,3,2]", "quad_perm:[2,3,0,1]", "row_half_mirror", "row_mirror"):
        if len(regs) < 3:
            a("s_nop %d" % (2 - len(regs)))
        for r in regs:
            a("v_add_f32_dpp v%d, v%d, v%d %s row_mask:0xf bank_mask:0xf" % (r, r, r, mode))

def gen_spare(a, stamp, diag_out):
    S_XC, S_IDX = 21, 22
    S_G = 24
    a("s_load_dwordx2 s[36:37], s[0:1], %d" % KA_WR)
    a("s_load_dwordx2 s[78:79], s[0:1], %d" % KA_WO)
    a("s_and_b32 s%d, s2, 7" % S_XC)
    a("s_lshr_b32 s%d, s2, 3" % S_IDX)
    a("v_mov_b32 v3, %d" % L_CNT)
    def signal1(T0, T1):
        n = len(a.lines)
        a("v_mov_b32 v%d, 1" % T1)
        a("s_mov_b64 exec, 1")
        a("ds_add_rtn_u32 v%d, v3, v%d offset:4" % (T0, T1))
        a("s_mov_b64 exec, 3")
        a("s_waitcnt lgkmcnt(0)")
        a("v_readfirstlane_b32 s38, v%d" % T0)
        a("v_lshlrev_b32 v%d, 7, v0" % T0)
        a("s_cmp_lg_u32 s38, 4")
        a("s_cbranch_scc1 LS_ns%d" % n)
        a("buffer_atomic_add v%d, v%d, %s, 0 offen sc1" % (T1, T0, sr(S_DBG, 4)))
        a("LS_ns%d:" % n)
        a("s_mov_b64 exec, -1")
    a("s_cmp_ge_u32 s%d, 4" % S_WV)
    a("s_cbranch_scc1 LS_cw")
    X = [4, 24]
    WR = 44
    F = 64
    SU = [104, 105]; SQ = [106, 107]; M = [108, 110]; RS = [109, 111]; RR = [112, 113]
    VA, VB, T0, T1, ROW, T2 = 114, 115, 116, 117, 118, 119
    a("s_lshr_b32 s38, s%d, 1" % S_XC)
    a("s_lshl_b32 s38, s38, 9")
    a("s_and_b32 s39, s%d, 1" % S_XC)
    a("s_lshl_b32 s39, s39, 3")
    a("s_add_u32 s39, s39, s%d" % S_IDX)
    a("s_lshl_b32 s39, s39, 5")
    a("s_add_u32 s38, s38, s39")
    a("s_lshl_b32 s39, s%d, 3" % S_WV)
    a("s_add_u32 s38, s38, s39")
    a("v_lshrrev_b32 v%d, 4, v0" % ROW)
    a("v_add_u32 v%d, s38, v%d" % (ROW, ROW))
    a("v_and_b32 v%d, 15, v0" % T0)
    a("v_lshlrev_b32 v%d, 4, v%d" % (VB, T0))
    a("v_mul_u32_u24 v%d, 1280, v%d" % (VA, ROW))
    a("v_add_u32 v%d, v%d, v%d" % (VA, VA, VB))
    for i in range(4):
        a("v_mov_b32 v%d, 0" % (F + i))
    a("ds_write_b128 v3, %s" % vr(F, 4))
    a("s_movk_i32 s39, 5120")
    a("s_waitcnt lgkmcnt(0)")
    srd(a, S_X, 4, 5, 2621440)
    for j in range(5):
        a("buffer_load_dwordx4 %s, v%d, %s, 0 offen offset:%d" % (vr(X[0] + 4 * j, 4), VA, sr(S_X, 4), 256 * j))
    for j in range(5):
        a("buffer_load_dwordx4 %s, v%d, %s, s39 offen offset:%d" % (vr(X[1] + 4 * j, 4), VA, sr(S_X, 4), 256 * j))
    srd(a, S_W, 36, 37, 1280)
    for j in range(5):
        a("buffer_load_dwordx4 %s, v%d, %s, 0 offen offset:%d" % (vr(WR + 4 * j, 4), VB, sr(S_W, 4), 256 * j))
    srd(a, S_WS, 42, 43, WS_END)
    srd(a, S_DBG, 40, 41, 256)
    a("s_barrier")
    a("s_mov_b32 s38, 0x3f803f80")
    for r in SU + SQ + RR:
        a("v_mov_b32 v%d, 0" % r)
    a("v_lshl_add_u32 v%d, v%d, 2, v%d" % (ROW, T0, ROW))
    a("v_cmp_eq_u32 s[32:33], 1, v%d" % T0)
    a("v_cmp_gt_u32 s[34:35], 2, v%d" % T0)
    a("v_lshlrev_b32 v%d, 2, v%d" % (T2, ROW))
    a("s_waitcnt vmcnt(5)")
    stamp(0)
    for j in range(20):
        for p in range(2):
            a("v_dot2c_f32_bf16 v%d, s38, v%d" % (SU[p], X[p] + j))
            a("v_dot2c_f32_bf16 v%d, v%d, v%d" % (SQ[p], X[p] + j, X[p] + j))
    a("s_nop 2")
    row16_sum(a, SU + SQ)
    for p in range(2):
        ln_scalars(a, SU[p], SQ[p], M[p], RS[p], T0)
    a("s_mov_b32 s38, 0x%x" % WS_STAT)
    a("s_mov_b32 s39, 0x%x" % (WS_STAT + 8192))
    a("v_cndmask_b32 v%d, v%d, v%d, s[32:33]" % (T0, M[0], M[1]))
    a("v_cndmask_b32 v%d, v%d, v%d, s[32:33]" % (T1, RS[0], RS[1]))
    a("s_mov_b64 exec, s[34:35]")
    a("buffer_store_dword v%d, v%d, %s, s38 offen sc1" % (T0, T2, sr(S_WS, 4)))
    a("buffer_store_dword v%d, v%d, %s, s39 offen sc1" % (T1, T2, sr(S_WS, 4)))
    a("s_mov_b64 exec, -1")
    for p in range(2):
        mr = vr(M[p], 2)
        for j in range(20):
            a("v_lshlrev_b32 v%d, 16, v%d" % (F + 2 * j, X[p] + j))
            a("v_and_b32 v%d, 0xffff0000, v%d" % (F + 2 * j + 1, X[p] + j))
        for j in range(20):
            a("v_pk_add_f32 %s, %s, %s op_sel:[0,0] op_sel_hi:[1,0] neg_lo:[0,1] neg_hi:[0,1]" % (vr(F + 2 * j, 2), vr(F + 2 * j, 2), mr))
        for j in range(20):
            a("v_cvt_pk_bf16_f32 v%d, v%d, v%d" % (X[p] + j, F + 2 * j, F + 2 * j + 1))
        for j in range(20):
            a("v_lshlrev_b32 v%d, 16, v%d" % (F + 2 * j, X[p] + j))
            a("v_and_b32 v%d, 0xffff0000, v%d" % (F + 2 * j + 1, X[p] + j))
        for j in range(20):
            a("v_pk_mul_f32 %s, %s, %s op_sel:[0,1] op_sel_hi:[1,1]" % (vr(F + 2 * j, 2), vr(F + 2 * j, 2), mr))
        for j in range(20):
            a("v_cvt_pk_bf16_f32 v%d, v%d, v%d" % (X[p] + j, F + 2 * j, F + 2 * j + 1))
        if p == 0:
            a("s_waitcnt vmcnt(0)")
            signal1(T0, T1)
            stamp(1)
        for j in range(20):
            a("v_dot2c_f32_bf16 v%d, v%d, v%d" % (RR[p], X[p] + j, WR + j))
    a("s_nop 2")
    row16_sum(a, RR)
    a("v_cndmask_b32 v%d, v%d, v%d, s[32:33]" % (RR[0], RR[0], RR[1]))
    bf16_round(a, RR[0], RR[0])
    a("v_ashrrev_i32 v%d, 31, v%d" % (T1, RR[0]))
    a("v_or_b32 v%d, 0x80000000, v%d" % (T1, T1))
    a("v_xor_b32 v%d, v%d, v%d" % (RR[0], RR[0], T1))
    a("v_and_b32 v%d, 0xffff0000, v%d" % (RR[0], RR[0]))
    a("v_sub_u32 v%d, 0xffff, v%d" % (T1, ROW))
    a("v_or_b32 v%d, v%d, v%d" % (RR[0], RR[0], T1))
    a("s_mov_b32 s49, 0x%x" % WS_KEY)
    a("s_mov_b64 exec, s[34:35]")
    a("buffer_store_dword v%d, v%d, %s, s49 offen sc1" % (RR[0], T2, sr(S_WS, 4)))
    a("s_mov_b64 exec, -1")
    def xn_stores():
        a("s_mov_b64 exec, -1")
        a("s_mov_b32 s39, 0x%x" % (WS_XN + 5120))
        a("s_mov_b32 s49, 0x%x" % WS_XN)
        for p in range(2):
            for j in range(5):
                a("buffer_store_dwordx4 %s, v%d, %s, s%d offen offset:%d%s" % (vr(X[p] + 4 * j, 4), VA, sr(S_WS, 4), (49, 39)[p], 256 * j, XM))
    stamp(2)
    a("v_mov_b32 v%d, 1" % T1)
    a("s_waitcnt vmcnt(0)")
    a("s_mov_b64 exec, 1")
    a("ds_add_rtn_u32 v%d, v3, v%d offset:8" % (T0, T1))
    a("s_waitcnt lgkmcnt(0)")
    a("v_readfirstlane_b32 s38, v%d" % T0)
    a("v_mov_b32 v%d, 192" % T0)
    a("s_cmp_eq_u32 s38, 3")
    a("s_mov_b32 s38, 0")
    a("s_cbranch_scc0 LS_xn")
    a("buffer_atomic_add v%d, v%d, %s, 0 offen sc0 sc1" % (T1, T0, sr(S_DBG, 4)))
    a("s_mov_b32 s38, 1")
    a("LS_xn:")
    xn_stores()
    a("s_cmp_eq_u32 s38, 0")
    a("s_cbranch_scc1 LS_rdone")
    a("s_waitcnt vmcnt(10)")
    a("v_readfirstlane_b32 s38, v%d" % T1)
    a("s_cmp_lg_u32 s38, 63")
    a("s_cbranch_scc1 LS_rdone")
    a("s_mov_b64 exec, -1")
    stamp(3)
    K = 64
    M1, M2, W = 96, 100, 104
    a("v_lshlrev_b32 v%d, 4, v0" % VB)
    a("s_mov_b32 s38, 0x%x" % WS_KEY)
    a("s_mov_b32 s39, 0x%x" % (WS_KEY + 4096))
    for j in range(8):
        a("buffer_load_dwordx4 %s, v%d, %s, s%d offen offset:%d sc1" % (vr(K + 4 * j, 4), VB, sr(S_WS, 4), 38 + (j >> 2), 1024 * (j & 3)))
    a("s_mov_b32 s39, 0")
    a("v_mov_b32 v%d, 0" % T2)
    a("s_waitcnt vmcnt(0)")
    stamp(4)
    a("LS_top2:")
    for c in range(4):
        a("v_max_u32 v%d, v%d, v%d" % (M1 + c, K + 8 * c, K + 8 * c + 1))
        a("v_min_u32 v%d, v%d, v%d" % (M2 + c, K + 8 * c, K + 8 * c + 1))
    for j in range(2, 8):
        for c in range(4):
            a("v_med3_u32 v%d, v%d, v%d, v%d" % (M2 + c, M1 + c, M2 + c, K + 8 * c + j))
            a("v_max_u32 v%d, v%d, v%d" % (M1 + c, M1 + c, K + 8 * c + j))
    for x, y in ((0, 1), (2, 3), (0, 2)):
        a("v_min_u32 v%d, v%d, v%d" % (W, M1 + x, M1 + y))
        a("v_max_u32 v%d, v%d, v%d" % (M1 + x, M1 + x, M1 + y))
        a("v_max3_u32 v%d, v%d, v%d, v%d" % (M2 + x, W, M2 + x, M2 + y))
    a("LS_top:")
    first = True
    for mode in ("quad_perm:[1,0,3,2] row_mask:0xf", "quad_perm:[2,3,0,1] row_mask:0xf", "row_half_mirror row_mask:0xf", "row_mirror row_mask:0xf",
                 "row_bcast:15 row_mask:0xa", "row_bcast:31 row_mask:0xc"):
        a("s_nop 1")
        src = M1 if first else W
        a("v_max_u32_dpp v%d, v%d, v%d %s bank_mask:0xf" % (W, src, src, mode))
        first = False
    a("s_mov_b32 m0, s39")
    a("v_readlane_b32 s49, v%d, 63" % W)
    a("s_add_u32 s39, s39, 1")
    a("s_cmp_lt_u32 s39, 8")
    a("v_cmp_eq_u32 vcc, s49, v%d" % M1)
    a("v_writelane_b32 v%d, s49, m0" % T2)
    a("s_cbranch_scc0 LS_topd")
    a("v_cndmask_b32 v%d, v%d, v%d, vcc" % (M1, M1, M2))
    a("v_cndmask_b32 v%d, v%d, 0, vcc" % (M2, M2))
    a("v_cmp_eq_u32 vcc, 0, v%d" % M1)
    a("s_cbranch_vccz LS_top")
    for j0 in range(0, 32, 4):
        for j in range(4):
            a("v_cmp_gt_u32 s[%d:%d], s49, v%d" % (24 + 2 * j, 25 + 2 * j, K + j0 + j))
        for j in range(4):
            a("v_cndmask_b32 v%d, 0, v%d, s[%d:%d]" % (K + j0 + j, K + j0 + j, 24 + 2 * j, 25 + 2 * j))
    a("s_branch LS_top2")
    a("LS_topd:")
    a("v_mov_b32 v%d, v%d" % (VA, T2))
    a("v_and_b32 v%d, 0xffff, v%d" % (T0, VA))
    a("v_sub_u32 v%d, 0xffff, v%d" % (T0, T0))
    a("v_and_b32 v%d, 0x7ff, v%d" % (T0, T0))
    a("v_lshlrev_b32 v%d, 2, v0" % VB)
    a("s_mov_b64 exec, 0xff")
    a("v_ashrrev_i32 v%d, 31, v%d" % (T1, VA))
    a("v_not_b32 v%d, v%d" % (T1, T1))
    a("v_or_b32 v%d, 0x80000000, v%d" % (T1, T1))
    a("v_xor_b32 v%d, v%d, v%d" % (VA, VA, T1))
    a("v_and_b32 v%d, 0xffff0000, v%d" % (VA, VA))
    a("v_mul_f32 v%d, 0xbfb8aa3b, v%d" % (VA, VA))
    a("v_exp_f32 v%d, v%d" % (VA, VA))
    a("s_mov_b32 s38, 0x%x" % WS_SEL)
    a("v_add_f32 v%d, 1.0, v%d" % (VA, VA))
    a("v_rcp_f32 v%d, v%d" % (VA, VA))
    a("buffer_store_dword v%d, v%d, %s, s38 offen" % (T0, VB, sr(S_WS, 4)))
    bf16_round(a, VA, VA)
    a("buffer_store_dword v%d, v%d, %s, s38 offen offset:32" % (VA, VB, sr(S_WS, 4)))
    a("LS_rdone:")
    stamp(5)
    diag_out()
    a("s_endpgm")
    a("LS_cw:")
    a("s_setprio 2")
    CW = 4
    CA = 44
    VC, VD, T0, T1, TR = 114, 115, 116, 117, 118
    a("s_sub_u32 s48, s%d, 4" % S_WV)
    a("s_lshr_b32 s38, s%d, 1" % S_XC)
    a("s_lshl_b32 s38, s38, 3")
    a("s_add_u32 s38, s38, s%d" % S_IDX)
    a("s_min_u32 s38, s38, 29")
    a("s_and_b32 s35, s38, 1")
    a("s_lshr_b32 s38, s38, 1")
    a("s_lshl_b32 s38, s38, 7")
    a("s_and_b32 s39, s%d, 1" % S_XC)
    a("s_mul_i32 s39, s39, 1920")
    a("s_add_u32 s23, s38, s39")
    a("s_lshl_b32 s39, s35, 2")
    a("s_add_u32 s39, s39, s48")
    a("s_mul_i32 s39, s39, %d" % (80 * 3840))
    a("s_add_u32 s38, s23, s39")
    a("v_lshrrev_b32 v%d, 3, v0" % T0)
    a("v_and_b32 v%d, 7, v0" % T1)
    a("v_lshlrev_b32 v%d, 4, v%d" % (T1, T1))
    a("v_mul_u32_u24 v%d, 3840, v%d" % (VC, T0))
    a("v_add_u32 v%d, v%d, v%d" % (VC, VC, T1))
    a("s_waitcnt lgkmcnt(0)")
    srd(a, S_W, 6, 7, 2457600)
    for j in range(10):
        a("buffer_load_dwordx4 %s, v%d, %s, s38 offen" % (vr(CW + 4 * j, 4), VC, sr(S_W, 4)))
        if j < 9:
            a("s_add_u32 s38, s38, %d" % (8 * 3840))
    srd(a, S_WS, 42, 43, WS_END)
    srd(a, S_G, 78, 79, 819200)
    a("s_cmp_lg_u32 s48, 0")
    a("s_cselect_b32 s34, 0x40000, 0")
    a("v_add_u32 v%d, s34, v0" % TR)
    code_prefetch(a, S_DBG, T0, 119, "L1_spare", "L1_end", vlane="v%d" % TR, nmax=1)
    a("s_cmp_ge_u32 s%d, 2" % S_IDX)
    a("s_cselect_b32 s34, 0x40000, s34")
    a("s_lshl_b32 s33, s%d, 6" % S_IDX)
    a("s_add_u32 s34, s34, s33")
    a("v_add_u32 v%d, s34, v0" % TR)
    code_prefetch(a, S_DBG, T0, 119, "L1_end", "L_code_end", vlane="v%d" % TR, nmax=1)
    srd(a, S_DBG, 40, 41, 256)
    a("s_lshl_b32 s34, s48, 6")
    a("v_add_u32 v%d, s34, v0" % TR)
    a("v_lshlrev_b32 v%d, 21, v%d" % (T0, TR))
    a("v_mov_b32 v%d, 0" % T1)
    a("buffer_load_dword v119, v%d, %s, 0 offen" % (T0, sr(S_WS, 4)))
    a("buffer_load_dword v119, v%d, %s, 0 offen" % (T0, sr(S_G, 4)))
    a("buffer_atomic_add v%d, v%d, %s, 0 offen offset:64 sc1" % (T1, T0, sr(S_DBG, 4)))
    NPF = 5
    a("s_barrier")
    a("s_cmp_ge_u32 s2, 5")
    a("s_cbranch_scc1 LS_noclr")
    for i in range(4):
        a("v_mov_b32 v%d, 0" % (CA + i))
    a("s_lshl_b32 s38, s2, 2")
    a("s_add_u32 s38, s38, s48")
    a("s_lshl_b32 s38, s38, 10")
    a("s_add_u32 s38, s38, 0x%x" % WS_UPD)
    a("v_lshlrev_b32 v%d, 4, v0" % T1)
    a("buffer_store_dwordx4 %s, v%d, %s, s38 offen" % (vr(CA, 4), T1, sr(S_WS, 4)))
    a("LS_noclr:")
    a("s_waitcnt vmcnt(%d)" % NPF)
    a("LS_cs:")
    stamp(0)
    F = 64
    for j in range(10):
        for d in range(4):
            if j == 0:
                a("v_lshlrev_b32 v%d, 16, v%d" % (CA + 2 * d, CW + d))
                a("v_and_b32 v%d, 0xffff0000, v%d" % (CA + 2 * d + 1, CW + d))
            else:
                a("v_lshlrev_b32 v%d, 16, v%d" % (F + 2 * d, CW + 4 * j + d))
                a("v_and_b32 v%d, 0xffff0000, v%d" % (F + 2 * d + 1, CW + 4 * j + d))
        if j:
            for d in range(4):
                a("v_pk_add_f32 %s, %s, %s" % (vr(CA + 2 * d, 2), vr(CA + 2 * d, 2), vr(F + 2 * d, 2)))
    a("s_nop 0")
    for mode in ("row_ror:8",):
        for d in range(8):
            a("v_add_f32_dpp v%d, v%d, v%d %s row_mask:0xf bank_mask:0xf" % (CA + d, CA + d, CA + d, mode))
    for d in range(4):
        a("v_permlane32_swap_b32 v%d, v%d" % (CA + d, CA + 4 + d))
    for d in range(4):
        a("v_add_f32 v%d, v%d, v%d" % (CA + d, CA + d, CA + 4 + d))
    a("s_nop 0")
    for d in range(2):
        a("v_permlane16_swap_b32 v%d, v%d" % (CA + d, CA + 2 + d))
    a("s_nop 0")
    for d in range(2):
        a("v_add_f32 v%d, v%d, v%d" % (CA + d, CA + d, CA + 2 + d))
    a("s_lshl_b32 s38, s48, 8")
    a("s_add_u32 s38, s38, %d" % L_CP)
    a("v_and_b32 v%d, 7, v0" % T0)
    a("v_lshlrev_b32 v%d, 5, v%d" % (T0, T0))
    a("v_lshrrev_b32 v%d, 4, v0" % T1)
    a("v_lshl_add_u32 v%d, v%d, 3, v%d" % (T0, T1, T0))
    a("v_add_u32 v%d, s38, v%d" % (T0, T0))
    a("v_mov_b32 v%d, 1" % T1)
    a("ds_write_b64 v%d, %s" % (T0, vr(CA, 2)))
    a("s_mov_b64 exec, 1")
    a("s_waitcnt lgkmcnt(0)")
    a("ds_add_rtn_u32 v%d, v3, v%d" % (T0, T1))
    a("s_mov_b64 exec, -1")
    a("s_waitcnt lgkmcnt(0)")
    a("v_readfirstlane_b32 s38, v%d" % T0)
    a("s_cmp_lg_u32 s38, 3")
    a("s_cbranch_scc1 LS_cs_done")
    a("v_lshlrev_b32 v%d, 2, v0" % T0)
    a("v_add_u32 v%d, %d, v%d" % (T1, L_CP, T0))
    for j in range(4):
        a("ds_read_b32 v%d, v%d offset:%d" % (F + j, T1, 256 * j))
    a("s_lshl_b32 s38, s23, 1")
    a("s_mul_i32 s39, s35, 7680")
    a("s_add_u32 s38, s38, s39")
    a("s_add_u32 s38, s38, 0x%x" % WS_CS)
    a("s_waitcnt lgkmcnt(0)")
    a("v_add_f32 v%d, v%d, v%d" % (F, F, F + 1))
    a("v_add_f32 v%d, v%d, v%d" % (F + 2, F + 2, F + 3))
    a("v_add_f32 v%d, v%d, v%d" % (F, F, F + 2))
    a("buffer_store_dword v%d, v%d, %s, s38 offen sc1" % (F, T0, sr(S_WS, 4)))
    a("s_waitcnt vmcnt(0)")
    signal1(T0, T1)
    a("LS_cs_done:")
    stamp(1)
    a("s_cmp_lg_u32 s%d, 7" % S_WV)
    a("s_cbranch_scc1 LS_end")
    a("s_setprio 0")
    a("s_lshr_b32 s36, s2, 2")
    a("s_and_b32 s48, s2, 3")
    a("s_lshr_b32 s38, s36, 1")
    a("s_mul_i32 s38, s38, 160")
    a("s_and_b32 s39, s36, 1")
    a("s_mul_i32 s39, s39, %d" % (320 * 1280))
    a("s_add_u32 s38, s38, s39")
    a("s_mul_i32 s39, s48, %d" % (80 * 1280))
    a("s_add_u32 s38, s38, s39")
    a("s_mov_b32 s39, 0")
    a("s_movk_i32 s37, %d" % (1280 - 160))
    a("v_lshlrev_b32 v%d, 4, v0" % T1)
    a("v_mul_u32_u24 v%d, 6554, v0" % TR)
    a("s_mov_b32 s49, 13")
    a("LS_wo_ld:")
    a("v_lshrrev_b32 v%d, 16, v%d" % (T0, TR))
    a("v_mad_u32_u24 v%d, v%d, s37, v%d" % (VD, T0, T1))
    a("s_mov_b32 m0, s39")
    a("v_add_u32 v%d, %d, v%d" % (TR, 64 * 6554, TR))
    a("s_cmp_eq_u32 s49, 1")
    a("s_cselect_b32 exec_hi, 0, -1")
    a("s_add_u32 s39, s39, 1024")
    a("buffer_load_dwordx4 v%d, %s, s38 offen lds" % (VD, sr(S_G, 4)))
    a("s_add_u32 s38, s38, 1024")
    a("s_sub_u32 s49, s49, 1")
    a("s_cmp_lg_u32 s49, 0")
    a("s_cbranch_scc1 LS_wo_ld")
    a("s_mov_b64 exec, -1")
    a("v_bfe_u32 v%d, v0, 4, 1" % T0)
    a("v_bfe_u32 v%d, v0, 2, 2" % T1)
    a("v_lshl_add_u32 v%d, v%d, 3, v%d" % (TR, T0, T1))
    a("v_mul_u32_u24 v%d, 160, v%d" % (TR, TR))
    a("v_and_b32 v%d, 3, v0" % T1)
    a("v_mul_u32_u24 v%d, 40, v%d" % (T1, T1))
    a("v_add_u32 v%d, v%d, v%d" % (TR, TR, T1))
    a("v_lshrrev_b32 v%d, 5, v0" % T1)
    a("v_lshl_add_u32 v%d, v%d, 3, v%d" % (TR, T1, TR))
    a("v_and_b32 v%d, 31, v0" % VD)
    a("v_lshlrev_b32 v%d, 4, v%d" % (VD, VD))
    a("v_lshl_add_u32 v%d, v%d, 10, v%d" % (VD, T1, VD))
    a("s_mul_i32 s36, s36, 51200")
    a("s_add_u32 s36, s36, 0x%x" % WS_WOT)
    a("s_mul_i32 s37, s48, 5")
    a("s_mov_b32 s49, 5")
    a("s_waitcnt vmcnt(0)")
    a("LS_wo_loop:")
    for ps in range(3):
        a("ds_read_b64_tr_b16 %s, v%d offset:%d" % (vr(4 + 4 * ps, 2), TR, 16 * ps))
        a("ds_read_b64_tr_b16 %s, v%d offset:%d" % (vr(6 + 4 * ps, 2), TR, 16 * ps + 640))
    a("s_lshr_b32 s38, s37, 1")
    a("s_mul_i32 s38, s38, 5120")
    a("s_and_b32 s39, s37, 1")
    a("s_lshl_b32 s39, s39, 9")
    a("s_add_u32 s38, s38, s39")
    a("s_add_u32 s38, s38, s36")
    a("s_add_u32 s39, s38, 4096")
    a("v_add_u32 v%d, 2560, v%d" % (TR, TR))
    a("s_add_u32 s37, s37, 1")
    a("s_waitcnt lgkmcnt(0)")
    a("buffer_store_dwordx4 v[4:7], v%d, %s, s38 offen%s" % (VD, sr(S_WS, 4), XM))
    a("buffer_store_dwordx4 v[8:11], v%d, %s, s38 offen offset:2048%s" % (VD, sr(S_WS, 4), XM))
    a("s_mov_b32 exec_hi, 0")
    a("buffer_store_dwordx4 v[12:15], v%d, %s, s39 offen%s" % (VD, sr(S_WS, 4), XM))
    a("s_mov_b64 exec, -1")
    a("s_sub_u32 s49, s49, 1")
    a("s_cmp_lg_u32 s49, 0")
    a("s_cbranch_scc1 LS_wo_loop")
    a("LS_end:")
    stamp(5)
    diag_out()
    a("s_endpgm")
    return 120
```

```python
from common import *
import os
DIAG = os.environ.get("DIAG")
K2_PRIO = os.environ.get("K2_PRIO", "5,7,99")
K2_K0 = int(os.environ.get("K2_K0", "3"))
K2_NW = 12

def gen_k2(a, name="attn_kernel"):
    QBW, NG, KS, NT, UN = 2, 4, 2, 32, int(os.environ.get('K2_UN', '4'))
    NIT = NT // UN
    r = [4]
    def alloc(n):
        b = r[0]; r[0] += (n + 1) // 2 * 2; return b
    QA = [alloc(4) for _ in range(QBW)]
    QB = [alloc(2) for _ in range(QBW)]
    KA, KB = alloc(4), alloc(2)
    V0, V1 = alloc(4), alloc(4)
    P0, P1 = alloc(4), alloc(4)
    SA, SB = alloc(16), alloc(16)
    O = [alloc(16) for _ in range(QBW)]
    AKA, AKB, AV, LANE = alloc(1), r[0] - 1, alloc(1), r[0] - 1
    T0, T1, T2, T3 = alloc(1), r[0] - 1, alloc(1), r[0] - 1
    M = [alloc(1), r[0] - 1]
    AV1 = alloc(1)
    NV = r[0]
    S_KV, S_Q = 8, 12
    S_H, S_QB, S_W, S_T = 16, 17, 18, 19
    S_VM, S_HI = 20, 22
    S_IT, S_FB, S_KS, S_G = 24, 25, 26, 27
    S_TMP = 28
    qk1 = lambda S, q: a("v_mfma_f32_32x32x16_bf16 %s, %s, %s, 0" % (vr(S, 16), vr(KA, 4), vr(QA[q], 4)))
    qk2 = lambda S, q: a("v_mfma_f32_32x32x8_bf16 %s, %s, %s, %s" % (vr(S, 16), vr(KB, 2), vr(QB[q], 2), vr(S, 16)))
    pv0 = lambda q: a("v_mfma_f32_32x32x16_bf16 %s, %s, %s, %s" % (vr(O[q], 16), vr(V0, 4), vr(P0, 4), vr(O[q], 16)))
    pv1 = lambda q: a("v_mfma_f32_32x32x16_bf16 %s, %s, %s, %s" % (vr(O[q], 16), vr(V1, 4), vr(P1, 4), vr(O[q], 16)))
    rka = lambda t: a("ds_read_b128 %s, v%d offset:%d" % (vr(KA, 4), AKA, t * 2560))
    rkb = lambda t: a("ds_read_b32 v%d, v%d offset:%d" % (KB, AKB, t * 2560 + 1024))
    rv0 = lambda t: a("ds_read_b128 %s, v%d offset:%d" % (vr(V0, 4), AV, t * 2560 + 1280))
    rv1 = lambda t: a("ds_read_b128 %s, v%d offset:%d" % (vr(V1, 4), AV1, t * 2560 + 1280))
    mon = lambda: a("s_mov_b64 exec, %s" % sr(S_VM, 2))
    moff = lambda: a("s_mov_b64 exec, -1")
    wl = lambda k: a("s_waitcnt lgkmcnt(%d)" % k)
    def diag(regs, base):
        if DIAG:
            a("s_memtime s[46:47]")
            a("s_memrealtime s[48:49]")
            a("s_waitcnt lgkmcnt(0)")
            a("s_sub_u32 s44, s44, s40")
            a("s_sub_u32 s46, s46, s40")
            a("s_sub_u32 s48, s48, s42")
            a("s_sub_u32 s52, s52, s40")
            a("v_mov_b32 v%d, s44" % regs)
            a("v_mov_b32 v%d, s46" % (regs + 1))
            a("v_mov_b32 v%d, s48" % (regs + 2))
            a("v_mov_b32 v%d, s52" % (regs + 3))
            a("s_lshl_b32 s50, s2, 4")
            a("s_add_u32 s50, s50, s%d" % S_W)
            a("s_lshl_b32 s50, s50, 4")
            a("s_add_u32 s50, s50, 0x%x" % WS_DIAG)
            a("v_mov_b32 v%d, 0" % base)
            a("buffer_store_dwordx4 %s, v%d, %s, s50 offen" % (vr(regs, 4), base, sr(S_Q, 4)))

    kernel_begin(a, name)
    a("s_cmp_ge_u32 s2, 256")
    a("s_cbranch_scc1 L2_end")
    a("s_load_dwordx2 s[4:5], s[0:1], %d" % KA_WS)
    if DIAG:
        a("s_memtime s[40:41]")
        a("s_memrealtime s[42:43]")
    a("s_setprio 3")
    a("v_lshrrev_b32 v%d, 6, v0" % T0)
    a("v_and_b32 v%d, 63, v0" % LANE)
    a("s_and_b32 s%d, s2, 31" % S_H)
    a("v_readfirstlane_b32 s%d, v%d" % (S_W, T0))
    a("s_mul_i32 s%d, s%d, 163840" % (S_TMP + 1, S_H))
    a("s_mov_b32 s%d, 163840" % (S_KV + 2))
    a("s_mov_b32 s%d, 0x20000" % (S_KV + 3))
    a("s_cmp_lt_u32 s%d, 4" % S_W)
    a("s_cbranch_scc1 L2_helper")
    a("s_lshr_b32 s%d, s2, 5" % S_QB)
    a("s_mov_b32 s%d, 0x000fffff" % S_VM)
    a("s_mov_b32 s%d, 0x000fffff" % (S_VM + 1))
    a("s_mov_b32 s%d, 0" % S_HI)
    a("s_mov_b32 s%d, -1" % (S_HI + 1))
    a("v_and_b32 v%d, 31, v%d" % (T0, LANE))
    a("v_lshrrev_b32 v%d, 5, v%d" % (T1, LANE))
    a("v_lshlrev_b32 v%d, 4, v%d" % (AKA, LANE))
    a("v_and_b32 v%d, 7, v%d" % (AKB, LANE))
    a("v_lshlrev_b32 v%d, 4, v%d" % (AKB, AKB))
    a("v_and_b32 v%d, 16, v%d" % (T2, LANE))
    a("v_lshl_add_u32 v%d, v%d, 3, v%d" % (AKB, T2, AKB))
    a("v_and_b32 v%d, 8, v%d" % (T2, LANE))
    a("v_add_u32 v%d, v%d, v%d" % (AKB, AKB, T2))
    a("v_lshl_add_u32 v%d, v%d, 2, v%d" % (AKB, T1, AKB))
    a("s_and_b32 s%d, s%d, 3" % (S_G, S_W))
    a("s_lshr_b32 s%d, s%d, 3" % (S_KS, S_W))
    a("s_lshl_b32 s%d, s%d, 3" % (S_T, S_QB))
    a("s_lshl_b32 s%d, s%d, 1" % (S_TMP, S_G))
    a("s_add_u32 s%d, s%d, s%d" % (S_T, S_T, S_TMP))
    a("s_mul_i32 s%d, s%d, 81920" % (S_TMP, S_H))
    a("s_mul_i32 s%d, s%d, 1280" % (S_TMP + 2, S_T))
    a("s_add_u32 s%d, s%d, s%d" % (S_TMP, S_TMP, S_TMP + 2))
    a("s_add_u32 s%d, s%d, 0x%x" % (S_TMP, S_TMP, WS_Q))
    a("s_mul_i32 s%d, s%d, %d" % (S_TMP + 3, S_KS, NT * 2560))
    a("s_waitcnt lgkmcnt(0)")
    srd(a, S_Q, 4, 5, WS_END)
    for q in range(QBW):
        a("buffer_load_dwordx4 %s, v%d, %s, s%d offen offset:%d" % (vr(QA[q], 4), AKA, sr(S_Q, 4), S_TMP, 1280 * q))
        a("buffer_load_dword v%d, v%d, %s, s%d offen offset:%d" % (QB[q], AKB, sr(S_Q, 4), S_TMP, 1280 * q + 1024))
    a("s_add_u32 s%d, s4, s%d" % (S_KV, S_TMP + 1))
    a("s_addc_u32 s%d, s5, 0" % (S_KV + 1))
    a("v_lshrrev_b32 v%d, 2, v%d" % (T2, T0))
    a("v_add_u32 v%d, v%d, v%d" % (AV, T2, T1))
    a("v_and_b32 v%d, 3, v%d" % (AV, AV))
    a("v_lshlrev_b32 v%d, 6, v%d" % (AV, AV))
    a("v_lshl_add_u32 v%d, v%d, 8, v%d" % (AV, T2, AV))
    a("v_and_b32 v%d, 3, v%d" % (T2, LANE))
    a("v_lshl_add_u32 v%d, v%d, 4, v%d" % (AV, T2, AV))
    a("v_add_u32 v%d, s%d, v%d" % (AKA, S_TMP + 3, AKA))
    a("v_add_u32 v%d, s%d, v%d" % (AKB, S_TMP + 3, AKB))
    a("v_add_u32 v%d, s%d, v%d" % (AV, S_TMP + 3, AV))
    a("v_xor_b32 v%d, 128, v%d" % (AV1, AV))
    a("v_mov_b32 v%d, 0x3f80" % (KB + 1))
    for q in range(QBW):
        a("v_mov_b32 v%d, 0" % (QB[q] + 1))
    for i in range(4):
        a("v_mov_b32 v%d, 0" % (P1 + i))
    for q in range(QBW):
        for i in range(16):
            a("v_mov_b32 v%d, 0" % (O[q] + i))
    a("v_mov_b32 v%d, 0x3f803f80" % T3)
    a("v_cmp_eq_u32 vcc, 20, v%d" % T0)
    a("v_cmp_eq_u32 s[%d:%d], 24, v%d" % (S_TMP + 4, S_TMP + 5, T0))
    a("s_or_b64 vcc, vcc, s[%d:%d]" % (S_TMP + 4, S_TMP + 5))
    a("s_mov_b32 s%d, 0" % S_IT)
    a("s_mov_b32 s%d, 0" % S_FB)
    a("v_cndmask_b32 v%d, 0, v%d, vcc" % (T3, T3))
    for i in range(8):
        a("v_mov_b32 v%d, v%d" % (V0 + i, T3))
    a("s_barrier")
    if DIAG:
        a("s_memtime s[52:53]")
    rka(0); rkb(0)
    mon(); rv0(0); moff()
    a("s_waitcnt vmcnt(0) lgkmcnt(%d)" % (0 if DIAG else 1))
    def rowmax(dst, S, first):
        a("v_max3_f32 v%d, v%d, v%d, v%d" % (T0, S, S + 1, S + 2))
        a("v_max3_f32 v%d, v%d, v%d, v%d" % (T1, S + 3, S + 4, S + 5))
        a("v_max3_f32 v%d, v%d, v%d, v%d" % (T0, T0, S + 6, S + 7))
        a("v_max3_f32 v%d, v%d, v%d, v%d" % (T1, T1, S + 8, S + 9))
        a("v_max3_f32 v%d, v%d, v%d, v%d" % (T0, T0, S + 10, S + 11))
        a("v_max3_f32 v%d, v%d, v%d, v%d" % (T1, T1, S + 12, S + 13))
        a("v_max3_f32 v%d, v%d, v%d, v%d" % (T0, T0, S + 14, S + 15))
        if first:
            a("v_max_f32 v%d, v%d, v%d" % (dst, T0, T1))
        else:
            a("v_max3_f32 v%d, v%d, v%d, v%d" % (dst, T0, T1, dst))
    def xhalf_max(rr):
        a("v_mov_b32 v%d, v%d" % (T1, rr))
        a("s_nop 1")
        a("v_permlane32_swap_b32 v%d, v%d" % (rr, T1))
        a("s_nop 1")
        a("v_max_f32 v%d, v%d, v%d" % (rr, rr, T1))
    SS = [SA, SB]
    for q in range(QBW):
        qk1(SS[q], q); qk2(SS[q], q)
    a("s_nop 9")
    for q in range(QBW):
        rowmax(M[q], SS[q], True)
        xhalf_max(M[q])
        a("v_and_b32 v%d, 0xffff0000, v%d" % (T0, M[q]))
        a("v_sub_f32 v%d, v%d, v%d" % (T1, M[q], T0))
        a("v_and_b32 v%d, 0xffff0000, v%d" % (T1, T1))
        a("v_add_f32 v%d, v%d, v%d" % (M[q], T0, T1))
        a("v_cndmask_b32 v%d, v%d, v%d, %s" % (T0, T0, T1, sr(S_HI, 2)))
        a("v_xor_b32 v%d, 0x80000000, v%d" % (T0, T0))
        a("v_lshrrev_b32 v%d, 16, v%d" % (QB[q] + 1, T0))
        if q == 0:
            qk1(SA, 0)
            a("s_nop 0")
            qk2(SA, 0)
    if DIAG:
        a("s_memtime s[44:45]")
        a("s_waitcnt lgkmcnt(0)")
    a(".p2align 6")
    a("L2_loop:")
    def adv():
        a("v_add_u32 v%d, %d, v%d" % (AKA, UN * 2560, AKA))
        a("v_add_u32 v%d, %d, v%d" % (AKB, UN * 2560, AKB))
        a("v_add_u32 v%d, %d, v%d" % (AV, UN * 2560, AV))
        a("v_add_u32 v%d, %d, v%d" % (AV1, UN * 2560, AV1))
    for n in range(UN):
        for ph in range(2):
            Sc, Sn = (SA, SB) if ph == 0 else (SB, SA)
            ex = lambda i: a("v_exp_f32 v%d, v%d" % (Sc + i, Sc + i))
            cv = lambda i: a("v_cvt_pk_bf16_f32 v%d, v%d, v%d" % (P0 + i, Sc + 2 * i, Sc + 2 * i + 1))
            if ph == 0:
                qk1(Sn, 1); rka(n + 1); ex(0); ex(1); ex(2); ex(3); cv(0); cv(1)
                pv1(1); mon(); rv1(n); moff(); ex(4); ex(5); ex(6); ex(7); cv(2); cv(3)
                qk2(Sn, 1); rkb(n + 1); ex(8); ex(9); ex(10); ex(11); cv(4); cv(5); wl(2)
                pv0(0); ex(12); ex(13); ex(14); ex(15); cv(6); cv(7)
            else:
                qk1(Sn, 0); ex(0); ex(1); ex(2); ex(3); cv(0); cv(1); wl(0)
                pv1(0); ex(4); ex(5); ex(6); ex(7); cv(2); cv(3)
                qk2(Sn, 0); ex(8); ex(9); ex(10); ex(11); cv(4); cv(5)
                pv0(1); mon(); rv0(n + 1); moff(); ex(12); ex(13); ex(14); ex(15)
                if n == UN - 1:
                    adv()
                cv(6); cv(7)
    if DIAG == "2":
        a("s_sub_u32 s54, s54, s40")
        a("s_mov_b32 m0, s%d" % S_IT)
        a("s_nop 0")
        a("v_writelane_b32 v2, s54, m0")
        a("s_memtime s[54:55]")
    a("s_add_u32 s%d, s%d, 1" % (S_IT, S_IT))
    pr = [int(x) for x in K2_PRIO.split(",")]
    SYNC_IT = 4 // UN
    special = sorted(set([SYNC_IT] + [p for p in pr if p < NIT] + [NIT]))
    mask = sum(1 << s for s in special)
    a("s_bitcmp1_b32 0x%x, s%d" % (mask, S_IT))
    a("s_cbranch_scc0 L2_loop")
    for s in special:
        if s == NIT:
            continue
        a("s_cmp_lg_u32 s%d, %d" % (S_IT, s))
        a("s_cbranch_scc1 L2_sp%d" % s)
        if s in pr:
            a("s_setprio %d" % (2 - pr.index(s)))
        if s == SYNC_IT:
            a("s_barrier")
        a("s_branch L2_loop")
        a("L2_sp%d:" % s)
    wl(0)
    pv1(QBW - 1)
    a("L2_epi:")
    if DIAG == "2":
        a("s_lshl_b32 s50, s2, 4")
        a("s_add_u32 s50, s50, s%d" % S_W)
        a("s_lshl_b32 s50, s50, 8")
        a("s_add_u32 s50, s50, 0x%x" % (WS_DIAG - 0x100000))
        a("v_lshlrev_b32 v3, 2, v%d" % LANE)
        a("buffer_store_dword v2, v3, %s, s50 offen" % sr(S_Q, 4))
    diag(P0, T0)
    a("s_nop 15")
    a("v_mov_b32 v%d, 0" % T2)
    a("s_mov_b64 vcc, 0")
    for q in range(QBW):
        Oq = O[q]
        a("v_cndmask_b32 v%d, v%d, v%d, %s" % (T0, Oq + 12, Oq + 8, sr(S_HI, 2)))
        a("v_rcp_f32 v%d, v%d" % (T1, T0))
        a("v_log_f32 v%d, v%d" % (Oq + 12, T0))
        a("v_mov_b32 v%d, 0x%x" % (T3, (127 - 40) << 23))
        a("v_cmp_nge_f32 s[%d:%d], v%d, v%d" % (S_TMP + 4, S_TMP + 5, T0, T3))
        a("s_or_b64 vcc, vcc, s[%d:%d]" % (S_TMP + 4, S_TMP + 5))
        a("v_mov_b32 v%d, 0x%x" % (T3, (127 + 40) << 23))
        a("v_cmp_nle_f32 s[%d:%d], v%d, v%d" % (S_TMP + 4, S_TMP + 5, T0, T3))
        a("s_or_b64 vcc, vcc, s[%d:%d]" % (S_TMP + 4, S_TMP + 5))
        for i in range(12):
            a("v_mul_f32 v%d, v%d, v%d" % (Oq + i, Oq + i, T1))
        a("v_add_f32 v%d, v%d, v%d" % (Oq + 12, Oq + 12, M[q]))
        for i in range(12):
            a("v_fmac_f32 v%d, 0, v%d" % (T2, Oq + i))
    a("v_cmp_u_f32 s[%d:%d], v%d, v%d" % (S_TMP + 4, S_TMP + 5, T2, T2))
    a("s_or_b64 vcc, vcc, s[%d:%d]" % (S_TMP + 4, S_TMP + 5))
    a("s_cselect_b32 s%d, 1, 0" % S_TMP)
    a("s_andn2_b32 s%d, s%d, s%d" % (S_TMP, S_TMP, S_FB))
    a("s_cbranch_scc1 L2_fallback")
    a("s_barrier")
    a("s_lshl_b32 s%d, s%d, 13" % (S_TMP, S_G))
    a("v_lshlrev_b32 v%d, 4, v%d" % (T0, LANE))
    a("v_add_u32 v%d, s%d, v%d" % (T0, S_TMP, T0))
    a("s_cmp_eq_u32 s%d, 0" % S_KS)
    a("s_cbranch_scc1 L2_c0")
    for c in range(3):
        a("ds_write_b128 v%d, %s offset:%d" % (T0, vr(O[0] + 4 * c, 4), 1024 * c))
    a("ds_write_b32 v%d, v%d offset:%d" % (T0, O[0] + 12, 3072))
    for i in range(13):
        a("v_mov_b32 v%d, v%d" % (O[0] + i, O[1] + i))
    a("v_add_u32 v%d, 4096, v%d" % (T0, T0))
    a("s_add_u32 s%d, s%d, 1" % (S_T, S_T))
    a("s_branch L2_c1")
    a("L2_c0:")
    for c in range(3):
        a("ds_write_b128 v%d, %s offset:%d" % (T0, vr(O[1] + 4 * c, 4), 4096 + 1024 * c))
    a("ds_write_b32 v%d, v%d offset:%d" % (T0, O[1] + 12, 4096 + 3072))
    a("L2_c1:")
    wl(0)
    a("s_barrier")
    Oq = O[0]
    for c in range(3):
        a("ds_read_b128 %s, v%d offset:%d" % (vr(SA + 4 * c, 4), T0, 1024 * c))
    a("ds_read_b32 v%d, v%d offset:%d" % (SA + 12, T0, 3072))
    A = AKA
    a("v_bfe_u32 v%d, v%d, 3, 1" % (A, LANE))
    a("v_mul_u32_u24 v%d, 20480, v%d" % (A, A))
    a("v_bfe_u32 v%d, v%d, 4, 1" % (T1, LANE))
    a("v_lshl_add_u32 v%d, v%d, 7, v%d" % (A, T1, A))
    a("v_and_b32 v%d, 7, v%d" % (T1, LANE))
    a("v_lshl_add_u32 v%d, v%d, 4, v%d" % (A, T1, A))
    a("s_mul_i32 s%d, s%d, 5" % (S_TMP, S_H))
    a("v_lshrrev_b32 v%d, 5, v%d" % (T1, LANE))
    a("v_add_u32 v%d, s%d, v%d" % (T1, S_TMP, T1))
    a("v_lshrrev_b32 v%d, 1, v%d" % (T2, T1))
    a("v_lshl_add_u32 v%d, v%d, 8, v%d" % (A, T2, A))
    a("v_and_b32 v%d, 1, v%d" % (T1, T1))
    a("v_lshl_add_u32 v%d, v%d, 3, v%d" % (A, T1, A))
    a("s_mul_i32 s%d, s%d, 40960" % (S_TMP, S_T))
    a("s_add_u32 s%d, s%d, 0x%x" % (S_TMP, S_TMP, WS_O))
    wl(0)
    a("v_max_f32 v%d, v%d, v%d" % (T1, Oq + 12, SA + 12))
    a("v_sub_f32 v%d, v%d, v%d" % (T2, Oq + 12, T1))
    a("v_sub_f32 v%d, v%d, v%d" % (T3, SA + 12, T1))
    a("v_exp_f32 v%d, v%d" % (T2, T2))
    a("v_exp_f32 v%d, v%d" % (T3, T3))
    a("s_nop 0")
    a("v_add_f32 v%d, v%d, v%d" % (SB, T2, T3))
    a("v_rcp_f32 v%d, v%d" % (SB + 1, SB))
    a("s_nop 0")
    a("v_mul_f32 v%d, v%d, v%d" % (T2, T2, SB + 1))
    a("v_mul_f32 v%d, v%d, v%d" % (T3, T3, SB + 1))
    for i in range(12):
        a("v_mul_f32 v%d, v%d, v%d" % (Oq + i, Oq + i, T2))
    for i in range(12):
        a("v_fmac_f32 v%d, v%d, v%d" % (Oq + i, SA + i, T3))
    for i in range(6):
        a("v_cvt_pk_bf16_f32 v%d, v%d, v%d" % (SB + i, Oq + 2 * i, Oq + 2 * i + 1))
    a("buffer_store_dwordx2 %s, v%d, %s, s%d offen" % (vr(SB, 2), A, sr(S_Q, 4), S_TMP))
    a("buffer_store_dwordx2 %s, v%d, %s, s%d offen offset:256" % (vr(SB + 2, 2), A, sr(S_Q, 4), S_TMP))
    a("s_mov_b32 exec_hi, 0")
    a("buffer_store_dwordx2 %s, v%d, %s, s%d offen offset:512" % (vr(SB + 4, 2), A, sr(S_Q, 4), S_TMP))
    a("L2_end:")
    a("s_endpgm")
    a("L2_fallback:")
    gka = lambda: a("buffer_load_dwordx4 %s, v%d, %s, 0 offen" % (vr(KA, 4), AKA, sr(S_KV, 4)))
    gkb = lambda: a("buffer_load_dword v%d, v%d, %s, 0 offen offset:1024" % (KB, AKB, sr(S_KV, 4)))
    def back(regs):
        for x in regs:
            a("v_subrev_u32 v%d, %d, v%d" % (x, NT * 2560, x))
    back([AKA, AKB, AV, AV1])
    for q in range(QBW):
        a("v_mov_b32 v%d, 0" % (QB[q] + 1))
        a("v_mov_b32 v%d, 0xff800000" % M[q])
    a("s_mov_b32 s%d, 0" % S_IT)
    wl(0)
    a("L2_fb1:")
    gka(); gkb()
    a("s_waitcnt vmcnt(0)")
    for q in range(QBW):
        qk1(SS[q], q); qk2(SS[q], q)
    a("v_add_u32 v%d, 2560, v%d" % (AKA, AKA))
    a("v_add_u32 v%d, 2560, v%d" % (AKB, AKB))
    a("s_nop 15")
    for q in range(QBW):
        rowmax(M[q], SS[q], False)
    a("s_add_u32 s%d, s%d, 1" % (S_IT, S_IT))
    a("s_cmp_lt_u32 s%d, %d" % (S_IT, NT))
    a("s_cbranch_scc1 L2_fb1")
    for q in range(QBW):
        xhalf_max(M[q])
        for i in range(16):
            a("v_mov_b32 v%d, 0" % (O[q] + i))
    back([AKA, AKB])
    a("s_mov_b32 s%d, 0" % S_IT)
    a("L2_fb2:")
    gka(); gkb(); mon()
    a("buffer_load_dwordx4 %s, v%d, %s, 0 offen offset:1280" % (vr(V0, 4), AV, sr(S_KV, 4)))
    a("buffer_load_dwordx4 %s, v%d, %s, 0 offen offset:1280" % (vr(V1, 4), AV1, sr(S_KV, 4)))
    moff()
    a("s_waitcnt vmcnt(0)")
    for q in range(QBW):
        qk1(SA, q); qk2(SA, q)
        a("s_nop 15")
        for i in range(16):
            a("v_sub_f32 v%d, v%d, v%d" % (SA + i, SA + i, M[q]))
        for i in range(16):
            a("v_exp_f32 v%d, v%d" % (SA + i, SA + i))
        a("s_nop 0")
        for i in range(8):
            a("v_cvt_pk_bf16_f32 v%d, v%d, v%d" % (P0 + i, SA + 2 * i, SA + 2 * i + 1))
        a("s_nop 1")
        pv0(q); pv1(q)
    a("v_add_u32 v%d, 2560, v%d" % (AKA, AKA))
    a("v_add_u32 v%d, 2560, v%d" % (AKB, AKB))
    a("v_add_u32 v%d, 2560, v%d" % (AV, AV))
    a("v_add_u32 v%d, 2560, v%d" % (AV1, AV1))
    a("s_add_u32 s%d, s%d, 1" % (S_IT, S_IT))
    a("s_cmp_lt_u32 s%d, %d" % (S_IT, NT))
    a("s_cbranch_scc1 L2_fb2")
    a("s_mov_b32 s%d, 1" % S_FB)
    a("s_branch L2_epi")

    a("L2_helper:")
    VL = 1
    a("v_mov_b32 v0, v%d" % LANE)
    LANE = 0
    a("s_load_dwordx4 s[56:59], s[0:1], %d" % KA_WG)
    a("s_load_dwordx2 s[60:61], s[0:1], %d" % KA_WD)
    a("s_load_dwordx2 s[62:63], s[0:1], %d" % KA_X)
    a("v_lshlrev_b32 v%d, 4, v%d" % (VL, LANE))
    a("s_lshr_b32 s%d, s%d, 1" % (S_TMP + 2, S_W))
    a("s_mul_i32 s%d, s%d, 81920" % (S_TMP + 2, S_TMP + 2))
    a("s_and_b32 s%d, s%d, 1" % (S_TMP + 3, S_W))
    a("s_lshl_b32 s%d, s%d, 12" % (S_TMP + 3, S_TMP + 3))
    a("s_add_u32 s%d, s%d, s%d" % (S_TMP + 2, S_TMP + 2, S_TMP + 3))
    a("s_mov_b32 m0, s%d" % (S_TMP + 2))
    a("s_mov_b32 s%d, 0" % S_IT)
    a("s_waitcnt lgkmcnt(0)")
    a("s_add_u32 s%d, s4, s%d" % (S_KV, S_TMP + 1))
    a("s_addc_u32 s%d, s5, 0" % (S_KV + 1))
    a("L2_hld:")
    for j in range(4):
        a("buffer_load_dwordx4 v%d, %s, s%d offen offset:%d lds" % (VL, sr(S_KV, 4), S_TMP + 2, 1024 * j))
    a("s_add_u32 s%d, s%d, 8192" % (S_TMP + 2, S_TMP + 2))
    a("s_add_u32 s%d, s%d, 1" % (S_IT, S_IT))
    a("s_mov_b32 m0, s%d" % (S_TMP + 2))
    a("s_cmp_lg_u32 s%d, %d" % (S_IT, K2_K0))
    a("s_cbranch_scc1 L2_hnb")
    a("s_waitcnt vmcnt(%d)" % (4 * (K2_K0 - 2)))
    a("s_barrier")
    a("L2_hnb:")
    a("s_cmp_lt_u32 s%d, 10" % S_IT)
    a("s_cbranch_scc1 L2_hld")
    srd(a, S_Q, 4, 5, WS_END)
    a("s_add_u32 s36, s4, 0x%x" % WS_SEL)
    a("s_addc_u32 s37, s5, 0")
    a("s_lshr_b32 s%d, s2, 3" % S_G)
    a("s_and_b32 s%d, s2, 7" % S_KS)
    if DIAG:
        a("s_memtime s[52:53]")
    a("s_waitcnt vmcnt(0)")
    if DIAG:
        a("s_memtime s[44:45]")
    a("s_barrier")
    a("s_setprio %s" % os.environ.get("K2_HPRIO", "3"))
    a("s_and_b32 s%d, s%d, 3" % (S_TMP, S_G))
    a("s_cmp_lg_u32 s%d, s%d" % (S_TMP, S_W))
    a("s_cbranch_scc1 L2_hwarm")
    a("s_cmp_ge_u32 s2, %s" % os.environ.get("K2_MOE", "192"))
    a("s_cbranch_scc1 L2_hend")
    XS, AF, D, U, H = 4, 84, 104, 108, 112
    TA, TB, TC, TR = 2, 3, 114, 115
    S_GT, S_UP, S_DN = 64, 68, 72
    a("s_mul_i32 s%d, s%d, 24" % (S_FB, S_KS))
    a("s_add_u32 s%d, s%d, s%d" % (S_FB, S_FB, S_G))
    srd(a, S_GT, 56, 57, 1966080)
    srd(a, S_UP, 58, 59, 1966080)
    srd(a, S_DN, 60, 61, 1966080)
    a("v_and_b32 v%d, 7, v%d" % (TA, LANE))
    a("v_lshlrev_b32 v%d, 2, v%d" % (TA, TA))
    a("s_mov_b32 s%d, 0x%x" % (S_TMP, WS_SEL))
    a("buffer_load_dword v%d, v%d, %s, s%d offen" % (TA, TA, sr(S_Q, 4), S_TMP))
    a("v_mul_u32_u24 v%d, 3072, v%d" % (TB, LANE))
    a("s_lshl_b32 s%d, s%d, 4" % (S_TMP + 1, S_FB))
    a("s_and_b32 s%d, s%d, 7" % (S_TMP + 2, S_G))
    a("s_mov_b32 s%d, 10" % S_IT)
    a("L2_hgu:")
    a("s_mul_i32 s%d, s%d, %d" % (S_TMP + 3, S_TMP + 2, 64 * 3072))
    a("s_add_u32 s%d, s%d, s%d" % (S_TMP + 3, S_TMP + 3, S_TMP + 1))
    a("s_lshl_b32 s%d, s%d, 10" % (S_TMP + 4, S_TMP + 2))
    a("s_mov_b32 m0, s%d" % (S_TMP + 4))
    a("s_add_u32 s%d, s%d, 81920" % (S_TMP + 4, S_TMP + 4))
    a("buffer_load_dwordx4 v%d, %s, s%d offen lds" % (TB, sr(S_GT, 4), S_TMP + 3))
    a("s_mov_b32 m0, s%d" % (S_TMP + 4))
    a("s_add_u32 s%d, s%d, 1" % (S_TMP + 2, S_TMP + 2))
    a("buffer_load_dwordx4 v%d, %s, s%d offen lds" % (TB, sr(S_UP, 4), S_TMP + 3))
    a("s_cmp_eq_u32 s%d, 10" % (S_TMP + 2))
    a("s_cselect_b32 s%d, 0, s%d" % (S_TMP + 2, S_TMP + 2))
    a("s_sub_u32 s%d, s%d, 1" % (S_IT, S_IT))
    a("s_cmp_lg_u32 s%d, 0" % S_IT)
    a("s_cbranch_scc1 L2_hgu")
    a("v_lshrrev_b32 v%d, 4, v%d" % (TC, LANE))
    a("s_waitcnt vmcnt(20)")
    a("v_mul_u32_u24 v%d, 1280, v%d" % (TA, TA))
    a("v_lshl_add_u32 v%d, v%d, 4, v%d" % (TA, TC, TA))
    a("s_mov_b32 s%d, 0x%x" % (S_TMP, WS_XN))
    for j in range(20):
        a("buffer_load_dwordx4 %s, v%d, %s, s%d offen offset:%d" % (vr(XS + 4 * j, 4), TA, sr(S_Q, 4), S_TMP, 64 * j))
    a("v_bfe_u32 v%d, v%d, 2, 2" % (TB, LANE))
    a("v_lshl_add_u32 v%d, v%d, 3, v%d" % (TR, TC, TB))
    a("v_lshlrev_b32 v%d, 4, v%d" % (TR, TR))
    a("v_and_b32 v%d, 1, v%d" % (TA, LANE))
    a("v_lshl_add_u32 v%d, v%d, 3, v%d" % (TR, TA, TR))
    a("v_bfe_u32 v%d, v%d, 1, 1" % (TA, LANE))
    a("v_mul_u32_u24 v%d, 81920, v%d" % (TA, TA))
    a("v_add_u32 v%d, v%d, v%d" % (TR, TR, TA))
    a("s_waitcnt vmcnt(0)")
    for c in range(4):
        for j in range(5):
            for h in range(2):
                a("ds_read_b64_tr_b16 %s, v%d offset:%d" % (vr(AF + 4 * j + 2 * h, 2), TR, 512 * (5 * c + j) + 64 * h))
        wl(0)
        for j in range(5):
            a("v_mfma_f32_16x16x32_bf16 %s, %s, %s, %s" % (vr(D, 4), vr(AF + 4 * j, 4), vr(XS + 4 * (5 * c + j), 4), "0" if c + j == 0 else vr(D, 4)))
    a("s_mul_i32 s%d, s%d, 10240" % (S_TMP + 3, S_FB))
    for j in range(10):
        if j % 4 == 0:
            a("s_mov_b32 m0, %d" % (1024 * j))
            if j:
                a("s_add_u32 s%d, s%d, 4096" % (S_TMP + 3, S_TMP + 3))
            else:
                a("s_nop 0")
        a("buffer_load_dwordx4 v%d, %s, s%d offen offset:%d lds" % (VL, sr(S_DN, 4), S_TMP + 3, 1024 * (j % 4)))
    for e in range(4):
        bf16_round(a, D + e, D + e)
    for e in range(4):
        a("v_mov_b32 v%d, v%d" % (U + e, D + e))
    a("s_nop 0")
    for e in range(4):
        a("v_permlane32_swap_b32 v%d, v%d" % (D + e, U + e))
    E = XS
    for e in range(4):
        a("v_mul_f32 v%d, 0xbfb8aa3b, v%d" % (E + e, D + e))
    for e in range(4):
        a("v_exp_f32 v%d, v%d" % (E + e, E + e))
    for e in range(4):
        a("v_add_f32 v%d, 1.0, v%d" % (E + e, E + e))
    for e in range(4):
        a("v_rcp_f32 v%d, v%d" % (E + e, E + e))
    for e in range(4):
        a("v_mul_f32 v%d, v%d, v%d" % (D + e, D + e, E + e))
    for e in range(4):
        bf16_round(a, D + e, D + e)
    for e in range(4):
        a("v_mul_f32 v%d, v%d, v%d" % (D + e, D + e, U + e))
    a("v_cvt_pk_bf16_f32 v%d, v%d, v%d" % (H, D, D + 1))
    a("v_cvt_pk_bf16_f32 v%d, v%d, v%d" % (H + 1, D + 2, D + 3))
    a("s_mov_b32 exec_lo, 0")
    a("v_mov_b32 v%d, 0" % H)
    a("v_mov_b32 v%d, 0" % (H + 1))
    a("s_mov_b64 exec, -1")
    a("v_and_b32 v%d, 1, v%d" % (TA, TC))
    a("v_lshl_add_u32 v%d, v%d, 2, v%d" % (TR, TA, TB))
    a("v_mul_u32_u24 v%d, 1280, v%d" % (TR, TR))
    a("v_and_b32 v%d, 3, v%d" % (TA, LANE))
    a("v_lshl_add_u32 v%d, v%d, 3, v%d" % (TR, TA, TR))
    a("v_mul_u32_u24 v%d, 10240, v%d" % (TB, TC))
    a("v_and_b32 v%d, 15, v%d" % (TA, LANE))
    a("v_lshl_add_u32 v%d, v%d, 2, v%d" % (TB, TA, TB))
    for e in range(4):
        a("s_mov_b32 s%d, 0x%x" % (S_TMP + e, WS_UPD + 2560 * e))
    a("s_mov_b32 s%d, 5" % S_IT)
    a("s_waitcnt vmcnt(0)")
    Y = 8
    a("L2_hdn:")
    for j in range(8):
        a("ds_read_b64_tr_b16 %s, v%d offset:%d" % (vr(AF + 2 * j, 2), TR, 32 * j))
    wl(0)
    for j in range(8):
        a("v_mfma_f32_16x16x16_bf16 %s, %s, %s, 0" % (vr(Y + 4 * j, 4), vr(H, 2), vr(AF + 2 * j, 2)))
    a("v_add_u32 v%d, 256, v%d" % (TR, TR))
    a("s_mov_b32 exec_hi, 0")
    for j in range(8):
        for e in range(4):
            a("buffer_atomic_add_f32 v%d, v%d, %s, s%d offen offset:%d" % (Y + 4 * j + e, TB, sr(S_Q, 4), S_TMP + e, 64 * j))
    a("s_mov_b64 exec, -1")
    a("v_add_u32 v%d, 512, v%d" % (TB, TB))
    a("s_sub_u32 s%d, s%d, 1" % (S_IT, S_IT))
    a("s_cmp_lg_u32 s%d, 0" % S_IT)
    a("s_cbranch_scc1 L2_hdn")
    a("s_branch L2_hend")
    a("L2_hwarm:")
    if os.environ.get("K2_WARM", "1") == "1":
        a("s_add_u32 s%d, s%d, 1" % (S_TMP, S_TMP))
        a("s_and_b32 s%d, s%d, 3" % (S_TMP, S_TMP))
        a("s_cmp_lg_u32 s%d, s%d" % (S_TMP, S_W))
        a("s_cbranch_scc1 L2_hend")
        a("v_lshlrev_b32 v2, 7, v%d" % LANE)
        a("s_and_b32 s%d, s%d, 1" % (S_TMP, S_KS))
        a("s_mul_i32 s%d, s%d, 409600" % (S_TMP + 1, S_TMP))
        a("s_mul_i32 s%d, s%d, 12800" % (S_TMP + 2, S_G))
        a("s_add_u32 s%d, s%d, s%d" % (S_TMP + 1, S_TMP + 1, S_TMP + 2))
        a("s_add_u32 s%d, s%d, 0x%x" % (S_TMP + 1, S_TMP + 1, WS_WOT))
        a("s_add_u32 s%d, s%d, 4608" % (S_TMP + 2, S_TMP + 1))
        a("buffer_load_dword v4, v2, %s, s%d offen" % (sr(S_Q, 4), S_TMP + 1))
        a("buffer_load_dword v4, v2, %s, s%d offen" % (sr(S_Q, 4), S_TMP + 2))
        a("v_lshrrev_b32 v2, 3, v%d" % LANE)
        a("v_mul_u32_u24 v2, 1280, v2")
        a("v_and_b32 v3, 7, v%d" % LANE)
        a("v_min_u32 v3, 4, v3")
        a("v_lshl_add_u32 v2, v3, 7, v2")
        a("s_mul_i32 s%d, s%d, 640" % (S_TMP + 1, S_TMP))
        a("s_lshr_b32 s%d, s%d, 1" % (S_TMP + 2, S_KS))
        a("s_mul_i32 s%d, s%d, 655360" % (S_TMP + 2, S_TMP + 2))
        a("s_add_u32 s%d, s%d, s%d" % (S_TMP + 1, S_TMP + 1, S_TMP + 2))
        a("s_mul_i32 s%d, s%d, 20480" % (S_TMP + 2, S_G))
        a("s_add_u32 s%d, s%d, s%d" % (S_TMP + 1, S_TMP + 1, S_TMP + 2))
        a("s_add_u32 s%d, s%d, 10240" % (S_TMP + 2, S_TMP + 1))
        a("s_add_u32 s%d, s%d, 0x%x" % (S_TMP + 3, S_TMP + 1, WS_XN))
        a("s_add_u32 s%d, s%d, 0x%x" % (S_TMP + 4, S_TMP + 2, WS_XN))
        srd(a, 64, 62, 63, 2621440)
        a("buffer_load_dword v4, v2, s[64:67], s%d offen" % (S_TMP + 1))
        a("buffer_load_dword v4, v2, s[64:67], s%d offen" % (S_TMP + 2))
        a("buffer_load_dword v4, v2, %s, s%d offen" % (sr(S_Q, 4), S_TMP + 3))
        a("buffer_load_dword v4, v2, %s, s%d offen" % (sr(S_Q, 4), S_TMP + 4))
        code_prefetch(a, 64, 2, 4, "L2_code_end", "L_code_end", vlane="v%d" % LANE, nmax=1)
    a("L2_hend:")
    diag(4, 8)
    a("s_endpgm")
    a("L2_code_end:")
    return kernel_desc(name, max(NV, 116), 80)
```

```python
import sys
from common import *
from k2 import gen_k2, K2_NW

HEADER = open("cdna_kernels/%s.s.ref" % NAME).read().split("; Override launch")[0]

def build(which):
    a = Asm()
    launches = []
    descs = []
    if "1" in which:
        from k1 import gen_k1, K1_LDS
        launches.append("; @launch kernel=qkv_kernel grid=(256,1,1) block=(512,1,1) lds=%d" % K1_LDS)
        descs.append(gen_k1(a))
    if "2" in which:
        launches.append("; @launch kernel=attn_kernel grid=(256,1,1) block=(%d,1,1) lds=163840" % (64 * K2_NW))
        descs.append(gen_k2(a))
    if "3" in which:
        from k3 import gen_k3, K3_LDS
        launches.append("; @launch kernel=oproj_kernel grid=(256,1,1) block=(256,1,1) lds=%d" % K3_LDS)
        descs.append(gen_k3(a))
    a("L_code_end:")
    a("s_endpgm")
    out = HEADER + "\n".join(launches) + "\n" + '.amdgcn_target "amdgcn-amd-amdhsa--gfx950"\n' + a.text() + "".join(descs)
    import os, re
    if os.environ.get("TL"):
        lines = []
        kidx = -1
        for l in out.split("\n"):
            m = re.match(r"(\w+_kernel):$", l)
            if m:
                kidx += 1
                lines.append(l)
                lines.append("    s_memrealtime s[96:97]")
                lines.append("    s_load_dwordx2 s[92:93], s[0:1], 80")
                lines.append("    v_readfirstlane_b32 s98, v0")
                lines.append("    s_mov_b32 s99, s2")
                continue
            if l.strip() == "s_endpgm" and kidx >= 0:
                lines += ["    s_branch LTL_%d" % kidx]
                continue
            lines.append(l)
        i = max(j for j, l in enumerate(lines) if l.startswith("L_code_end:"))
        tail = []
        for k in range(3):
            tail += ["LTL_%d:" % k, "    s_memrealtime s[90:91]", "    s_waitcnt vmcnt(0) lgkmcnt(0)", "    s_memrealtime s[100:101]", "    s_waitcnt lgkmcnt(0)",
                     "    s_mov_b32 s94, 0x%x" % WS_END, "    s_mov_b32 s95, 0x20000", "    s_mov_b64 exec, 1",
                     "    s_lshr_b32 s98, s98, 6", "    s_lshl_b32 s99, s99, 4", "    s_add_u32 s99, s99, s98", "    s_lshl_b32 s99, s99, 4",
                     "    s_add_u32 s99, s99, 0x%x" % (WS_DIAG + 0x80000 + k * 0x20000),
                     "    v_mov_b32 v0, s96", "    v_mov_b32 v1, s90", "    v_mov_b32 v2, s100", "    v_mov_b32 v3, 0",
                     "    buffer_store_dwordx4 v[0:3], v3, s[92:95], s99 offen", "    s_endpgm"]
        lines[i + 1:i + 2] = ["    s_endpgm"] + tail
        out = "\n".join(lines)
        out = re.sub(r"amdhsa_next_free_sgpr \d+", "amdhsa_next_free_sgpr 102", out)
    mod = os.environ.get("STMOD", "")
    if mod:
        lines = []
        for l in out.split("\n"):
            if re.match(r"\s*buffer_store_dwordx[24] ", l) and " sc" not in l and " nt" not in l:
                l = l + " " + mod
            lines.append(l)
        out = "\n".join(lines)
    return out

if __name__ == "__main__":
    which = sys.argv[1] if len(sys.argv) > 1 else "123"
    path = sys.argv[2] if len(sys.argv) > 2 else "cdna_kernels/%s.s" % NAME
    open(path, "w").write(build(which))
    print("wrote", path)
```

```python
import sys
from common import *
from k2 import gen_k2, K2_NW

HEADER = open("cdna_kernels/%s.s.ref" % NAME).read().split("; Override launch")[0]

def build(which):
    a = Asm()
    launches = []
    descs = []
    if "1" in which:
        from k1 import gen_k1, K1_LDS
        launches.append("; @launch kernel=qkv_kernel grid=(256,1,1) block=(512,1,1) lds=%d" % K1_LDS)
        descs.append(gen_k1(a))
    if "2" in which:
        launches.append("; @launch kernel=attn_kernel grid=(256,1,1) block=(%d,1,1) lds=163840" % (64 * K2_NW))
        descs.append(gen_k2(a))
    if "3" in which:
        from k3 import gen_k3, K3_LDS, K3_NW
        launches.append("; @launch kernel=oproj_kernel grid=(256,1,1) block=(%d,1,1) lds=%d" % (64 * K3_NW, K3_LDS))
        descs.append(gen_k3(a))
    a("L_code_end:")
    a("s_endpgm")
    out = HEADER + "\n".join(launches) + "\n" + '.amdgcn_target "amdgcn-amd-amdhsa--gfx950"\n' + a.text() + "".join(descs)
    import os, re
    if os.environ.get("TL"):
        lines = []
        kidx = -1
        for l in out.split("\n"):
            m = re.match(r"(\w+_kernel):$", l)
            if m:
                kidx += 1
                lines.append(l)
                lines.append("    s_memrealtime s[96:97]")
                lines.append("    s_load_dwordx2 s[92:93], s[0:1], 80")
                lines.append("    v_readfirstlane_b32 s98, v0")
                lines.append("    s_mov_b32 s99, s2")
                continue
            if l.strip() == "s_endpgm" and kidx >= 0:
                lines += ["    s_branch LTL_%d" % kidx]
                continue
            lines.append(l)
        i = max(j for j, l in enumerate(lines) if l.startswith("L_code_end:"))
        tail = []
        for k in range(3):
            tail += ["LTL_%d:" % k, "    s_memrealtime s[90:91]", "    s_waitcnt vmcnt(0) lgkmcnt(0)", "    s_memrealtime s[100:101]", "    s_waitcnt lgkmcnt(0)",
                     "    s_mov_b32 s94, 0x%x" % WS_END, "    s_mov_b32 s95, 0x20000", "    s_mov_b64 exec, 1",
                     "    s_lshr_b32 s98, s98, 6", "    s_lshl_b32 s99, s99, 4", "    s_add_u32 s99, s99, s98", "    s_lshl_b32 s99, s99, 4",
                     "    s_add_u32 s99, s99, 0x%x" % (WS_DIAG + 0x80000 + k * 0x20000),
                     "    v_mov_b32 v0, s96", "    v_mov_b32 v1, s90", "    v_mov_b32 v2, s100", "    v_mov_b32 v3, 0",
                     "    buffer_store_dwordx4 v[0:3], v3, s[92:95], s99 offen", "    s_endpgm"]
        lines[i + 1:i + 2] = ["    s_endpgm"] + tail
        out = "\n".join(lines)
        out = re.sub(r"amdhsa_next_free_sgpr \d+", "amdhsa_next_free_sgpr 102", out)
    wsb = int(os.environ.get("WSB", "0"), 0)
    if wsb:
        out = re.sub(r"s_mov_b32 (s\d+), s42\n\s+s_mov_b32 (s\d+), s43", lambda m: "s_add_u32 %s, s42, 0x%x\n    s_addc_u32 %s, s43, 0" % (m.group(1), wsb, m.group(2)), out)
        k2 = out.index("attn_kernel:")
        head, tail = out[:k2], out[k2:]
        tail = re.sub(r"s_mov_b32 (s\d+), s4\n\s+s_mov_b32 (s\d+), s5", lambda m: "s_add_u32 %s, s4, 0x%x\n    s_addc_u32 %s, s5, 0" % (m.group(1), wsb, m.group(2)), tail)
        tail = re.sub(r"s_add_u32 (s22|s36), s4, 0x([0-9a-f]+)", lambda m: "s_add_u32 %s, s4, 0x%x" % (m.group(1), int(m.group(2), 16) + wsb), tail)
        tail = tail.replace("s_mul_i32 s29, s16, 163840\n", "s_mul_i32 s29, s16, 163840\n    s_add_u32 s29, s29, 0x%x\n" % wsb)
        out = head + tail
    mod = os.environ.get("STMOD", "")
    if mod:
        lines = []
        for l in out.split("\n"):
            if re.match(r"\s*buffer_store_dwordx[24] ", l) and " sc" not in l and " nt" not in l:
                l = l + " " + mod
            lines.append(l)
        out = "\n".join(lines)
    return out

if __name__ == "__main__":
    which = sys.argv[1] if len(sys.argv) > 1 else "123"
    path = sys.argv[2] if len(sys.argv) > 2 else "cdna_kernels/%s.s" % NAME
    open(path, "w").write(build(which))
    print("wrote", path)
```

```python
from common import *
import os
DIAG = os.environ.get("DIAG")
SLOT = 16384 + 4 * 5152
NS = 4
L_ST = NS * SLOT
K1_LDS = L_ST + 1664
POLL_ST = int(os.environ.get('K1_POLL', '8'))
QSCALE = f2u(1.4426950408889634 * 20 ** -0.5)
SPIN_MAX = 1 << 16
QM = ' ' + os.environ.get('K1_QM', 'sc1')

S_X, S_W, S_WS, S_DBG = 8, 12, 16, 44
S_WV = 20

def gen_k1(a, name="qkv_kernel"):
    from k1s import gen_spare
    S_RB, S_CB, S_J = 21, 22, 23
    S_T = 24
    S_R4, S_C6 = 33, 34
    S_ST, S_DL, S_MASK, S_STATE = 36, 37, 38, 48
    def stamp(i):
        if DIAG:
            a("s_memtime s[%d:%d]" % (60 + 2 * i, 61 + 2 * i))
    def diag_out():
        if DIAG:
            a("s_memrealtime s[56:57]")
            a("s_waitcnt lgkmcnt(0)")
            a("s_sub_u32 s56, s56, s52")
            a("s_mov_b64 exec, -1")
            a("v_mov_b32 v3, 0")
            for i in range(6):
                a("s_sub_u32 s%d, s%d, s50" % (60 + 2 * i, 60 + 2 * i))
                a("v_mov_b32 v%d, s%d" % (4 + i, 60 + 2 * i))
            a("v_mov_b32 v10, s56")
            a("v_mov_b32 v11, s52")
            a("s_lshl_b32 s58, s2, 3")
            a("s_add_u32 s58, s58, s%d" % S_WV)
            a("s_lshl_b32 s58, s58, 5")
            a("s_add_u32 s58, s58, 0x%x" % (WS_DIAG + 0x60000))
            a("s_mov_b64 exec, 1")
            a("buffer_store_dwordx4 v[4:7], v3, %s, s58 offen" % sr(S_WS, 4))
            a("buffer_store_dwordx4 v[8:11], v3, %s, s58 offen offset:16" % sr(S_WS, 4))
    kernel_begin(a, name)
    a("s_cmp_ge_u32 s2, 256")
    a("s_cbranch_scc1 L1_end")
    a("s_load_dwordx4 s[4:7], s[0:1], 0")
    a("s_load_dwordx4 s[40:43], s[0:1], %d" % KA_DBG)
    if DIAG:
        a("s_memtime s[50:51]")
        a("s_memrealtime s[52:53]")
        for i in range(6):
            a("s_mov_b32 s%d, 0" % (60 + 2 * i))
    a("v_lshrrev_b32 v1, 6, v0")
    a("v_and_b32 v0, 63, v0")
    a("s_cmp_lt_u32 s2, 64")
    a("v_readfirstlane_b32 s%d, v1" % S_WV)
    a("s_cbranch_scc1 L1_spare")
    a("s_sub_u32 s%d, s2, 64" % S_T)
    a("s_lshr_b32 s%d, s%d, 3" % (S_J, S_T))
    a("s_mul_i32 s%d, s%d, 43" % (S_T + 2, S_J))
    a("s_lshr_b32 s%d, s%d, 8" % (S_T + 2, S_T + 2))
    a("s_mul_i32 s%d, s%d, 6" % (S_T + 3, S_T + 2))
    a("s_sub_u32 s%d, s%d, s%d" % (S_T + 3, S_J, S_T + 3))
    a("s_bfe_u32 s%d, s%d, 0x20001" % (S_RB, S_T))
    a("s_lshl_b32 s%d, s%d, 2" % (S_RB, S_RB))
    a("s_add_u32 s%d, s%d, s%d" % (S_RB, S_RB, S_T + 2))
    a("s_and_b32 s%d, s%d, 1" % (S_CB, S_T))
    a("s_mul_i32 s%d, s%d, 6" % (S_CB, S_CB))
    a("s_add_u32 s%d, s%d, s%d" % (S_CB, S_CB, S_T + 3))
    a("s_mov_b32 s%d, s%d" % (S_R4, S_T + 2))
    a("s_mov_b32 s%d, s%d" % (S_C6, S_T + 3))
    a("s_mov_b32 s39, %d" % SLOT)
    a("s_cmp_ge_u32 s%d, 4" % S_WV)
    a("s_cbranch_scc1 L1_compute")
    VX = [2, 3, 4, 5]; VW = [6, 7, 8, 9, 10]; T0, T1, T2 = 11, 12, 13
    S_LW, S_MX, S_MW, S_SX, S_SW = S_WV, 25, 26, 27, 28
    a("s_lshl_b32 s29, s%d, 7" % S_RB)
    a("s_lshl_b32 s30, s%d, 5" % S_LW)
    a("s_add_u32 s29, s29, s30")
    a("v_lshrrev_b32 v%d, 3, v0" % T0)
    a("v_add_u32 v%d, s29, v%d" % (T0, T0))
    a("v_mul_u32_u24 v%d, 1280, v%d" % (T0, T0))
    a("v_lshrrev_b32 v%d, 4, v0" % T1)
    a("v_and_b32 v%d, 2, v%d" % (T2, T1))
    a("v_lshlrev_b32 v%d, 1, v%d" % (T2, T2))
    a("v_xor_b32 v%d, v%d, v%d" % (T1, T1, T2))
    a("v_and_b32 v%d, 7, v0" % T2)
    a("v_xor_b32 v%d, v%d, v%d" % (T1, T1, T2))
    a("v_lshl_add_u32 v%d, v%d, 4, v%d" % (VX[0], T1, T0))
    a("v_xor_b32 v%d, 4, v%d" % (T1, T1))
    a("v_lshl_add_u32 v%d, v%d, 4, v%d" % (VX[1], T1, T0))
    a("v_add_u32 v%d, %d, v%d" % (VX[1], 8 * 1280 - 1024, VX[1]))
    a("v_add_u32 v%d, %d, v%d" % (VX[2], 16 * 1280 - 2048, VX[0]))
    a("v_add_u32 v%d, %d, v%d" % (VX[3], 16 * 1280 - 2048, VX[1]))
    a("s_mul_i32 s29, s%d, %d" % (S_LW, 16 * 3840))
    a("s_mul_i32 s30, s%d, 320" % S_CB)
    a("s_add_u32 s29, s29, s30")
    a("v_lshlrev_b32 v%d, 4, v0" % T0)
    a("v_add_u32 v%d, s29, v%d" % (T0, T0))
    a("v_mul_u32_u24 v%d, 3277, v0" % T1)
    a("s_movk_i32 s30, %d" % (3840 - 320))
    for i in range(5):
        a("v_add_u32 v%d, %d, v%d" % (T2, 64 * i * 3277, T1))
        a("v_lshrrev_b32 v%d, 16, v%d" % (T2, T2))
        a("v_mad_u32_u24 v%d, v%d, s30, v%d" % (VW[i], T2, T0))
    a("v_add_u32 v%d, 4096, v%d" % (VW[4], VW[4]))
    a("s_lshl_b32 s%d, s%d, 12" % (S_MX, S_LW))
    a("s_mul_i32 s%d, s%d, 5152" % (S_MW, S_LW))
    a("s_add_u32 s%d, s%d, 16384" % (S_MW, S_MW))
    if os.environ.get("K1_ROT", "1") == "1":
        a("s_lshl_b32 s29, s%d, 1" % S_C6)
        a("s_min_u32 s29, s29, 9")
        a("s_mul_i32 s30, s%d, 5" % S_R4)
        a("s_add_u32 s30, s30, 1")
        a("s_lshr_b32 s30, s30, 1")
        a("s_add_u32 s29, s29, s30")
        a("s_cmp_ge_u32 s29, 10")
        a("s_cselect_b32 s30, 10, 0")
        a("s_sub_u32 s29, s29, s30")
    else:
        a("s_mov_b32 s29, 0")
    a("s_lshl_b32 s%d, s29, 7" % S_SX)
    a("s_mul_i32 s%d, s29, %d" % (S_SW, 64 * 3840))
    VFL, VZ, VSA, VCA, ST0, ST1, ST2 = 14, 15, 16, 17, 20, 24, 28
    a("s_lshl_b32 s30, s%d, 12" % S_WV)
    a("v_mov_b32 v%d, s30" % VZ)
    a("s_waitcnt lgkmcnt(0)")
    srd(a, S_X, 4, 5, 2621440)
    srd(a, S_W, 6, 7, 2457600)
    def poll_issue(mode=""):
        a("s_mov_b64 exec, 1")
        a("buffer_load_dword v%d, v%d, %s, 0 offen %s" % (VFL, VZ, sr(S_DBG, 4), mode))
        a("s_mov_b64 exec, -1")
    stamp(0)
    def half(h):
        n = h // 2
        base = (n % NS) * SLOT
        if h % 2 == 0:
            a("s_add_u32 m0, s%d, %d" % (S_MX, base))
            a("s_nop 0")
            for i in range(4):
                a("buffer_load_dwordx4 v%d, %s, s%d offen offset:%d lds" % (VX[i], sr(S_X, 4), S_SX, 1024 * i))
            a("s_add_u32 s%d, s%d, 128" % (S_SX, S_SX))
            a("s_cmp_eq_u32 s%d, 1280" % S_SX)
            a("s_cselect_b32 s%d, 0, s%d" % (S_SX, S_SX))
            return 4
        a("s_add_u32 m0, s%d, %d" % (S_MW, base))
        a("s_nop 0")
        for i in range(4):
            a("buffer_load_dwordx4 v%d, %s, s%d offen offset:%d lds" % (VW[i], sr(S_W, 4), S_SW, 1024 * i))
        a("s_add_u32 m0, s%d, %d" % (S_MW, base + 4096))
        a("s_nop 0")
        a("buffer_load_dwordx4 v%d, %s, s%d offen lds" % (VW[4], sr(S_W, 4), S_SW))
        a("s_add_u32 s%d, s%d, %d" % (S_SW, S_SW, 64 * 3840))
        a("s_cmp_eq_u32 s%d, %d" % (S_SW, 640 * 3840))
        a("s_cselect_b32 s%d, 0, s%d" % (S_SW, S_SW))
        return 5
    AH = [int(x) for x in os.environ.get("K1_AHEAD", "1,1,1,2,2,2,2,2,2,2").split(",")]
    ops = []
    issued = 0
    for st in range(10):
        upto = min(20, 2 * st + 2 + AH[st])
        while issued < upto:
            ops.append((issued, half(issued)))
            if issued == 1:
                srd(a, S_WS, 42, 43, WS_END)
                srd(a, S_DBG, 40, 41, 256)
            if issued == int(os.environ.get("K1_TCH", "-1")):
                a("s_cmp_lt_u32 s%d, 4" % S_CB)
                a("s_cselect_b32 s31, 0x%x, 0" % WS_Q)
                a("s_cselect_b32 s29, 0, 1")
                a("s_lshl_b32 s32, 81920, s29")
                a("s_lshl_b32 s35, 1280, s29")
                a("s_cmp_ge_u32 s%d, 8" % S_CB)
                a("s_cselect_b32 s31, 1280, s31")
                a("s_and_b32 s29, s%d, 3" % S_CB)
                a("s_lshl_b32 s29, s29, 2")
                a("s_add_u32 s29, s29, s%d" % S_WV)
                a("s_lshl_b32 s29, s29, 1")
                a("s_mul_i32 s29, s29, s32")
                a("s_add_u32 s31, s31, s29")
                a("s_lshl_b32 s29, s%d, 2" % S_RB)
                a("s_mul_i32 s29, s29, s35")
                a("s_add_u32 s31, s31, s29")
                a("s_add_u32 s32, s32, s31")
                a("v_lshrrev_b32 v18, 4, v0")
                a("v_mul_lo_u32 v18, s35, v18")
                a("v_and_b32 v19, 15, v0")
                a("v_min_u32 v19, 9, v19")
                a("v_lshl_add_u32 v18, v19, 7, v18")
                a("buffer_load_dword v19, v18, %s, s31 offen" % sr(S_WS, 4))
                a("buffer_load_dword v19, v18, %s, s32 offen" % sr(S_WS, 4))
                ops.append((issued + 0.6, 2))
            if issued == 2 * POLL_ST + 1:
                poll_issue()
                ops.append((issued + 0.5, 1))
            issued += 1
        a("s_waitcnt vmcnt(%d)" % sum(c for h, c in ops if h > 2 * st + 1))
        if st == POLL_ST + 1:
            break
        a("s_barrier")
    assert issued == 20, "stat loads must follow the last staging load"
    left = 9 - st
    a("s_cmp_eq_u32 s%d, 0" % S_WV)
    a("s_cbranch_scc1 L1_ld_w0")
    def tail(extra):
        a("s_barrier")
        for s2 in range(st + 1, 10):
            a("s_waitcnt vmcnt(%d)" % (extra + sum(c for h, c in ops if h > 2 * s2 + 1)))
            a("s_barrier")
    tail(0)
    stamp(1)
    diag_out()
    a("s_endpgm")
    def stat_loads():
        a("buffer_load_dwordx4 %s, v%d, %s, 0 offen sc1" % (vr(ST0, 4), VSA, sr(S_WS, 4)))
        a("buffer_load_dwordx4 %s, v%d, %s, 0 offen sc1" % (vr(ST1, 4), VCA, sr(S_WS, 4)))
        a("buffer_load_dwordx4 %s, v%d, %s, s32 offen sc1" % (vr(ST2, 4), VCA, sr(S_WS, 4)))
    a("L1_ld_w0:")
    a("v_readfirstlane_b32 s31, v%d" % VFL)
    a("s_movk_i32 s32, 7680")
    a("v_and_b32 v%d, 31, v0" % VSA)
    a("v_lshlrev_b32 v%d, 4, v%d" % (VSA, VSA))
    a("v_lshrrev_b32 v%d, 5, v0" % VCA)
    a("v_lshl_add_u32 v%d, v%d, 13, v%d" % (VSA, VCA, VSA))
    a("s_lshl_b32 s29, s%d, 9" % S_RB)
    a("s_add_u32 s29, s29, 0x%x" % WS_STAT)
    a("v_add_u32 v%d, s29, v%d" % (VSA, VSA))
    a("s_mul_i32 s29, s%d, 640" % S_CB)
    a("s_add_u32 s29, s29, 0x%x" % WS_CS)
    a("v_min_u32 v%d, 39, v0" % VCA)
    a("v_lshlrev_b32 v%d, 4, v%d" % (VCA, VCA))
    a("v_add_u32 v%d, %d, v%d" % (T1, L_ST + 1024, VCA))
    a("v_add_u32 v%d, s29, v%d" % (VCA, VCA))
    a("v_lshlrev_b32 v%d, 4, v0" % T0)
    a("v_add_u32 v%d, %d, v%d" % (T0, L_ST, T0))
    a("s_cmp_lt_u32 s31, 64")
    a("s_cbranch_scc1 L1_ld_late")
    stat_loads()
    stamp(2)
    tail(3)
    a("s_barrier")
    a("L1_ld_fin:")
    a("s_waitcnt vmcnt(0)")
    a("ds_write_b128 v%d, %s" % (T0, vr(ST0, 4)))
    for i in range(4):
        a("v_add_f32 v%d, v%d, v%d" % (ST1 + i, ST1 + i, ST2 + i))
    a("ds_write_b128 v%d, %s" % (T1, vr(ST1, 4)))
    a("s_waitcnt lgkmcnt(0)")
    a("s_barrier")
    stamp(1)
    diag_out()
    a("s_endpgm")
    a("L1_ld_late:")
    poll_issue("offset:128")
    tail(1)
    a("s_barrier")
    a("s_mov_b32 s30, %d" % SPIN_MAX)
    a("L1_ld_spin:")
    a("s_waitcnt vmcnt(0)")
    a("v_readfirstlane_b32 s29, v%d" % VFL)
    a("s_cmp_ge_u32 s29, 64")
    a("s_cbranch_scc1 L1_ld_got")
    a("s_sleep 32")
    poll_issue("sc1")
    a("s_sub_u32 s30, s30, 1")
    a("s_cbranch_scc0 L1_ld_spin")
    a("L1_ld_got:")
    stat_loads()
    stamp(3)
    a("s_branch L1_ld_fin")
    a("L1_compute:")
    ACC = 4
    XF = [84, 120]
    WF = [100, 136]
    MR = 156
    C0 = 188
    AX = [208, 209]; AW = [210, 211]
    T0, T1, T2, T3 = 212, 213, 214, 215
    VSA, VCA, JUNK = 218, 219, 220
    SA_, SB_, SC_, SD_ = 216, 217, 223, 224
    NV = 228
    PRE = os.environ.get('K1_PRE', '0') == '1'
    S_WM, S_WN = 24, 25
    acc = lambda mt, t: ACC + (mt * 5 + t) * 4
    a("s_bfe_u32 s%d, s%d, 0x10001" % (S_WM, S_WV))
    a("s_and_b32 s%d, s%d, 1" % (S_WN, S_WV))
    P2, P3 = 221, 222
    a("s_load_dwordx2 s[30:31], s[0:1], %d" % KA_OUT)
    a("v_lshlrev_b32 v%d, 21, v0" % P3)
    a("s_waitcnt lgkmcnt(0)")
    srd(a, S_WS, 42, 43, WS_END)
    a("s_cmp_lg_u32 s%d, 4" % S_WV)
    a("s_cbranch_scc1 L1_notouch0")
    if os.environ.get("K1_CPF", "1") == "1":
        code_prefetch(a, S_DBG, P2, JUNK, name, "L1_spare", nmax=1)
    a("buffer_load_dword v%d, v%d, %s, 0 offen" % (JUNK, P3, sr(S_WS, 4)))
    srd(a, S_DBG, 30, 31, 2621440)
    a("buffer_load_dword v%d, v%d, %s, 0 offen" % (JUNK, P3, sr(S_DBG, 4)))
    a("L1_notouch0:")
    a("v_and_b32 v%d, 15, v0" % T0)
    a("v_lshrrev_b32 v%d, 4, v0" % T1)
    a("v_lshrrev_b32 v%d, 1, v%d" % (T2, T0))
    a("v_and_b32 v%d, 2, v%d" % (T3, T2))
    a("v_lshlrev_b32 v%d, 1, v%d" % (T3, T3))
    a("v_xor_b32 v%d, v%d, v%d" % (T2, T2, T3))
    a("v_lshlrev_b32 v%d, 1, v%d" % (T3, T1))
    a("v_xor_b32 v%d, v%d, v%d" % (T2, T2, T3))
    a("v_lshlrev_b32 v%d, 7, v%d" % (T3, T0))
    a("v_lshl_add_u32 v%d, v%d, 4, v%d" % (AX[0], T2, T3))
    a("s_lshl_b32 s32, s%d, 13" % S_WM)
    a("v_add_u32 v%d, s32, v%d" % (AX[0], AX[0]))
    a("v_xor_b32 v%d, 16, v%d" % (AX[1], AX[0]))
    a("v_mul_u32_u24 v%d, 5152, v%d" % (T2, T1))
    a("v_lshrrev_b32 v%d, 2, v%d" % (T3, T0))
    a("v_mul_u32_u24 v%d, 320, v%d" % (T3, T3))
    a("v_add_u32 v%d, v%d, v%d" % (T2, T2, T3))
    a("v_and_b32 v%d, 3, v0" % T3)
    a("v_mul_u32_u24 v%d, 40, v%d" % (T3, T3))
    a("v_add_u32 v%d, v%d, v%d" % (T2, T2, T3))
    a("s_mul_i32 s32, s%d, 160" % S_WN)
    a("s_add_u32 s32, s32, 16384")
    a("v_add_u32 v%d, s32, v%d" % (AW[0], T2))
    for i in range(80):
        a("v_mov_b32 v%d, 0" % (ACC + i))
    a("s_mov_b32 s%d, 0" % S_ST)
    a("s_lshl_b32 s26, s%d, 8" % S_WM)
    a("s_add_u32 s26, s26, %d" % L_ST)
    a("s_mul_i32 s27, s%d, 320" % S_WN)
    a("s_add_u32 s27, s27, %d" % (L_ST + 1024))
    def reads(b):
        L = []
        for t in range(5):
            for h in range(2):
                L.append("ds_read_b64_tr_b16 %s, v%d offset:%d" % (vr(WF[b] + 4 * t + 2 * h, 2), AW[0], 2560 * b + 1280 * h + 8 * t))
        X = ["ds_read_b128 %s, v%d offset:%d" % (vr(XF[b] + 4 * mt, 4), AX[b], 2048 * mt) for mt in range(4)]
        return [X[0]] + L + X[1:]
    def stat_reads(vt):
        if vt == 0:
            for mt in range(4):
                a("ds_read2st64_b32 %s, v%d offset0:0 offset1:2" % (vr(MR + 2 * mt, 2), VSA))
                if mt < 3:
                    a("v_add_u32 v%d, 64, v%d" % (VSA, VSA))
            for t in range(5):
                a("ds_read_b128 %s, v%d offset:%d" % (vr(C0 + 4 * t, 4), VCA, 16 * t))
        else:
            for mt in range(4):
                a("ds_read_b128 %s, v%d offset:%d" % (vr(MR + 8 * mt, 4), VSA, 64 * mt))
                a("ds_read_b128 %s, v%d offset:%d" % (vr(MR + 8 * mt + 4, 4), VSA, 512 + 64 * mt))
            for t in range(5):
                a("ds_read_b32 v%d, v%d offset:%d" % (C0 + t, VCA, 16 * t))
    a("s_cmp_ge_u32 s%d, 8" % S_CB)
    a("s_cbranch_scc1 L1_preV")
    for vt in (0, 1):
        sfx = "V" if vt else "Q"
        a("L1_pre%s:" % sfx)
        if vt == 0:
            a("v_lshl_add_u32 v%d, v%d, 2, s26" % (VSA, T0))
            a("v_mul_u32_u24 v%d, 80, v%d" % (VCA, T1))
            a("v_add_u32 v%d, s27, v%d" % (VCA, VCA))
        else:
            a("v_lshl_add_u32 v%d, v%d, 4, s26" % (VSA, T1))
            a("v_lshrrev_b32 v%d, 2, v%d" % (VCA, T0))
            a("v_mul_u32_u24 v%d, 80, v%d" % (VCA, VCA))
            a("v_and_b32 v%d, 3, v0" % T3)
            a("v_lshl_add_u32 v%d, v%d, 2, v%d" % (VCA, T3, VCA))
            a("v_add_u32 v%d, s27, v%d" % (VCA, VCA))
        if vt == 0:
            assert WS_KV == 0
            a("s_cmp_lt_u32 s%d, 4" % S_CB)
            a("s_cselect_b32 s31, 0x%x, 1.0" % QSCALE)
            a("s_cselect_b32 s28, 0x%x, 0" % WS_Q)
            a("s_cselect_b32 s29, 0, 1")
            a("s_lshl_b32 s34, 81920, s29")
            a("s_lshl_b32 s35, 1280, s29")
            a("s_and_b32 s29, s%d, 3" % S_CB)
            a("s_lshl_b32 s29, s29, 3")
            a("s_lshl_b32 s30, s%d, 2" % S_WN)
            a("s_add_u32 s29, s29, s30")
            a("s_mul_i32 s29, s29, s34")
            a("s_add_u32 s28, s28, s29")
            a("s_lshl_b32 s29, s%d, 2" % S_RB)
            a("s_lshl_b32 s30, s%d, 1" % S_WM)
            a("s_add_u32 s29, s29, s30")
            a("s_mul_i32 s29, s29, s35")
            a("s_add_u32 s28, s28, s29")
            a("s_add_u32 s29, s28, s35")
            a("v_mul_lo_u32 v%d, s34, v%d" % (T3, T1))
            a("v_and_b32 v%d, 8, v%d" % (T2, T0))
            a("v_add_u32 v%d, v%d, v%d" % (T2, T2, T0))
            a("v_lshl_add_u32 v%d, v%d, 4, v%d" % (SB_, T0, T3))
            a("v_lshl_add_u32 v%d, v%d, 4, v%d" % (SA_, T2, T3))
            def stores(mt, P, PB):
                so = 28 + (mt >> 1)
                a("buffer_store_dwordx4 %s, v%d, %s, s%d offen offset:%d%s" % (vr(P, 4), SA_, sr(S_WS, 4), so, 128 * (mt & 1), QM))
                a("buffer_store_dwordx4 %s, v%d, %s, s%d offen offset:%d%s" % (vr(P + 4, 4), SA_, sr(S_WS, 4), so, 128 * (mt & 1) + 512, QM))
                if mt & 1:
                    a("buffer_store_dwordx4 %s, v%d, %s, s%d offen offset:1024%s" % (vr(PB - 2, 4), SB_, sr(S_WS, 4), so, QM))
            if PRE:
                for mt in range(4):
                    stores(mt, ACC, ACC + 2)
        else:
            a("s_and_b32 s29, s%d, 3" % S_CB)
            a("s_lshl_b32 s29, s29, 3")
            a("s_lshl_b32 s30, s%d, 2" % S_WN)
            a("s_add_u32 s29, s29, s30")
            a("s_mul_i32 s28, s29, 163840")
            a("s_lshl_b32 s29, s%d, 2" % S_RB)
            a("s_lshl_b32 s30, s%d, 1" % S_WM)
            a("s_add_u32 s29, s29, s30")
            a("s_mul_i32 s29, s29, 2560")
            a("s_add_u32 s28, s28, s29")
            a("s_add_u32 s28, s28, %d" % (WS_KV + 1280))
            a("s_mov_b32 s34, 163840")
            a("v_lshrrev_b32 v%d, 2, v%d" % (T2, T0))
            a("v_mul_lo_u32 v%d, s34, v%d" % (T0, T2))
            a("v_and_b32 v%d, 3, v0" % T2)
            a("v_lshl_add_u32 v%d, v%d, 4, v%d" % (T0, T2, T0))
            VT = [SA_, SB_, SC_, SD_]
            for t in range(4):
                a("v_add_u32 v%d, %d, v%d" % (T2, t, T1))
                a("v_and_b32 v%d, 3, v%d" % (T2, T2))
                a("v_lshl_add_u32 v%d, v%d, 6, v%d" % (VT[t], T2, T0))
            def storev(u, t, P):
                a("buffer_store_dwordx4 %s, v%d, %s, s28 offen offset:%d%s" % (vr(P, 4), VT[t & 3], sr(S_WS, 4), 2560 * u + 256 * t, QM))
            if PRE:
                for u in range(2):
                    for t in range(5):
                        storev(u, t, ACC)
        a("s_barrier")
        stamp(0)
        for l in reads(0):
            a(l)
        a(".p2align 6")
        a("L1_loop%s:" % sfx)
        for b in (0, 1):
            mf = []
            for mt in range(4):
                for t in range(5):
                    c = vr(acc(mt, t), 4)
                    x, w = vr(XF[b] + 4 * mt, 4), vr(WF[b] + 4 * t, 4)
                    mf.append("v_mfma_f32_16x16x32_bf16 %s, %s, %s, %s" % ((c, x, w, c) if vt else (c, w, x, c)))
            rd = reads(1 - b)
            if b == 0:
                rd += ["s_add_u32 s%d, s%d, 1" % (S_ST, S_ST), "s_and_b32 s%d, s%d, 3" % (S_DL, S_ST),
                       "s_cselect_b32 s%d, s39, %d" % (S_DL, -3 * SLOT & 0xffffffff),
                       "v_add_u32 v%d, s%d, v%d" % (AX[0], S_DL, AX[0]), "v_add_u32 v%d, s%d, v%d" % (AW[0], S_DL, AW[0]),
                       "v_add_u32 v%d, s%d, v%d" % (AX[1], S_DL, AX[1])]
                a("s_waitcnt lgkmcnt(0)")
            else:
                a("s_waitcnt lgkmcnt(0)")
                a(mf.pop(0))
                a("s_barrier")
            for m in mf:
                a(m)
                if rd:
                    a(rd.pop(0))
            assert not rd
        a("s_cmp_lt_u32 s%d, 10" % S_ST)
        a("s_cbranch_scc1 L1_loop%s" % sfx)
        stamp(1)
        a("s_waitcnt lgkmcnt(0)")
        a("s_barrier")
        stat_reads(vt)
        pkfma = "v_pk_fma_f32 %s, %s, %s, %s op_sel:[%d,%d,0] op_sel_hi:[%d,%d,1] neg_lo:[1,0,0] neg_hi:[1,0,0]"
        pkmul = "v_pk_mul_f32 %s, %s, %s op_sel:[%d,0] op_sel_hi:[%d,1]"
        if vt == 0:
            a("s_waitcnt vmcnt(0) lgkmcnt(0)")
            stamp(4)
            for mt in range(4):
                a("v_mul_f32 v%d, s31, v%d" % (MR + 2 * mt + 1, MR + 2 * mt + 1))
            for mt in range(4):
                mr = vr(MR + 2 * mt, 2)
                for t in range(5):
                    for e in (0, 2):
                        c = vr(acc(mt, t) + e, 2)
                        a(pkfma % (c, mr, vr(C0 + 4 * t + e, 2), c, 0, 0, 0, 1))
                for t in range(5):
                    for e in (0, 2):
                        c = vr(acc(mt, t) + e, 2)
                        a(pkmul % (c, mr, c, 1, 1))
                P = 84 + 8 * mt
                PB = 116 + 2 * mt
                for t in range(5):
                    d = P + 2 * t if t < 4 else PB
                    a("v_cvt_pk_bf16_f32 v%d, v%d, v%d" % (d, acc(mt, t), acc(mt, t) + 1))
                    a("v_cvt_pk_bf16_f32 v%d, v%d, v%d" % (d + 1, acc(mt, t) + 2, acc(mt, t) + 3))
                stores(mt, P, PB)
        else:
            a("s_waitcnt vmcnt(0) lgkmcnt(0)")
            stamp(4)
            for u in range(2):
                for mt in (2 * u, 2 * u + 1):
                    for t in range(5):
                        for e in (0, 2):
                            c = vr(acc(mt, t) + e, 2)
                            a(pkfma % (c, vr(MR + 8 * mt + e, 2), vr(C0 + (t & ~1), 2), c, 0, t & 1, 1, t & 1))
                    for t in range(5):
                        for e in (0, 2):
                            c = vr(acc(mt, t) + e, 2)
                            a(pkmul % (c, vr(MR + 8 * mt + 4 + e, 2), c, 0, 1))
                for t in range(5):
                    P = 84 + 20 * u + 4 * t
                    for h in range(2):
                        mt = 2 * u + h
                        a("v_cvt_pk_bf16_f32 v%d, v%d, v%d" % (P + 2 * h, acc(mt, t), acc(mt, t) + 1))
                        a("v_cvt_pk_bf16_f32 v%d, v%d, v%d" % (P + 2 * h + 1, acc(mt, t) + 2, acc(mt, t) + 3))
                    storev(u, t, P)
        stamp(2)
        diag_out()
        a("s_endpgm")
    a("L1_spare:")
    nv2 = gen_spare(a, stamp, diag_out)
    a("L1_end:")
    a("s_endpgm")
    return kernel_desc(name, max(NV, nv2), 80)
```

```python
from common import *
import os
S_X, S_W, S_WS, S_DBG = 8, 12, 16, 44
S_WV = 20
XM = ' ' + os.environ.get('K1_XM', 'sc1')
L_CP = 65536
L_CNT = 66560

def ln_scalars(a, SUM, SQ, M, RS, T):
    a("v_mul_f32 v%d, 0x%x, v%d" % (M, f2u(1.0 / 640), SUM))
    a("v_mul_f32 v%d, 0x%x, v%d" % (T, f2u(1.0 / 640), SQ))
    a("v_fma_f32 v%d, -v%d, v%d, v%d" % (T, M, M, T))
    a("v_max_f32 v%d, 0, v%d" % (T, T))
    bf16_round(a, T, T)
    a("v_add_f32 v%d, 0x%x, v%d" % (T, f2u(1e-5), T))
    bf16_round(a, T, T)
    a("v_sqrt_f32 v%d, v%d" % (T, T))
    bf16_round(a, M, M)
    bf16_round(a, T, T)
    a("v_rcp_f32 v%d, v%d" % (RS, T))

def row16_sum(a, regs):
    for mode in ("quad_perm:[1,0,3,2]", "quad_perm:[2,3,0,1]", "row_half_mirror", "row_mirror"):
        if len(regs) < 3:
            a("s_nop %d" % (2 - len(regs)))
        for r in regs:
            a("v_add_f32_dpp v%d, v%d, v%d %s row_mask:0xf bank_mask:0xf" % (r, r, r, mode))

def gen_spare(a, stamp, diag_out):
    S_XC, S_IDX = 21, 22
    S_G = 24
    a("s_load_dwordx2 s[36:37], s[0:1], %d" % KA_WR)
    a("s_load_dwordx2 s[78:79], s[0:1], %d" % KA_WO)
    a("s_and_b32 s%d, s2, 7" % S_XC)
    a("s_lshr_b32 s%d, s2, 3" % S_IDX)
    a("v_mov_b32 v3, %d" % L_CNT)
    def signal1(T0, T1):
        n = len(a.lines)
        a("v_mov_b32 v%d, 1" % T1)
        a("s_mov_b64 exec, 1")
        a("ds_add_rtn_u32 v%d, v3, v%d offset:4" % (T0, T1))
        a("s_mov_b64 exec, 3")
        a("s_waitcnt lgkmcnt(0)")
        a("v_readfirstlane_b32 s38, v%d" % T0)
        a("v_lshlrev_b32 v%d, 7, v0" % T0)
        a("s_cmp_lg_u32 s38, 4")
        a("s_cbranch_scc1 LS_ns%d" % n)
        a("buffer_atomic_add v%d, v%d, %s, 0 offen sc1" % (T1, T0, sr(S_DBG, 4)))
        a("LS_ns%d:" % n)
        a("s_mov_b64 exec, -1")
    a("s_cmp_ge_u32 s%d, 4" % S_WV)
    a("s_cbranch_scc1 LS_cw")
    X = [4, 24]
    WR = 44
    F = 64
    SU = [104, 105]; SQ = [106, 107]; M = [108, 110]; RS = [109, 111]; RR = [112, 113]
    VA, VB, T0, T1, ROW, T2 = 114, 115, 116, 117, 118, 119
    a("s_lshr_b32 s38, s%d, 1" % S_XC)
    a("s_lshl_b32 s38, s38, 9")
    a("s_and_b32 s39, s%d, 1" % S_XC)
    a("s_lshl_b32 s39, s39, 3")
    a("s_add_u32 s39, s39, s%d" % S_IDX)
    a("s_lshl_b32 s39, s39, 5")
    a("s_add_u32 s38, s38, s39")
    a("s_lshl_b32 s39, s%d, 3" % S_WV)
    a("s_add_u32 s38, s38, s39")
    a("v_lshrrev_b32 v%d, 4, v0" % ROW)
    a("v_add_u32 v%d, s38, v%d" % (ROW, ROW))
    a("v_and_b32 v%d, 15, v0" % T0)
    a("v_lshlrev_b32 v%d, 4, v%d" % (VB, T0))
    a("v_mul_u32_u24 v%d, 1280, v%d" % (VA, ROW))
    a("v_add_u32 v%d, v%d, v%d" % (VA, VA, VB))
    for i in range(4):
        a("v_mov_b32 v%d, 0" % (F + i))
    a("ds_write_b128 v3, %s" % vr(F, 4))
    a("s_movk_i32 s39, 5120")
    a("s_waitcnt lgkmcnt(0)")
    srd(a, S_X, 4, 5, 2621440)
    for j in range(5):
        a("buffer_load_dwordx4 %s, v%d, %s, 0 offen offset:%d" % (vr(X[0] + 4 * j, 4), VA, sr(S_X, 4), 256 * j))
    for j in range(5):
        a("buffer_load_dwordx4 %s, v%d, %s, s39 offen offset:%d" % (vr(X[1] + 4 * j, 4), VA, sr(S_X, 4), 256 * j))
    srd(a, S_W, 36, 37, 1280)
    for j in range(5):
        a("buffer_load_dwordx4 %s, v%d, %s, 0 offen offset:%d" % (vr(WR + 4 * j, 4), VB, sr(S_W, 4), 256 * j))
    srd(a, S_WS, 42, 43, WS_END)
    srd(a, S_DBG, 40, 41, 256)
    a("s_barrier")
    a("s_mov_b32 s38, 0x3f803f80")
    for r in SU + SQ + RR:
        a("v_mov_b32 v%d, 0" % r)
    a("v_lshl_add_u32 v%d, v%d, 2, v%d" % (ROW, T0, ROW))
    a("v_cmp_eq_u32 s[32:33], 1, v%d" % T0)
    a("v_cmp_gt_u32 s[34:35], 2, v%d" % T0)
    a("v_lshlrev_b32 v%d, 2, v%d" % (T2, ROW))
    a("s_waitcnt vmcnt(5)")
    stamp(0)
    for j in range(20):
        for p in range(2):
            a("v_dot2c_f32_bf16 v%d, s38, v%d" % (SU[p], X[p] + j))
            a("v_dot2c_f32_bf16 v%d, v%d, v%d" % (SQ[p], X[p] + j, X[p] + j))
    a("s_nop 2")
    row16_sum(a, SU + SQ)
    for p in range(2):
        ln_scalars(a, SU[p], SQ[p], M[p], RS[p], T0)
    a("s_mov_b32 s38, 0x%x" % WS_STAT)
    a("s_mov_b32 s39, 0x%x" % (WS_STAT + 8192))
    a("v_cndmask_b32 v%d, v%d, v%d, s[32:33]" % (T0, M[0], M[1]))
    a("v_cndmask_b32 v%d, v%d, v%d, s[32:33]" % (T1, RS[0], RS[1]))
    a("s_mov_b64 exec, s[34:35]")
    a("buffer_store_dword v%d, v%d, %s, s38 offen sc1" % (T0, T2, sr(S_WS, 4)))
    a("buffer_store_dword v%d, v%d, %s, s39 offen sc1" % (T1, T2, sr(S_WS, 4)))
    a("s_mov_b64 exec, -1")
    for p in range(2):
        mr = vr(M[p], 2)
        for j in range(20):
            a("v_lshlrev_b32 v%d, 16, v%d" % (F + 2 * j, X[p] + j))
            a("v_and_b32 v%d, 0xffff0000, v%d" % (F + 2 * j + 1, X[p] + j))
        for j in range(20):
            a("v_pk_add_f32 %s, %s, %s op_sel:[0,0] op_sel_hi:[1,0] neg_lo:[0,1] neg_hi:[0,1]" % (vr(F + 2 * j, 2), vr(F + 2 * j, 2), mr))
        for j in range(20):
            a("v_cvt_pk_bf16_f32 v%d, v%d, v%d" % (X[p] + j, F + 2 * j, F + 2 * j + 1))
        for j in range(20):
            a("v_lshlrev_b32 v%d, 16, v%d" % (F + 2 * j, X[p] + j))
            a("v_and_b32 v%d, 0xffff0000, v%d" % (F + 2 * j + 1, X[p] + j))
        for j in range(20):
            a("v_pk_mul_f32 %s, %s, %s op_sel:[0,1] op_sel_hi:[1,1]" % (vr(F + 2 * j, 2), vr(F + 2 * j, 2), mr))
        for j in range(20):
            a("v_cvt_pk_bf16_f32 v%d, v%d, v%d" % (X[p] + j, F + 2 * j, F + 2 * j + 1))
        if p == 0:
            a("s_waitcnt vmcnt(0)")
            signal1(T0, T1)
            stamp(1)
        for j in range(20):
            a("v_dot2c_f32_bf16 v%d, v%d, v%d" % (RR[p], X[p] + j, WR + j))
    a("s_nop 2")
    row16_sum(a, RR)
    a("v_cndmask_b32 v%d, v%d, v%d, s[32:33]" % (RR[0], RR[0], RR[1]))
    bf16_round(a, RR[0], RR[0])
    a("v_ashrrev_i32 v%d, 31, v%d" % (T1, RR[0]))
    a("v_or_b32 v%d, 0x80000000, v%d" % (T1, T1))
    a("v_xor_b32 v%d, v%d, v%d" % (RR[0], RR[0], T1))
    a("v_and_b32 v%d, 0xffff0000, v%d" % (RR[0], RR[0]))
    a("v_sub_u32 v%d, 0xffff, v%d" % (T1, ROW))
    a("v_or_b32 v%d, v%d, v%d" % (RR[0], RR[0], T1))
    a("s_mov_b32 s49, 0x%x" % WS_KEY)
    a("s_mov_b64 exec, s[34:35]")
    a("buffer_store_dword v%d, v%d, %s, s49 offen sc1" % (RR[0], T2, sr(S_WS, 4)))
    a("s_mov_b64 exec, -1")
    def xn_stores():
        a("s_mov_b64 exec, -1")
        a("s_mov_b32 s39, 0x%x" % (WS_XN + 5120))
        a("s_mov_b32 s49, 0x%x" % WS_XN)
        for p in range(2):
            for j in range(5):
                a("buffer_store_dwordx4 %s, v%d, %s, s%d offen offset:%d%s" % (vr(X[p] + 4 * j, 4), VA, sr(S_WS, 4), (49, 39)[p], 256 * j, XM))
    stamp(2)
    a("v_mov_b32 v%d, 1" % T1)
    a("s_waitcnt vmcnt(0)")
    a("s_mov_b64 exec, 1")
    a("ds_add_rtn_u32 v%d, v3, v%d offset:8" % (T0, T1))
    a("s_waitcnt lgkmcnt(0)")
    a("v_readfirstlane_b32 s38, v%d" % T0)
    a("v_mov_b32 v%d, 192" % T0)
    a("s_cmp_eq_u32 s38, 3")
    a("s_mov_b32 s38, 0")
    a("s_cbranch_scc0 LS_xn")
    a("buffer_atomic_add v%d, v%d, %s, 0 offen sc0 sc1" % (T1, T0, sr(S_DBG, 4)))
    a("s_mov_b32 s38, 1")
    a("LS_xn:")
    xn_stores()
    a("s_cmp_eq_u32 s38, 0")
    a("s_cbranch_scc1 LS_rdone")
    a("s_waitcnt vmcnt(10)")
    a("v_readfirstlane_b32 s38, v%d" % T1)
    a("s_cmp_lg_u32 s38, 63")
    a("s_cbranch_scc1 LS_rdone")
    a("s_mov_b64 exec, -1")
    stamp(3)
    K = 64
    M1, M2, W = 96, 100, 104
    a("v_lshlrev_b32 v%d, 4, v0" % VB)
    a("s_mov_b32 s38, 0x%x" % WS_KEY)
    a("s_mov_b32 s39, 0x%x" % (WS_KEY + 4096))
    for j in range(8):
        a("buffer_load_dwordx4 %s, v%d, %s, s%d offen offset:%d sc1" % (vr(K + 4 * j, 4), VB, sr(S_WS, 4), 38 + (j >> 2), 1024 * (j & 3)))
    a("s_mov_b32 s39, 0")
    a("v_mov_b32 v%d, 0" % T2)
    a("s_waitcnt vmcnt(0)")
    stamp(4)
    a("LS_top2:")
    for c in range(4):
        a("v_max_u32 v%d, v%d, v%d" % (M1 + c, K + 8 * c, K + 8 * c + 1))
        a("v_min_u32 v%d, v%d, v%d" % (M2 + c, K + 8 * c, K + 8 * c + 1))
    for j in range(2, 8):
        for c in range(4):
            a("v_med3_u32 v%d, v%d, v%d, v%d" % (M2 + c, M1 + c, M2 + c, K + 8 * c + j))
            a("v_max_u32 v%d, v%d, v%d" % (M1 + c, M1 + c, K + 8 * c + j))
    for x, y in ((0, 1), (2, 3), (0, 2)):
        a("v_min_u32 v%d, v%d, v%d" % (W, M1 + x, M1 + y))
        a("v_max_u32 v%d, v%d, v%d" % (M1 + x, M1 + x, M1 + y))
        a("v_max3_u32 v%d, v%d, v%d, v%d" % (M2 + x, W, M2 + x, M2 + y))
    a("LS_top:")
    first = True
    for mode in ("quad_perm:[1,0,3,2] row_mask:0xf", "quad_perm:[2,3,0,1] row_mask:0xf", "row_half_mirror row_mask:0xf", "row_mirror row_mask:0xf",
                 "row_bcast:15 row_mask:0xa", "row_bcast:31 row_mask:0xc"):
        a("s_nop 1")
        src = M1 if first else W
        a("v_max_u32_dpp v%d, v%d, v%d %s bank_mask:0xf" % (W, src, src, mode))
        first = False
    a("s_mov_b32 m0, s39")
    a("v_readlane_b32 s49, v%d, 63" % W)
    a("s_add_u32 s39, s39, 1")
    a("s_cmp_lt_u32 s39, 8")
    a("v_cmp_eq_u32 vcc, s49, v%d" % M1)
    a("v_writelane_b32 v%d, s49, m0" % T2)
    a("s_cbranch_scc0 LS_topd")
    a("v_cndmask_b32 v%d, v%d, v%d, vcc" % (M1, M1, M2))
    a("v_cndmask_b32 v%d, v%d, 0, vcc" % (M2, M2))
    a("v_cmp_eq_u32 vcc, 0, v%d" % M1)
    a("s_cbranch_vccz LS_top")
    for j0 in range(0, 32, 4):
        for j in range(4):
            a("v_cmp_gt_u32 s[%d:%d], s49, v%d" % (24 + 2 * j, 25 + 2 * j, K + j0 + j))
        for j in range(4):
            a("v_cndmask_b32 v%d, 0, v%d, s[%d:%d]" % (K + j0 + j, K + j0 + j, 24 + 2 * j, 25 + 2 * j))
    a("s_branch LS_top2")
    a("LS_topd:")
    a("v_mov_b32 v%d, v%d" % (VA, T2))
    a("v_and_b32 v%d, 0xffff, v%d" % (T0, VA))
    a("v_sub_u32 v%d, 0xffff, v%d" % (T0, T0))
    a("v_and_b32 v%d, 0x7ff, v%d" % (T0, T0))
    a("v_lshlrev_b32 v%d, 2, v0" % VB)
    a("s_mov_b64 exec, 0xff")
    a("v_ashrrev_i32 v%d, 31, v%d" % (T1, VA))
    a("v_not_b32 v%d, v%d" % (T1, T1))
    a("v_or_b32 v%d, 0x80000000, v%d" % (T1, T1))
    a("v_xor_b32 v%d, v%d, v%d" % (VA, VA, T1))
    a("v_and_b32 v%d, 0xffff0000, v%d" % (VA, VA))
    a("v_mul_f32 v%d, 0xbfb8aa3b, v%d" % (VA, VA))
    a("v_exp_f32 v%d, v%d" % (VA, VA))
    a("s_mov_b32 s38, 0x%x" % WS_SEL)
    a("v_add_f32 v%d, 1.0, v%d" % (VA, VA))
    a("v_rcp_f32 v%d, v%d" % (VA, VA))
    a("buffer_store_dword v%d, v%d, %s, s38 offen" % (T0, VB, sr(S_WS, 4)))
    bf16_round(a, VA, VA)
    a("buffer_store_dword v%d, v%d, %s, s38 offen offset:32" % (VA, VB, sr(S_WS, 4)))
    a("LS_rdone:")
    stamp(5)
    diag_out()
    a("s_endpgm")
    a("LS_cw:")
    a("s_setprio 2")
    CW = 4
    CA = 44
    VC, VD, T0, T1, TR = 114, 115, 116, 117, 118
    a("s_sub_u32 s48, s%d, 4" % S_WV)
    a("s_lshr_b32 s38, s%d, 1" % S_XC)
    a("s_lshl_b32 s38, s38, 3")
    a("s_add_u32 s38, s38, s%d" % S_IDX)
    a("s_min_u32 s38, s38, 29")
    a("s_and_b32 s35, s38, 1")
    a("s_lshr_b32 s38, s38, 1")
    a("s_lshl_b32 s38, s38, 7")
    a("s_and_b32 s39, s%d, 1" % S_XC)
    a("s_mul_i32 s39, s39, 1920")
    a("s_add_u32 s23, s38, s39")
    a("s_lshl_b32 s39, s35, 2")
    a("s_add_u32 s39, s39, s48")
    a("s_mul_i32 s39, s39, %d" % (80 * 3840))
    a("s_add_u32 s38, s23, s39")
    a("v_lshrrev_b32 v%d, 3, v0" % T0)
    a("v_and_b32 v%d, 7, v0" % T1)
    a("v_lshlrev_b32 v%d, 4, v%d" % (T1, T1))
    a("v_mul_u32_u24 v%d, 3840, v%d" % (VC, T0))
    a("v_add_u32 v%d, v%d, v%d" % (VC, VC, T1))
    a("s_waitcnt lgkmcnt(0)")
    srd(a, S_W, 6, 7, 2457600)
    for j in range(10):
        a("buffer_load_dwordx4 %s, v%d, %s, s38 offen" % (vr(CW + 4 * j, 4), VC, sr(S_W, 4)))
        if j < 9:
            a("s_add_u32 s38, s38, %d" % (8 * 3840))
    srd(a, S_WS, 42, 43, WS_END)
    srd(a, S_G, 78, 79, 819200)
    a("s_cmp_lg_u32 s48, 0")
    a("s_cselect_b32 s34, 0x40000, 0")
    a("v_add_u32 v%d, s34, v0" % TR)
    code_prefetch(a, S_DBG, T0, 119, "L1_spare", "L1_end", vlane="v%d" % TR, nmax=1)
    a("s_cmp_ge_u32 s%d, 2" % S_IDX)
    a("s_cselect_b32 s34, 0x40000, s34")
    a("s_lshl_b32 s33, s%d, 6" % S_IDX)
    a("s_add_u32 s34, s34, s33")
    a("v_add_u32 v%d, s34, v0" % TR)
    code_prefetch(a, S_DBG, T0, 119, "L1_end", "L_code_end", vlane="v%d" % TR, nmax=1)
    srd(a, S_DBG, 40, 41, 256)
    a("s_lshl_b32 s34, s48, 6")
    a("v_add_u32 v%d, s34, v0" % TR)
    a("v_lshlrev_b32 v%d, 21, v%d" % (T0, TR))
    a("v_mov_b32 v%d, 0" % T1)
    a("buffer_load_dword v119, v%d, %s, 0 offen" % (T0, sr(S_WS, 4)))
    a("buffer_load_dword v119, v%d, %s, 0 offen" % (T0, sr(S_G, 4)))
    a("buffer_atomic_add v%d, v%d, %s, 0 offen offset:64 sc1" % (T1, T0, sr(S_DBG, 4)))
    NPF = 5
    a("s_barrier")
    a("s_cmp_ge_u32 s2, 40")
    a("s_cbranch_scc1 LS_noclr")
    for i in range(4):
        a("v_mov_b32 v%d, 0" % (CA + i))
    a("s_lshl_b32 s38, s2, 2")
    a("s_add_u32 s38, s38, s48")
    a("s_lshl_b32 s38, s38, 10")
    a("s_add_u32 s38, s38, 0x%x" % WS_UPD)
    a("v_lshlrev_b32 v%d, 4, v0" % T1)
    a("buffer_store_dwordx4 %s, v%d, %s, s38 offen sc1" % (vr(CA, 4), T1, sr(S_WS, 4)))
    a("LS_noclr:")
    a("s_sub_u32 s38, s2, 40")
    a("s_cmp_ge_u32 s38, 2")
    a("s_cbranch_scc1 LS_noclr2")
    a("s_lshl_b32 s38, s38, 2")
    a("s_add_u32 s38, s38, s48")
    a("s_lshl_b32 s38, s38, 13")
    a("s_add_u32 s38, s38, 0x%x" % WS_FLG)
    a("v_lshlrev_b32 v%d, 7, v0" % T1)
    a("v_mov_b32 v%d, 0" % CA)
    a("buffer_store_dword v%d, v%d, %s, s38 offen sc1" % (CA, T1, sr(S_WS, 4)))
    a("LS_noclr2:")
    a("s_waitcnt vmcnt(%d)" % NPF)
    a("LS_cs:")
    stamp(0)
    F = 64
    for j in range(10):
        for d in range(4):
            if j == 0:
                a("v_lshlrev_b32 v%d, 16, v%d" % (CA + 2 * d, CW + d))
                a("v_and_b32 v%d, 0xffff0000, v%d" % (CA + 2 * d + 1, CW + d))
            else:
                a("v_lshlrev_b32 v%d, 16, v%d" % (F + 2 * d, CW + 4 * j + d))
                a("v_and_b32 v%d, 0xffff0000, v%d" % (F + 2 * d + 1, CW + 4 * j + d))
        if j:
            for d in range(4):
                a("v_pk_add_f32 %s, %s, %s" % (vr(CA + 2 * d, 2), vr(CA + 2 * d, 2), vr(F + 2 * d, 2)))
    a("s_nop 0")
    for mode in ("row_ror:8",):
        for d in range(8):
            a("v_add_f32_dpp v%d, v%d, v%d %s row_mask:0xf bank_mask:0xf" % (CA + d, CA + d, CA + d, mode))
    for d in range(4):
        a("v_permlane32_swap_b32 v%d, v%d" % (CA + d, CA + 4 + d))
    for d in range(4):
        a("v_add_f32 v%d, v%d, v%d" % (CA + d, CA + d, CA + 4 + d))
    a("s_nop 0")
    for d in range(2):
        a("v_permlane16_swap_b32 v%d, v%d" % (CA + d, CA + 2 + d))
    a("s_nop 0")
    for d in range(2):
        a("v_add_f32 v%d, v%d, v%d" % (CA + d, CA + d, CA + 2 + d))
    a("s_lshl_b32 s38, s48, 8")
    a("s_add_u32 s38, s38, %d" % L_CP)
    a("v_and_b32 v%d, 7, v0" % T0)
    a("v_lshlrev_b32 v%d, 5, v%d" % (T0, T0))
    a("v_lshrrev_b32 v%d, 4, v0" % T1)
    a("v_lshl_add_u32 v%d, v%d, 3, v%d" % (T0, T1, T0))
    a("v_add_u32 v%d, s38, v%d" % (T0, T0))
    a("v_mov_b32 v%d, 1" % T1)
    a("ds_write_b64 v%d, %s" % (T0, vr(CA, 2)))
    a("s_mov_b64 exec, 1")
    a("s_waitcnt lgkmcnt(0)")
    a("ds_add_rtn_u32 v%d, v3, v%d" % (T0, T1))
    a("s_mov_b64 exec, -1")
    a("s_waitcnt lgkmcnt(0)")
    a("v_readfirstlane_b32 s38, v%d" % T0)
    a("s_cmp_lg_u32 s38, 3")
    a("s_cbranch_scc1 LS_cs_done")
    a("v_lshlrev_b32 v%d, 2, v0" % T0)
    a("v_add_u32 v%d, %d, v%d" % (T1, L_CP, T0))
    for j in range(4):
        a("ds_read_b32 v%d, v%d offset:%d" % (F + j, T1, 256 * j))
    a("s_lshl_b32 s38, s23, 1")
    a("s_mul_i32 s39, s35, 7680")
    a("s_add_u32 s38, s38, s39")
    a("s_add_u32 s38, s38, 0x%x" % WS_CS)
    a("s_waitcnt lgkmcnt(0)")
    a("v_add_f32 v%d, v%d, v%d" % (F, F, F + 1))
    a("v_add_f32 v%d, v%d, v%d" % (F + 2, F + 2, F + 3))
    a("v_add_f32 v%d, v%d, v%d" % (F, F, F + 2))
    a("buffer_store_dword v%d, v%d, %s, s38 offen sc1" % (F, T0, sr(S_WS, 4)))
    a("s_waitcnt vmcnt(0)")
    signal1(T0, T1)
    a("LS_cs_done:")
    stamp(1)
    a("s_cmp_lg_u32 s%d, 7" % S_WV)
    a("s_cbranch_scc1 LS_end")
    a("s_setprio 0")
    a("s_lshr_b32 s36, s2, 2")
    a("s_and_b32 s48, s2, 3")
    a("s_lshr_b32 s38, s36, 1")
    a("s_mul_i32 s38, s38, 160")
    a("s_and_b32 s39, s36, 1")
    a("s_mul_i32 s39, s39, %d" % (320 * 1280))
    a("s_add_u32 s38, s38, s39")
    a("s_mul_i32 s39, s48, %d" % (80 * 1280))
    a("s_add_u32 s38, s38, s39")
    a("s_mov_b32 s39, 0")
    a("s_movk_i32 s37, %d" % (1280 - 160))
    a("v_lshlrev_b32 v%d, 4, v0" % T1)
    a("v_mul_u32_u24 v%d, 6554, v0" % TR)
    a("s_mov_b32 s49, 13")
    a("LS_wo_ld:")
    a("v_lshrrev_b32 v%d, 16, v%d" % (T0, TR))
    a("v_mad_u32_u24 v%d, v%d, s37, v%d" % (VD, T0, T1))
    a("s_mov_b32 m0, s39")
    a("v_add_u32 v%d, %d, v%d" % (TR, 64 * 6554, TR))
    a("s_cmp_eq_u32 s49, 1")
    a("s_cselect_b32 exec_hi, 0, -1")
    a("s_add_u32 s39, s39, 1024")
    a("buffer_load_dwordx4 v%d, %s, s38 offen lds" % (VD, sr(S_G, 4)))
    a("s_add_u32 s38, s38, 1024")
    a("s_sub_u32 s49, s49, 1")
    a("s_cmp_lg_u32 s49, 0")
    a("s_cbranch_scc1 LS_wo_ld")
    a("s_mov_b64 exec, -1")
    a("v_bfe_u32 v%d, v0, 4, 1" % T0)
    a("v_bfe_u32 v%d, v0, 2, 2" % T1)
    a("v_mul_u32_u24 v%d, 160, v%d" % (TR, T1))
    a("v_and_b32 v%d, 3, v0" % T1)
    a("v_mul_u32_u24 v%d, 40, v%d" % (T1, T1))
    a("v_add_u32 v%d, v%d, v%d" % (TR, TR, T1))
    a("v_lshrrev_b32 v%d, 5, v0" % T1)
    a("v_lshl_add_u32 v%d, v%d, 3, v%d" % (TR, T1, TR))
    a("v_mul_u32_u24 v%d, 6400, v%d" % (VC, T0))
    a("v_add_u32 v%d, v%d, v%d" % (VC, VC, TR))
    a("v_mul_u32_u24 v%d, 640, v%d" % (T0, T0))
    a("v_add_u32 v%d, v%d, v%d" % (TR, TR, T0))
    a("v_and_b32 v%d, 31, v0" % VD)
    a("v_lshlrev_b32 v%d, 4, v%d" % (VD, VD))
    a("v_lshl_add_u32 v%d, v%d, 10, v%d" % (VD, T1, VD))
    a("s_lshr_b32 s36, s2, 3")
    a("s_mul_i32 s36, s36, 102400")
    a("s_add_u32 s36, s36, 0x%x" % WS_WOT)
    a("s_and_b32 s37, s2, 7")
    a("s_mul_i32 s38, s37, 10240")
    a("s_add_u32 s38, s38, s36")
    a("s_lshr_b32 s39, s37, 1")
    a("s_mul_i32 s39, s39, 5120")
    a("s_and_b32 s37, s37, 1")
    a("s_lshl_b32 s37, s37, 9")
    a("s_add_u32 s39, s39, s37")
    a("s_add_u32 s39, s39, s36")
    a("s_add_u32 s39, s39, %d" % (16 * 5120))
    a("s_waitcnt vmcnt(0)")
    for n in range(5):
        B = 4 + 12 * n
        for ps in range(3):
            if n < 4:
                a("ds_read_b64_tr_b16 %s, v%d offset:%d" % (vr(B + 4 * ps, 2), TR, 3200 * n + 16 * ps))
                a("ds_read_b64_tr_b16 %s, v%d offset:%d" % (vr(B + 2 + 4 * ps, 2), TR, 3200 * n + 16 * ps + 1280))
            else:
                a("ds_read_b64_tr_b16 %s, v%d offset:%d" % (vr(B + 4 * ps, 2), VC, 2560 + 16 * ps))
                a("ds_read_b64_tr_b16 %s, v%d offset:%d" % (vr(B + 2 + 4 * ps, 2), VC, 2560 + 16 * ps + 3200))
        if n == 4:
            a("s_mov_b32 s38, s39")
        elif n == 2:
            a("s_add_u32 s38, s38, 5120")
        o = 512 * (n & 1)
        a("s_add_u32 s37, s38, 4096")
        a("s_waitcnt lgkmcnt(0)")
        a("buffer_store_dwordx4 %s, v%d, %s, s38 offen offset:%d%s" % (vr(B, 4), VD, sr(S_WS, 4), o, XM))
        a("buffer_store_dwordx4 %s, v%d, %s, s38 offen offset:%d%s" % (vr(B + 4, 4), VD, sr(S_WS, 4), o + 2048, XM))
        a("s_mov_b32 exec_hi, 0")
        a("buffer_store_dwordx4 %s, v%d, %s, s37 offen offset:%d%s" % (vr(B + 8, 4), VD, sr(S_WS, 4), o, XM))
        a("s_mov_b64 exec, -1")
    a("LS_end:")
    stamp(5)
    diag_out()
    a("s_endpgm")
    return 120
```

```python
from common import *
import os
DIAG = os.environ.get("DIAG")
RT = os.environ.get("RT")
K2_PRIO = os.environ.get("K2_PRIO", "5,7,99")
K2_K0 = int(os.environ.get("K2_K0", "3"))
K2_NW = 12
L_MARK = 10240
L_W0, L_W1 = 11264, 92160
L_EX = 62464
L_GX = 143360
L_Y = 0
MARK = 0xffff7fff
SPIN = 1 << 18

def gen_k2(a, name="attn_kernel"):
    QBW, NG, KS, NT, UN = 2, 4, 2, 32, int(os.environ.get('K2_UN', '4'))
    NIT = NT // UN
    r = [4]
    def alloc(n):
        b = r[0]; r[0] += (n + 1) // 2 * 2; return b
    QA = [alloc(4) for _ in range(QBW)]
    QB = [alloc(2) for _ in range(QBW)]
    KA, KB = alloc(4), alloc(2)
    V0, V1 = alloc(4), alloc(4)
    P0, P1 = alloc(4), alloc(4)
    SA, SB = alloc(16), alloc(16)
    O = [alloc(16) for _ in range(QBW)]
    AKA, AKB, AV, LANE = alloc(1), r[0] - 1, alloc(1), r[0] - 1
    T0, T1, T2, T3 = alloc(1), r[0] - 1, alloc(1), r[0] - 1
    M = [alloc(1), r[0] - 1]
    AV1 = alloc(1)
    NV = r[0]
    S_KV, S_Q = 8, 12
    S_H, S_QB, S_W, S_T = 16, 17, 18, 19
    S_VM, S_HI = 20, 22
    S_IT, S_FB, S_KS, S_G = 24, 25, 26, 27
    S_TMP = 28
    qk1 = lambda S, q: a("v_mfma_f32_32x32x16_bf16 %s, %s, %s, 0" % (vr(S, 16), vr(KA, 4), vr(QA[q], 4)))
    qk2 = lambda S, q: a("v_mfma_f32_32x32x8_bf16 %s, %s, %s, %s" % (vr(S, 16), vr(KB, 2), vr(QB[q], 2), vr(S, 16)))
    pv0 = lambda q: a("v_mfma_f32_32x32x16_bf16 %s, %s, %s, %s" % (vr(O[q], 16), vr(V0, 4), vr(P0, 4), vr(O[q], 16)))
    pv1 = lambda q: a("v_mfma_f32_32x32x16_bf16 %s, %s, %s, %s" % (vr(O[q], 16), vr(V1, 4), vr(P1, 4), vr(O[q], 16)))
    rka = lambda t: a("ds_read_b128 %s, v%d offset:%d" % (vr(KA, 4), AKA, t * 2560))
    rkb = lambda t: a("ds_read_b32 v%d, v%d offset:%d" % (KB, AKB, t * 2560 + 1024))
    rv0 = lambda t: a("ds_read_b128 %s, v%d offset:%d" % (vr(V0, 4), AV, t * 2560 + 1280))
    rv1 = lambda t: a("ds_read_b128 %s, v%d offset:%d" % (vr(V1, 4), AV1, t * 2560 + 1280))
    mon = lambda: a("s_mov_b64 exec, %s" % sr(S_VM, 2))
    moff = lambda: a("s_mov_b64 exec, -1")
    wl = lambda k: a("s_waitcnt lgkmcnt(%d)" % k)
    def diag(regs, base):
        if DIAG:
            a("s_memtime s[46:47]")
            a("s_memrealtime s[48:49]")
            a("s_waitcnt lgkmcnt(0)")
            a("s_sub_u32 s44, s44, s40")
            a("s_sub_u32 s46, s46, s40")
            a("s_sub_u32 s48, s48, s42")
            a("s_sub_u32 s52, s52, s40")
            a("v_mov_b32 v%d, s44" % regs)
            a("v_mov_b32 v%d, s46" % (regs + 1))
            a("v_mov_b32 v%d, s48" % (regs + 2))
            a("v_mov_b32 v%d, s52" % (regs + 3))
            a("s_lshl_b32 s50, s2, 4")
            a("s_add_u32 s50, s50, s%d" % S_W)
            a("s_lshl_b32 s50, s50, 4")
            a("s_add_u32 s50, s50, 0x%x" % WS_DIAG)
            a("v_mov_b32 v%d, 0" % base)
            a("buffer_store_dwordx4 %s, v%d, %s, s50 offen" % (vr(regs, 4), base, sr(S_Q, 4)))

    kernel_begin(a, name)
    a("s_cmp_ge_u32 s2, 256")
    a("s_cbranch_scc1 L2_end")
    a("s_load_dwordx2 s[4:5], s[0:1], %d" % KA_WS)
    if DIAG:
        a("s_memtime s[40:41]")
        a("s_memrealtime s[42:43]")
    a("s_setprio 3")
    a("v_lshrrev_b32 v%d, 6, v0" % T0)
    a("v_and_b32 v%d, 63, v0" % LANE)
    a("s_and_b32 s%d, s2, 7" % S_H)
    a("s_lshl_b32 s%d, s%d, 2" % (S_H, S_H))
    a("s_bfe_u32 s%d, s2, 0x20003" % S_TMP)
    a("s_add_u32 s%d, s%d, s%d" % (S_H, S_H, S_TMP))
    a("v_readfirstlane_b32 s%d, v%d" % (S_W, T0))
    a("s_mul_i32 s%d, s%d, 163840" % (S_TMP + 1, S_H))
    a("s_mov_b32 s%d, 163840" % (S_KV + 2))
    a("s_mov_b32 s%d, 0x20000" % (S_KV + 3))
    a("s_cmp_lt_u32 s%d, 4" % S_W)
    a("s_cbranch_scc1 L2_helper")
    a("s_lshr_b32 s%d, s2, 5" % S_QB)
    a("s_mov_b32 s%d, 0x000fffff" % S_VM)
    a("s_mov_b32 s%d, 0x000fffff" % (S_VM + 1))
    a("s_mov_b32 s%d, 0" % S_HI)
    a("s_mov_b32 s%d, -1" % (S_HI + 1))
    a("v_and_b32 v%d, 31, v%d" % (T0, LANE))
    a("v_lshrrev_b32 v%d, 5, v%d" % (T1, LANE))
    a("v_lshlrev_b32 v%d, 4, v%d" % (AKA, LANE))
    a("v_and_b32 v%d, 7, v%d" % (AKB, LANE))
    a("v_lshlrev_b32 v%d, 4, v%d" % (AKB, AKB))
    a("v_and_b32 v%d, 16, v%d" % (T2, LANE))
    a("v_lshl_add_u32 v%d, v%d, 3, v%d" % (AKB, T2, AKB))
    a("v_and_b32 v%d, 8, v%d" % (T2, LANE))
    a("v_add_u32 v%d, v%d, v%d" % (AKB, AKB, T2))
    a("v_lshl_add_u32 v%d, v%d, 2, v%d" % (AKB, T1, AKB))
    a("s_and_b32 s%d, s%d, 3" % (S_G, S_W))
    a("s_lshr_b32 s%d, s%d, 3" % (S_KS, S_W))
    a("s_lshl_b32 s%d, s%d, 3" % (S_T, S_QB))
    a("s_lshl_b32 s%d, s%d, 1" % (S_TMP, S_G))
    a("s_add_u32 s%d, s%d, s%d" % (S_T, S_T, S_TMP))
    a("s_mul_i32 s%d, s%d, 81920" % (S_TMP, S_H))
    a("s_mul_i32 s%d, s%d, 1280" % (S_TMP + 2, S_T))
    a("s_add_u32 s%d, s%d, s%d" % (S_TMP, S_TMP, S_TMP + 2))
    a("s_add_u32 s%d, s%d, 0x%x" % (S_TMP, S_TMP, WS_Q))
    a("s_mul_i32 s%d, s%d, %d" % (S_TMP + 3, S_KS, NT * 2560))
    a("s_waitcnt lgkmcnt(0)")
    srd(a, S_Q, 4, 5, WS_END)
    for q in range(QBW):
        a("buffer_load_dwordx4 %s, v%d, %s, s%d offen offset:%d" % (vr(QA[q], 4), AKA, sr(S_Q, 4), S_TMP, 1280 * q))
        a("buffer_load_dword v%d, v%d, %s, s%d offen offset:%d" % (QB[q], AKB, sr(S_Q, 4), S_TMP, 1280 * q + 1024))
    a("s_add_u32 s%d, s4, s%d" % (S_KV, S_TMP + 1))
    a("s_addc_u32 s%d, s5, 0" % (S_KV + 1))
    a("v_lshrrev_b32 v%d, 2, v%d" % (T2, T0))
    a("v_add_u32 v%d, v%d, v%d" % (AV, T2, T1))
    a("v_and_b32 v%d, 3, v%d" % (AV, AV))
    a("v_lshlrev_b32 v%d, 6, v%d" % (AV, AV))
    a("v_lshl_add_u32 v%d, v%d, 8, v%d" % (AV, T2, AV))
    a("v_and_b32 v%d, 3, v%d" % (T2, LANE))
    a("v_lshl_add_u32 v%d, v%d, 4, v%d" % (AV, T2, AV))
    a("v_add_u32 v%d, s%d, v%d" % (AKA, S_TMP + 3, AKA))
    a("v_add_u32 v%d, s%d, v%d" % (AKB, S_TMP + 3, AKB))
    a("v_add_u32 v%d, s%d, v%d" % (AV, S_TMP + 3, AV))
    a("v_xor_b32 v%d, 128, v%d" % (AV1, AV))
    a("v_mov_b32 v%d, 0x3f80" % (KB + 1))
    for q in range(QBW):
        a("v_mov_b32 v%d, 0" % (QB[q] + 1))
    for i in range(4):
        a("v_mov_b32 v%d, 0" % (P1 + i))
    for q in range(QBW):
        for i in range(16):
            a("v_mov_b32 v%d, 0" % (O[q] + i))
    a("v_mov_b32 v%d, 0x3f803f80" % T3)
    a("v_cmp_eq_u32 vcc, 20, v%d" % T0)
    a("v_cmp_eq_u32 s[%d:%d], 24, v%d" % (S_TMP + 4, S_TMP + 5, T0))
    a("s_or_b64 vcc, vcc, s[%d:%d]" % (S_TMP + 4, S_TMP + 5))
    a("s_mov_b32 s%d, 0" % S_IT)
    a("s_mov_b32 s%d, 0" % S_FB)
    a("v_cndmask_b32 v%d, 0, v%d, vcc" % (T3, T3))
    for i in range(8):
        a("v_mov_b32 v%d, v%d" % (V0 + i, T3))
    a("s_barrier")
    if DIAG:
        a("s_memtime s[52:53]")
    rka(0); rkb(0)
    mon(); rv0(0); moff()
    a("s_waitcnt vmcnt(0) lgkmcnt(%d)" % (0 if DIAG else 1))
    def rowmax(dst, S, first):
        a("v_max3_f32 v%d, v%d, v%d, v%d" % (T0, S, S + 1, S + 2))
        a("v_max3_f32 v%d, v%d, v%d, v%d" % (T1, S + 3, S + 4, S + 5))
        a("v_max3_f32 v%d, v%d, v%d, v%d" % (T0, T0, S + 6, S + 7))
        a("v_max3_f32 v%d, v%d, v%d, v%d" % (T1, T1, S + 8, S + 9))
        a("v_max3_f32 v%d, v%d, v%d, v%d" % (T0, T0, S + 10, S + 11))
        a("v_max3_f32 v%d, v%d, v%d, v%d" % (T1, T1, S + 12, S + 13))
        a("v_max3_f32 v%d, v%d, v%d, v%d" % (T0, T0, S + 14, S + 15))
        if first:
            a("v_max_f32 v%d, v%d, v%d" % (dst, T0, T1))
        else:
            a("v_max3_f32 v%d, v%d, v%d, v%d" % (dst, T0, T1, dst))
    def xhalf_max(rr):
        a("v_mov_b32 v%d, v%d" % (T1, rr))
        a("s_nop 1")
        a("v_permlane32_swap_b32 v%d, v%d" % (rr, T1))
        a("s_nop 1")
        a("v_max_f32 v%d, v%d, v%d" % (rr, rr, T1))
    SS = [SA, SB]
    for q in range(QBW):
        qk1(SS[q], q); qk2(SS[q], q)
    a("s_nop 9")
    for q in range(QBW):
        rowmax(M[q], SS[q], True)
        xhalf_max(M[q])
        a("v_and_b32 v%d, 0xffff0000, v%d" % (T0, M[q]))
        a("v_sub_f32 v%d, v%d, v%d" % (T1, M[q], T0))
        a("v_and_b32 v%d, 0xffff0000, v%d" % (T1, T1))
        a("v_add_f32 v%d, v%d, v%d" % (M[q], T0, T1))
        a("v_cndmask_b32 v%d, v%d, v%d, %s" % (T0, T0, T1, sr(S_HI, 2)))
        a("v_xor_b32 v%d, 0x80000000, v%d" % (T0, T0))
        a("v_lshrrev_b32 v%d, 16, v%d" % (QB[q] + 1, T0))
        if q == 0:
            qk1(SA, 0)
            a("s_nop 0")
            qk2(SA, 0)
    if DIAG:
        a("s_memtime s[44:45]")
        a("s_waitcnt lgkmcnt(0)")
    a(".p2align 6")
    a("L2_loop:")
    def adv():
        a("v_add_u32 v%d, %d, v%d" % (AKA, UN * 2560, AKA))
        a("v_add_u32 v%d, %d, v%d" % (AKB, UN * 2560, AKB))
        a("v_add_u32 v%d, %d, v%d" % (AV, UN * 2560, AV))
        a("v_add_u32 v%d, %d, v%d" % (AV1, UN * 2560, AV1))
    for n in range(UN):
        for ph in range(2):
            Sc, Sn = (SA, SB) if ph == 0 else (SB, SA)
            ex = lambda i: a("v_exp_f32 v%d, v%d" % (Sc + i, Sc + i))
            cv = lambda i: a("v_cvt_pk_bf16_f32 v%d, v%d, v%d" % (P0 + i, Sc + 2 * i, Sc + 2 * i + 1))
            if ph == 0:
                qk1(Sn, 1); rka(n + 1); ex(0); ex(1); ex(2); ex(3); cv(0); cv(1)
                pv1(1); mon(); rv1(n); moff(); ex(4); ex(5); ex(6); ex(7); cv(2); cv(3)
                qk2(Sn, 1); rkb(n + 1); ex(8); ex(9); ex(10); ex(11); cv(4); cv(5); wl(2)
                pv0(0); ex(12); ex(13); ex(14); ex(15); cv(6); cv(7)
            else:
                qk1(Sn, 0); ex(0); ex(1); ex(2); ex(3); cv(0); cv(1); wl(0)
                pv1(0); ex(4); ex(5); ex(6); ex(7); cv(2); cv(3)
                qk2(Sn, 0); ex(8); ex(9); ex(10); ex(11); cv(4); cv(5)
                pv0(1); mon(); rv0(n + 1); moff(); ex(12); ex(13); ex(14); ex(15)
                if n == UN - 1:
                    adv()
                cv(6); cv(7)
    if DIAG == "2":
        a("s_sub_u32 s54, s54, s40")
        a("s_mov_b32 m0, s%d" % S_IT)
        a("s_nop 0")
        a("v_writelane_b32 v2, s54, m0")
        a("s_memtime s[54:55]")
    a("s_add_u32 s%d, s%d, 1" % (S_IT, S_IT))
    pr = [int(x) for x in K2_PRIO.split(",")]
    SYNC_IT = 4 // UN
    MARK_IT = [16 // UN, 24 // UN]
    special = sorted(set([SYNC_IT] + MARK_IT + [p for p in pr if p < NIT] + [NIT]))
    mask = sum(1 << s for s in special)
    a("s_bitcmp1_b32 0x%x, s%d" % (mask, S_IT))
    a("s_cbranch_scc0 L2_loop")
    for s in special:
        if s == NIT:
            continue
        a("s_cmp_lg_u32 s%d, %d" % (S_IT, s))
        a("s_cbranch_scc1 L2_sp%d" % s)
        if s in pr:
            a("s_setprio %d" % (2 - pr.index(s)))
        if s == SYNC_IT:
            a("s_barrier")
        if s in MARK_IT:
            a("s_lshl_b32 s%d, s%d, 2" % (S_TMP, S_W))
            a("s_add_u32 s%d, s%d, %d" % (S_TMP, S_TMP, L_MARK - 16 + 32 * MARK_IT.index(s)))
            a("v_mov_b32 v%d, s%d" % (T0, S_TMP))
            a("v_mov_b32 v%d, 0x%x" % (T1, MARK))
            a("ds_write_b32 v%d, v%d" % (T0, T1))
            wl(0)
        a("s_branch L2_loop")
        a("L2_sp%d:" % s)
    wl(0)
    pv1(QBW - 1)
    a("L2_epi:")
    if RT:
        a("s_memrealtime s[44:45]")
    if DIAG == "2":
        a("s_lshl_b32 s50, s2, 4")
        a("s_add_u32 s50, s50, s%d" % S_W)
        a("s_lshl_b32 s50, s50, 8")
        a("s_add_u32 s50, s50, 0x%x" % (WS_DIAG - 0x100000))
        a("v_lshlrev_b32 v3, 2, v%d" % LANE)
        a("buffer_store_dword v2, v3, %s, s50 offen" % sr(S_Q, 4))
    diag(P0, T0)
    a("s_nop 15")
    a("v_mov_b32 v%d, 0x%x" % (T2, (127 - 30) << 23))
    a("v_mov_b32 v%d, 0x%x" % (T3, (127 + 30) << 23))
    a("s_mov_b64 vcc, 0")
    for q in range(QBW):
        Oq = O[q]
        a("v_cndmask_b32 v%d, v%d, v%d, %s" % (Oq + 12, Oq + 12, Oq + 8, sr(S_HI, 2)))
        a("v_mov_b32 v%d, v%d" % (Oq + 13, M[q]))
        a("v_cmp_nge_f32 s[%d:%d], v%d, v%d" % (S_TMP + 4, S_TMP + 5, Oq + 12, T2))
        a("v_cmp_nle_f32 s[%d:%d], v%d, v%d" % (S_TMP + 6, S_TMP + 7, Oq + 12, T3))
        a("s_or_b64 vcc, vcc, s[%d:%d]" % (S_TMP + 4, S_TMP + 5))
        a("s_or_b64 vcc, vcc, s[%d:%d]" % (S_TMP + 6, S_TMP + 7))
    a("s_cselect_b32 s%d, 1, 0" % S_TMP)
    a("s_andn2_b32 s%d, s%d, s%d" % (S_TMP, S_TMP, S_FB))
    a("s_cbranch_scc1 L2_fallback")
    a("s_load_dwordx2 s[6:7], s[0:1], %d" % KA_X)
    a("s_load_dwordx2 s[56:57], s[0:1], %d" % KA_OUT)
    a("s_add_u32 s36, s4, 0x%x" % WS_SEL)
    a("s_addc_u32 s37, s5, 0")
    a("s_load_dwordx16 s[64:79], s[36:37], 0")
    a("s_mul_i32 s%d, s%d, 7168" % (S_TMP, S_G))
    a("s_add_u32 s%d, s%d, %d" % (S_TMP, S_TMP, L_EX))
    a("v_lshl_add_u32 v%d, v%d, 4, s%d" % (T0, LANE, S_TMP))
    a("v_lshl_add_u32 v%d, v%d, 3, s%d" % (T3, LANE, S_TMP))
    a("s_barrier")
    a("s_cmp_eq_u32 s%d, 0" % S_KS)
    a("s_cbranch_scc1 L2_c0")
    for c in range(3):
        a("ds_write_b128 v%d, %s offset:%d" % (T0, vr(O[0] + 4 * c, 4), 1024 * c))
    a("ds_write_b64 v%d, %s offset:%d" % (T3, vr(O[0] + 12, 2), 3072))
    for i in range(14):
        a("v_mov_b32 v%d, v%d" % (O[0] + i, O[1] + i))
    a("v_add_u32 v%d, 3584, v%d" % (T0, T0))
    a("v_add_u32 v%d, 3584, v%d" % (T3, T3))
    a("s_add_u32 s%d, s%d, 1" % (S_T, S_T))
    a("s_branch L2_c1")
    a("L2_c0:")
    for c in range(3):
        a("ds_write_b128 v%d, %s offset:%d" % (T0, vr(O[1] + 4 * c, 4), 3584 + 1024 * c))
    a("ds_write_b64 v%d, %s offset:%d" % (T3, vr(O[1] + 12, 2), 3584 + 3072))
    a("L2_c1:")
    wl(0)
    a("s_barrier")
    Oq = O[0]
    a("ds_read_b64 %s, v%d offset:%d" % (vr(SA + 12, 2), T3, 3072))
    for c in range(3):
        a("ds_read_b128 %s, v%d offset:%d" % (vr(SA + 4 * c, 4), T0, 1024 * c))
    A, B = AKA, AKB
    a("v_bfe_u32 v%d, v%d, 4, 1" % (T1, LANE))
    a("v_and_b32 v%d, 7, v%d" % (T2, LANE))
    a("v_lshl_add_u32 v%d, v%d, 3, v%d" % (T1, T1, T2))
    a("v_bfe_u32 v%d, v%d, 3, 1" % (T2, LANE))
    a("v_lshlrev_b32 v%d, 14, v%d" % (A, T2))
    a("v_lshl_add_u32 v%d, v%d, 4, v%d" % (A, T1, A))
    a("v_lshlrev_b32 v%d, 7, v%d" % (B, T2))
    a("v_lshl_add_u32 v%d, v%d, 3, v%d" % (B, T1, B))
    a("v_lshrrev_b32 v%d, 5, v%d" % (T1, LANE))
    a("v_lshl_add_u32 v%d, v%d, 8, v%d" % (A, T1, A))
    a("s_lshl_b32 s%d, s%d, 15" % (S_TMP, S_T))
    a("s_lshl_b32 s%d, s%d, 9" % (S_TMP + 1, S_H))
    a("s_add_u32 s%d, s%d, s%d" % (S_TMP, S_TMP, S_TMP + 1))
    a("s_lshl_b32 s%d, s%d, 13" % (S_TMP + 1, S_T))
    a("s_lshl_b32 s%d, s%d, 8" % (S_TMP + 2, S_H))
    a("s_add_u32 s%d, s%d, s%d" % (S_TMP + 1, S_TMP + 1, S_TMP + 2))
    a("s_add_u32 s%d, s%d, 0x%x" % (S_TMP, S_TMP, WS_O))
    a("s_add_u32 s%d, s%d, 0x%x" % (S_TMP + 1, S_TMP + 1, WS_OB))
    wl(3)
    a("v_max_f32 v%d, v%d, v%d" % (T1, Oq + 13, SA + 13))
    a("v_sub_f32 v%d, v%d, v%d" % (T2, Oq + 13, T1))
    a("v_sub_f32 v%d, v%d, v%d" % (T3, SA + 13, T1))
    a("v_exp_f32 v%d, v%d" % (T2, T2))
    a("v_exp_f32 v%d, v%d" % (T3, T3))
    a("v_mul_f32 v%d, v%d, v%d" % (SB, Oq + 12, T2))
    a("v_fmac_f32 v%d, v%d, v%d" % (SB, SA + 12, T3))
    a("v_rcp_f32 v%d, v%d" % (SB + 1, SB))
    a("s_nop 0")
    a("v_mul_f32 v%d, v%d, v%d" % (T2, T2, SB + 1))
    a("v_mul_f32 v%d, v%d, v%d" % (T3, T3, SB + 1))
    for i in range(12):
        a("v_mul_f32 v%d, v%d, v%d" % (Oq + i, Oq + i, T2))
    wl(0)
    for i in range(12):
        a("v_fmac_f32 v%d, v%d, v%d" % (Oq + i, SA + i, T3))
    for i in range(6):
        a("v_cvt_pk_bf16_f32 v%d, v%d, v%d" % (SB + i, Oq + 2 * i, Oq + 2 * i + 1))
    for i in range(6):
        a("v_min_u32 v%d, -2, v%d" % (SB + i, SB + i))
    OM = os.environ.get("K2_OM", "sc1")
    a("buffer_store_dwordx4 %s, v%d, %s, s%d offen %s" % (vr(SB, 4), A, sr(S_Q, 4), S_TMP, OM))
    a("s_mov_b32 exec_hi, 0")
    a("buffer_store_dwordx2 %s, v%d, %s, s%d offen %s" % (vr(SB + 4, 2), B, sr(S_Q, 4), S_TMP + 1, OM))
    a("s_mov_b64 exec, -1")
    S_RB, S_CB, S_ROT, S_TT = 16, 17, 24, 25
    S_X, S_OUT = 8, 60
    ACC, OF, WF, G, X = 4, 24, [104, 124], 144, 154
    VX, VB, VW0, VW1 = 164, 165, 166, 167
    def tile_ids():
        a("s_bfe_u32 s%d, s2, 0x20001" % S_RB)
        a("s_lshl_b32 s%d, s%d, 3" % (S_RB, S_RB))
        a("s_lshr_b32 s%d, s2, 5" % S_TMP)
        a("s_add_u32 s%d, s%d, s%d" % (S_RB, S_RB, S_TMP))
        a("s_and_b32 s%d, s2, 1" % S_CB)
        a("s_lshl_b32 s%d, s%d, 2" % (S_CB, S_CB))
        a("s_bfe_u32 s%d, s2, 0x20003" % S_ROT)
        a("s_add_u32 s%d, s%d, s%d" % (S_CB, S_CB, S_ROT))
    tile_ids()
    a("v_mov_b32 v0, v%d" % LANE)
    a("s_lshl_b32 s%d, s%d, 2" % (S_TT, S_RB))
    a("s_add_u32 s%d, s%d, s%d" % (S_TT, S_TT, S_G))
    R, U, MRS, ROW, CO, SG, VG = 24, 64, 84, 86, 87, 88, 3
    a("v_and_b32 v%d, 15, v0" % ROW)
    a("v_lshrrev_b32 v%d, 4, v0" % CO)
    a("v_lshlrev_b32 v%d, 9, v%d" % (VB, CO))
    a("v_lshl_add_u32 v%d, v%d, 3, v%d" % (VB, ROW, VB))
    a("s_lshl_b32 s%d, s%d, 4" % (S_TMP, S_TT))
    a("v_add_u32 v%d, s%d, v%d" % (ROW, S_TMP, ROW))
    a("v_mul_u32_u24 v%d, 1280, v%d" % (VX, ROW))
    a("v_mul_u32_u24 v%d, 40, v%d" % (CO, CO))
    a("s_mul_i32 s%d, s%d, 160" % (S_TMP, S_CB))
    a("v_add3_u32 v%d, v%d, v%d, s%d" % (VX, VX, CO, S_TMP))
    a("s_mul_i32 s%d, s%d, 5120" % (S_TMP, S_G))
    a("s_add_u32 s%d, s%d, %d" % (S_TMP, S_TMP, L_GX))
    a("v_lshl_add_u32 v%d, v0, 4, s%d" % (VG, S_TMP))
    a("s_cmp_eq_u32 s%d, 0" % S_KS)
    a("s_cbranch_scc1 L2_gemm")
    a("v_lshlrev_b32 v1, 2, v%d" % ROW)
    srd(a, S_X, 6, 7, 2621440)
    a("s_mov_b32 s%d, 0x%x" % (S_TMP, WS_STAT))
    a("s_mov_b32 s%d, 0x%x" % (S_TMP + 1, WS_STAT + 8192))
    a("buffer_load_dwordx4 %s, v%d, %s, 0 offen" % (vr(X, 4), VX, sr(S_X, 4)))
    a("buffer_load_dwordx4 %s, v%d, %s, 0 offen offset:16" % (vr(X + 4, 4), VX, sr(S_X, 4)))
    a("buffer_load_dwordx2 %s, v%d, %s, 0 offen offset:32" % (vr(X + 8, 2), VX, sr(S_X, 4)))
    a("buffer_load_dword v%d, v1, %s, s%d offen" % (MRS, sr(S_Q, 4), S_TMP))
    a("buffer_load_dword v%d, v1, %s, s%d offen" % (MRS + 1, sr(S_Q, 4), S_TMP + 1))
    for i in range(20):
        a("v_mov_b32 v%d, 0" % (U + i))
    a("s_mov_b64 s[38:39], 0")
    for sl in range(8):
        a("v_cmp_eq_u32 vcc, s%d, v%d" % (64 + sl, ROW))
        a("v_mov_b32 v%d, %d" % (R, L_Y + 320 * sl))
        a("v_mov_b32 v%d, s%d" % (R + 1, 72 + sl))
        a("s_or_b64 s[38:39], s[38:39], vcc")
        a("v_cndmask_b32 v1, v1, v%d, vcc" % R)
        a("v_cndmask_b32 v%d, v%d, v%d, vcc" % (SG, SG, R + 1))
    a("s_cbranch_scc0 L2_noupd")
    a("v_lshl_add_u32 v1, v%d, 1, v1" % CO)
    a("s_mov_b64 exec, s[38:39]")
    for c in range(5):
        a("ds_read_b128 %s, v1 offset:%d" % (vr(U + 4 * c, 4), 16 * c))
    wl(0)
    for i in range(20):
        bf16_round(a, U + i, U + i)
    for i in range(20):
        a("v_mul_f32 v%d, v%d, v%d" % (U + i, U + i, SG))
    for i in range(20):
        bf16_round(a, U + i, U + i)
    a("s_mov_b64 exec, -1")
    a("L2_noupd:")
    a("s_waitcnt vmcnt(0)")
    def unpack(dst, src):
        L = []
        for i in range(10):
            L.append("v_lshlrev_b32 v%d, 16, v%d" % (dst + 2 * i, src + i))
            L.append("v_and_b32 v%d, 0xffff0000, v%d" % (dst + 2 * i + 1, src + i))
        return L
    def pack(dst, src):
        for i in range(10):
            a("v_cvt_pk_bf16_f32 v%d, v%d, v%d" % (dst + i, src + 2 * i, src + 2 * i + 1))
    for l in unpack(R, X):
        a(l)
    for i in range(20):
        a("v_sub_f32 v%d, v%d, v%d" % (R + i, R + i, MRS))
    pack(G, R)
    for l in unpack(R, G):
        a(l)
    for i in range(20):
        a("v_mul_f32 v%d, v%d, v%d" % (R + i, R + i, MRS + 1))
    pack(G, R)
    for l in unpack(R, G):
        a(l)
    for i in range(20):
        a("v_add_f32 v%d, v%d, v%d" % (U + i, U + i, R + i))
    for i in range(20):
        a("v_mul_f32 v%d, 0xbfb8aa3b, v%d" % (R + i, U + i))
    for i in range(20):
        a("v_exp_f32 v%d, v%d" % (R + i, R + i))
    for i in range(20):
        a("v_add_f32 v%d, 1.0, v%d" % (R + i, R + i))
    for i in range(20):
        a("v_rcp_f32 v%d, v%d" % (R + i, R + i))
    for i in range(20):
        a("v_mul_f32 v%d, v%d, v%d" % (U + i, U + i, R + i))
    pack(G, U)
    for c in range(5):
        a("ds_write_b128 v%d, %s offset:%d" % (VG, vr(G + 4 * c, 4), 1024 * c))
    wl(0)
    a("s_barrier")
    a("L2_end:")
    a("s_endpgm")
    a("L2_gemm:")
    a("s_setprio 3")
    if DIAG:
        a("s_memtime s[52:53]")
    if RT:
        a("s_memrealtime s[52:53]")
    S_O = 32
    a("s_lshr_b32 s36, s%d, 1" % S_TT)
    a("s_lshl_b32 s36, s36, 13")
    a("s_and_b32 s%d, s%d, 1" % (S_TMP, S_TT))
    a("s_lshl_b32 s%d, s%d, 7" % (S_TMP, S_TMP))
    a("s_add_u32 s36, s36, s%d" % S_TMP)
    a("s_add_u32 s36, s36, 0x%x" % WS_OB)
    a("s_add_u32 s37, s36, 4096")
    a("s_lshl_b32 s%d, s%d, 14" % (S_TMP + 1, S_TT))
    a("s_add_u32 s%d, s%d, 0x%x" % (S_TMP + 1, S_TMP + 1, WS_O))
    for p in range(4):
        a("s_add_u32 s%d, s%d, %d" % (S_TMP, S_ROT, p))
        a("s_and_b32 s%d, s%d, 3" % (S_TMP, S_TMP))
        a("s_lshl_b32 s%d, s%d, 12" % (S_TMP, S_TMP))
        a("s_add_u32 s%d, s%d, s%d" % (S_O + p, S_TMP + 1, S_TMP))
    a("v_lshlrev_b32 v1, 4, v0")
    loads = []
    for ks in range(16):
        loads.append((ks, "buffer_load_dwordx4 %s, v1, %s, s%d offen offset:%d sc1" % (vr(OF + 4 * ks, 4), sr(S_Q, 4), S_O + ks // 4, 1024 * (ks % 4))))
    for ks in range(16, 20):
        for h in range(2):
            loads.append((ks, "buffer_load_dwordx2 %s, v%d, %s, s%d offen offset:%d sc1" % (vr(OF + 4 * ks + 2 * h, 2), VB, sr(S_Q, 4), 36 + ((ks - 16) >> 1), 2048 * (ks & 1) + 256 * h)))
    PRE = int(os.environ.get("K2_OPRE", "10"))
    pos = 0
    while pos < PRE:
        a(loads[pos][1]); pos += 1
    srd(a, S_OUT, 56, 57, 2621440)
    a("v_add_u32 v%d, %d, v1" % (VW0, L_W0))
    a("v_add_u32 v%d, %d, v1" % (VW1, L_W1))
    def reads(ks):
        va, off = (VW0, ks * 5120) if ks < 10 else (VW1, (ks - 10) * 5120)
        return ["ds_read_b128 %s, v%d offset:%d" % (vr(WF[ks & 1] + 4 * t, 4), va, off + 1024 * t) for t in range(5)]
    for l in reads(0):
        a(l)
    for i in range(20):
        a("v_mov_b32 v%d, 0" % (ACC + i))
    S_PEND = S_TMP + 2
    a("s_mov_b32 s%d, 0" % S_PEND)
    blocks = [(2 * i, 2 * i + 1) for i in range(8)] + [(16 + i,) for i in range(4)]
    def check(blk):
        b0 = OF + 4 * blk[0]
        a("v_max3_u32 v2, v%d, v%d, v%d" % (b0, b0 + 1, b0 + 2))
        if len(blk) == 2:
            a("v_max3_u32 v0, v%d, v%d, v%d" % (b0 + 3, b0 + 4, b0 + 5))
            a("v_max3_u32 v2, v2, v%d, v%d" % (b0 + 6, b0 + 7))
            a("v_max_u32 v2, v2, v0")
        else:
            a("v_max_u32 v2, v2, v%d" % (b0 + 3))
        a("v_cmp_eq_u32 vcc, -1, v2")
    def mfma(ks, t):
        c = vr(ACC + 4 * t, 4)
        a("v_mfma_f32_16x16x32_bf16 %s, %s, %s, %s" % (c, vr(WF[ks & 1] + 4 * t, 4), vr(OF + 4 * ks, 4), c))
    skips = []
    for bi, blk in enumerate(blocks):
        have = sum(1 for k, _ in loads if k <= blk[-1])
        while pos < have:
            a(loads[pos][1]); pos += 1
        a("s_waitcnt vmcnt(%d)" % (pos - have))
        check(blk)
        a("s_cbranch_vccnz L2_skip%d" % bi)
        p0 = pos
        for ks in blk:
            nxt = reads(ks + 1) if ks < 19 else []
            for t in range(5):
                a("s_waitcnt lgkmcnt(%d)" % (4 if nxt else 4 - t))
                mfma(ks, t)
                if nxt:
                    a(nxt.pop(0))
                if t in (1, 3) and pos < len(loads):
                    a(loads[pos][1]); pos += 1
        a("L2_next%d:" % bi)
        skips.append((bi, blk, p0, pos))
    if DIAG:
        a("s_memtime s[54:55]")
        a("s_add_u32 s44, s40, s%d" % S_PEND)
    if RT:
        a("s_memrealtime s[54:55]")
    a("s_cmp_lg_u32 s%d, 0" % S_PEND)
    a("s_cbranch_scc1 L2_pend")
    a("L2_fin:")
    a("s_barrier")
    for c in range(5):
        a("ds_read_b128 %s, v%d offset:%d" % (vr(G + 4 * c, 4), VG, 1024 * c))
    GF, XF = OF, OF + 20
    fin = unpack(GF, G) + unpack(XF, X)
    for i, l in enumerate(fin):
        if i % 8 == 0:
            a("s_waitcnt lgkmcnt(%d)" % (0 if (DIAG or RT) else 4 - i // 8))
        a(l)
    for i in range(20):
        a("v_fmac_f32 v%d, v%d, v%d" % (XF + i, ACC + i, GF + i))
        if i & 1:
            a("v_cvt_pk_bf16_f32 v%d, v%d, v%d" % (X + i // 2, XF + i - 1, XF + i))
        if i == 7:
            a("buffer_store_dwordx4 %s, v%d, %s, 0 offen" % (vr(X, 4), VX, sr(S_OUT, 4)))
        if i == 15:
            a("buffer_store_dwordx4 %s, v%d, %s, 0 offen offset:16" % (vr(X + 4, 4), VX, sr(S_OUT, 4)))
    a("buffer_store_dwordx2 %s, v%d, %s, 0 offen offset:32" % (vr(X + 8, 2), VX, sr(S_OUT, 4)))
    if DIAG:
        a("s_memtime s[46:47]")
        a("s_waitcnt lgkmcnt(0)")
        for i, r_ in enumerate((52, 44, 54, 46)):
            a("s_sub_u32 s%d, s%d, s40" % (r_, r_))
            a("v_mov_b32 v%d, s%d" % (4 + i, r_))
        a("s_lshl_b32 s50, s2, 4")
        a("s_add_u32 s50, s50, s%d" % S_W)
        a("s_lshl_b32 s50, s50, 4")
        a("s_add_u32 s50, s50, 0x%x" % (WS_DIAG + 0x20000))
        a("v_mov_b32 v8, 0")
        a("buffer_store_dwordx4 v[4:7], v8, %s, s50 offen" % sr(S_Q, 4))
    if RT:
        a("s_memrealtime s[46:47]")
        a("s_waitcnt lgkmcnt(0)")
        for i, r_ in enumerate((44, 52, 54, 46)):
            a("v_mov_b32 v%d, s%d" % (4 + i, r_))
        a("s_lshl_b32 s50, s2, 4")
        a("s_add_u32 s50, s50, s%d" % S_W)
        a("s_lshl_b32 s50, s50, 4")
        a("s_add_u32 s50, s50, 0x%x" % (WS_DIAG + 0x20000))
        a("v_mov_b32 v8, 0")
        a("buffer_store_dwordx4 v[4:7], v8, %s, s50 offen" % sr(S_Q, 4))
    a("s_endpgm")
    for bi, blk, p0, p1 in skips:
        a("L2_skip%d:" % bi)
        for k, l in loads[p0:p1]:
            a(l)
        if blk[-1] < 19:
            wl(0)
            for l in reads(blk[-1] + 1):
                a(l)
        a("s_bitset1_b32 s%d, %d" % (S_PEND, bi))
        a("s_branch L2_next%d" % bi)
    a("L2_pend:")
    a("s_mov_b32 s%d, %d" % (S_TMP + 1, SPIN))
    a("L2_pass:")
    for bi, blk in enumerate(blocks):
        a("s_bitcmp1_b32 s%d, %d" % (S_PEND, bi))
        a("s_cbranch_scc0 L2_pl%d" % bi)
        for k, l in loads:
            if k in blk:
                a(l)
        a("L2_pl%d:" % bi)
    a("s_sub_u32 s%d, s%d, 1" % (S_TMP + 1, S_TMP + 1))
    a("s_cbranch_scc1 L2_fin")
    a("s_waitcnt vmcnt(0) lgkmcnt(0)")
    for bi, blk in enumerate(blocks):
        a("s_bitcmp1_b32 s%d, %d" % (S_PEND, bi))
        a("s_cbranch_scc0 L2_pn%d" % bi)
        check(blk)
        a("s_cbranch_vccnz L2_pn%d" % bi)
        for ks in blk:
            for l in reads(ks):
                a(l)
        a("s_bitset0_b32 s%d, %d" % (S_PEND, bi))
        n = 5 * len(blk)
        for ks in blk:
            for t in range(5):
                n -= 1
                a("s_waitcnt lgkmcnt(%d)" % n)
                mfma(ks, t)
        a("L2_pn%d:" % bi)
    a("s_cmp_lg_u32 s%d, 0" % S_PEND)
    a("s_cbranch_scc1 L2_pass")
    a("s_branch L2_fin")
    a("L2_fallback:")
    gka = lambda: a("buffer_load_dwordx4 %s, v%d, %s, 0 offen" % (vr(KA, 4), AKA, sr(S_KV, 4)))
    gkb = lambda: a("buffer_load_dword v%d, v%d, %s, 0 offen offset:1024" % (KB, AKB, sr(S_KV, 4)))
    def back(regs):
        for x in regs:
            a("v_subrev_u32 v%d, %d, v%d" % (x, NT * 2560, x))
    back([AKA, AKB, AV, AV1])
    for q in range(QBW):
        a("v_mov_b32 v%d, 0" % (QB[q] + 1))
        a("v_mov_b32 v%d, 0xff800000" % M[q])
    a("s_mov_b32 s%d, 0" % S_IT)
    wl(0)
    a("L2_fb1:")
    gka(); gkb()
    a("s_waitcnt vmcnt(0)")
    for q in range(QBW):
        qk1(SS[q], q); qk2(SS[q], q)
    a("v_add_u32 v%d, 2560, v%d" % (AKA, AKA))
    a("v_add_u32 v%d, 2560, v%d" % (AKB, AKB))
    a("s_nop 15")
    for q in range(QBW):
        rowmax(M[q], SS[q], False)
    a("s_add_u32 s%d, s%d, 1" % (S_IT, S_IT))
    a("s_cmp_lt_u32 s%d, %d" % (S_IT, NT))
    a("s_cbranch_scc1 L2_fb1")
    for q in range(QBW):
        xhalf_max(M[q])
        for i in range(16):
            a("v_mov_b32 v%d, 0" % (O[q] + i))
    back([AKA, AKB])
    a("s_mov_b32 s%d, 0" % S_IT)
    a("L2_fb2:")
    gka(); gkb(); mon()
    a("buffer_load_dwordx4 %s, v%d, %s, 0 offen offset:1280" % (vr(V0, 4), AV, sr(S_KV, 4)))
    a("buffer_load_dwordx4 %s, v%d, %s, 0 offen offset:1280" % (vr(V1, 4), AV1, sr(S_KV, 4)))
    moff()
    a("s_waitcnt vmcnt(0)")
    for q in range(QBW):
        qk1(SA, q); qk2(SA, q)
        a("s_nop 15")
        for i in range(16):
            a("v_sub_f32 v%d, v%d, v%d" % (SA + i, SA + i, M[q]))
        for i in range(16):
            a("v_exp_f32 v%d, v%d" % (SA + i, SA + i))
        a("s_nop 0")
        for i in range(8):
            a("v_cvt_pk_bf16_f32 v%d, v%d, v%d" % (P0 + i, SA + 2 * i, SA + 2 * i + 1))
        a("s_nop 1")
        pv0(q); pv1(q)
    a("v_add_u32 v%d, 2560, v%d" % (AKA, AKA))
    a("v_add_u32 v%d, 2560, v%d" % (AKB, AKB))
    a("v_add_u32 v%d, 2560, v%d" % (AV, AV))
    a("v_add_u32 v%d, 2560, v%d" % (AV1, AV1))
    a("s_add_u32 s%d, s%d, 1" % (S_IT, S_IT))
    a("s_cmp_lt_u32 s%d, %d" % (S_IT, NT))
    a("s_cbranch_scc1 L2_fb2")
    a("s_mov_b32 s%d, 1" % S_FB)
    a("s_branch L2_epi")

    a("L2_helper:")
    VL = 1
    a("v_mov_b32 v0, v%d" % LANE)
    LANE = 0
    a("s_load_dwordx4 s[56:59], s[0:1], %d" % KA_WG)
    a("s_load_dwordx2 s[60:61], s[0:1], %d" % KA_WD)
    a("s_load_dwordx2 s[62:63], s[0:1], %d" % KA_X)
    a("s_load_dwordx2 s[76:77], s[0:1], %d" % KA_OUT)
    XS, AF, D, U, H = 4, 84, 104, 108, 112
    TA, TB, TC, TR, TR2, TG = 2, 3, 114, 115, 110, 111
    S_GT, S_UP, S_DN = 64, 68, 72
    a("v_lshlrev_b32 v%d, 4, v%d" % (VL, LANE))
    a("v_and_b32 v%d, 7, v%d" % (TA, LANE))
    a("v_lshlrev_b32 v%d, 2, v%d" % (TA, TA))
    a("s_lshr_b32 s%d, s%d, 1" % (S_TMP + 2, S_W))
    a("s_mul_i32 s%d, s%d, 81920" % (S_TMP + 2, S_TMP + 2))
    a("s_and_b32 s%d, s%d, 1" % (S_TMP + 3, S_W))
    a("s_lshl_b32 s%d, s%d, 12" % (S_TMP + 3, S_TMP + 3))
    a("s_add_u32 s%d, s%d, s%d" % (S_TMP + 2, S_TMP + 2, S_TMP + 3))
    a("s_mov_b32 m0, s%d" % (S_TMP + 2))
    a("s_mov_b32 s%d, 0" % S_IT)
    a("s_waitcnt lgkmcnt(0)")
    a("s_add_u32 s%d, s4, s%d" % (S_KV, S_TMP + 1))
    a("s_addc_u32 s%d, s5, 0" % (S_KV + 1))
    srd(a, S_Q, 4, 5, WS_END)
    a("s_mov_b32 s%d, 0x%x" % (S_TMP, WS_SEL))
    a("buffer_load_dword v%d, v%d, %s, s%d offen" % (TA, TA, sr(S_Q, 4), S_TMP))
    def group():
        for j in range(4):
            a("buffer_load_dwordx4 v%d, %s, s%d offen offset:%d lds" % (VL, sr(S_KV, 4), S_TMP + 2, 1024 * j))
        a("s_add_u32 s%d, s%d, 8192" % (S_TMP + 2, S_TMP + 2))
        a("s_mov_b32 m0, s%d" % (S_TMP + 2))
        a("s_add_u32 s%d, s%d, 1" % (S_IT, S_IT))
    for _ in range(K2_K0):
        group()
    a("v_mul_u32_u24 v%d, 3072, v%d" % (TG, LANE))
    a("v_lshrrev_b32 v%d, 4, v%d" % (TC, LANE))
    a("v_bfe_u32 v%d, v%d, 2, 2" % (TB, LANE))
    a("v_lshl_add_u32 v%d, v%d, 3, v%d" % (TR, TC, TB))
    a("v_lshlrev_b32 v%d, 4, v%d" % (TR, TR))
    a("v_bfe_u32 v4, v%d, 1, 1" % LANE)
    a("v_lshl_add_u32 v%d, v4, 3, v%d" % (TR, TR))
    a("v_and_b32 v4, 1, v%d" % LANE)
    a("v_mul_u32_u24 v4, 81920, v4")
    a("v_add_u32 v%d, v%d, v4" % (TR, TR))
    a("v_lshrrev_b32 v4, 5, v%d" % LANE)
    a("v_lshl_add_u32 v%d, v4, 2, v%d" % (TR2, TB))
    a("v_mul_u32_u24 v%d, 1280, v%d" % (TR2, TR2))
    a("v_mul_u32_u24 v%d, 10240, v4" % TB)
    a("v_and_b32 v4, 31, v%d" % LANE)
    a("v_lshl_add_u32 v%d, v4, 2, v%d" % (TB, TB))
    a("v_and_b32 v4, 16, v%d" % LANE)
    a("v_lshl_add_u32 v%d, v4, 1, v%d" % (TR2, TR2))
    a("v_and_b32 v4, 3, v%d" % LANE)
    a("v_lshl_add_u32 v%d, v4, 3, v%d" % (TR2, TR2))
    a("s_waitcnt vmcnt(%d)" % (4 * (K2_K0 - 2)))
    a("v_mul_u32_u24 v%d, 1280, v%d" % (TA, TA))
    a("v_lshl_add_u32 v%d, v%d, 4, v%d" % (TA, TC, TA))
    a("s_barrier")
    a("L2_hld:")
    group()
    a("s_cmp_lt_u32 s%d, 10" % S_IT)
    a("s_cbranch_scc1 L2_hld")
    a("s_lshr_b32 s%d, s2, 3" % S_G)
    a("s_and_b32 s%d, s2, 7" % S_KS)
    a("s_mul_i32 s%d, s%d, 24" % (S_FB, S_KS))
    a("s_add_u32 s%d, s%d, s%d" % (S_FB, S_FB, S_G))
    srd(a, S_GT, 56, 57, 1966080)
    srd(a, S_UP, 58, 59, 1966080)
    srd(a, S_DN, 60, 61, 1966080)
    if DIAG:
        a("s_memtime s[52:53]")
    a("s_waitcnt vmcnt(0)")
    if DIAG:
        a("s_memtime s[44:45]")
    a("s_barrier")
    a("s_setprio %s" % os.environ.get("K2_HPRIO", "3"))
    a("s_and_b32 s%d, s%d, 3" % (S_TMP, S_G))
    a("s_cmp_lg_u32 s%d, s%d" % (S_TMP, S_W))
    a("s_cbranch_scc1 L2_hwarm")
    a("s_cmp_ge_u32 s2, %s" % os.environ.get("K2_MOE", "192"))
    a("s_cbranch_scc1 L2_hend")
    a("s_lshl_b32 s%d, s%d, 4" % (S_TMP + 1, S_FB))
    a("s_and_b32 s%d, s%d, 7" % (S_TMP + 2, S_G))
    a("s_mov_b32 s%d, 10" % S_IT)
    a("L2_hgu:")
    a("s_mul_i32 s%d, s%d, %d" % (S_TMP + 3, S_TMP + 2, 64 * 3072))
    a("s_add_u32 s%d, s%d, s%d" % (S_TMP + 3, S_TMP + 3, S_TMP + 1))
    a("s_lshl_b32 s%d, s%d, 10" % (S_TMP + 4, S_TMP + 2))
    a("s_mov_b32 m0, s%d" % (S_TMP + 4))
    a("s_add_u32 s%d, s%d, 81920" % (S_TMP + 4, S_TMP + 4))
    a("buffer_load_dwordx4 v%d, %s, s%d offen lds" % (TG, sr(S_GT, 4), S_TMP + 3))
    a("s_mov_b32 m0, s%d" % (S_TMP + 4))
    a("s_add_u32 s%d, s%d, 1" % (S_TMP + 2, S_TMP + 2))
    a("buffer_load_dwordx4 v%d, %s, s%d offen lds" % (TG, sr(S_UP, 4), S_TMP + 3))
    a("s_cmp_eq_u32 s%d, 10" % (S_TMP + 2))
    a("s_cselect_b32 s%d, 0, s%d" % (S_TMP + 2, S_TMP + 2))
    a("s_sub_u32 s%d, s%d, 1" % (S_IT, S_IT))
    a("s_cmp_lg_u32 s%d, 0" % S_IT)
    a("s_cbranch_scc1 L2_hgu")
    a("s_mov_b32 s%d, 0x%x" % (S_TMP, WS_XN))
    for j in range(20):
        a("buffer_load_dwordx4 %s, v%d, %s, s%d offen offset:%d" % (vr(XS + 4 * j, 4), TA, sr(S_Q, 4), S_TMP, 64 * j))
    a("s_waitcnt vmcnt(0)")
    for j in range(20):
        for h in range(2):
            a("ds_read_b64_tr_b16 %s, v%d offset:%d" % (vr(AF + 4 * (j & 1) + 2 * h, 2), TR, 512 * j + 64 * h))
        wl(0)
        a("v_mfma_f32_16x16x32_bf16 %s, %s, %s, %s" % (vr(D, 4), vr(AF + 4 * (j & 1), 4), vr(XS + 4 * j, 4), "0" if j == 0 else vr(D, 4)))
    a("s_mul_i32 s%d, s%d, 10240" % (S_TMP + 3, S_FB))
    for j in range(10):
        if j % 4 == 0:
            a("s_mov_b32 m0, %d" % (1024 * j))
            if j:
                a("s_add_u32 s%d, s%d, 4096" % (S_TMP + 3, S_TMP + 3))
            else:
                a("s_nop 0")
        a("buffer_load_dwordx4 v%d, %s, s%d offen offset:%d lds" % (VL, sr(S_DN, 4), S_TMP + 3, 1024 * (j % 4)))
    a("v_cvt_pk_bf16_f32 v%d, v%d, v%d" % (H, D, D + 1))
    a("v_cvt_pk_bf16_f32 v%d, v%d, v%d" % (H + 1, D + 2, D + 3))
    a("v_mov_b32 v%d, v%d" % (U, H))
    a("v_mov_b32 v%d, v%d" % (U + 1, H + 1))
    a("s_nop 0")
    a("v_permlane16_swap_b32 v%d, v%d" % (H, U))
    a("v_permlane16_swap_b32 v%d, v%d" % (H + 1, U + 1))
    E = XS
    for e in range(2):
        a("v_lshlrev_b32 v%d, 16, v%d" % (D + 2 * e, H + e))
        a("v_and_b32 v%d, 0xffff0000, v%d" % (D + 2 * e + 1, H + e))
    for e in range(4):
        a("v_mul_f32 v%d, 0xbfb8aa3b, v%d" % (E + e, D + e))
    for e in range(4):
        a("v_exp_f32 v%d, v%d" % (E + e, E + e))
    for e in range(4):
        a("v_add_f32 v%d, 1.0, v%d" % (E + e, E + e))
    for e in range(4):
        a("v_rcp_f32 v%d, v%d" % (E + e, E + e))
    for e in range(4):
        a("v_mul_f32 v%d, v%d, v%d" % (D + e, D + e, E + e))
    a("v_cvt_pk_bf16_f32 v%d, v%d, v%d" % (H, D, D + 1))
    a("v_cvt_pk_bf16_f32 v%d, v%d, v%d" % (H + 1, D + 2, D + 3))
    for e in range(2):
        a("v_lshlrev_b32 v%d, 16, v%d" % (D + 2 * e, H + e))
        a("v_and_b32 v%d, 0xffff0000, v%d" % (D + 2 * e + 1, H + e))
        a("v_lshlrev_b32 v%d, 16, v%d" % (E + 2 * e, U + e))
        a("v_and_b32 v%d, 0xffff0000, v%d" % (E + 2 * e + 1, U + e))
    for e in range(4):
        a("v_mul_f32 v%d, v%d, v%d" % (D + e, D + e, E + e))
    a("v_cvt_pk_bf16_f32 v%d, v%d, v%d" % (H, D, D + 1))
    a("v_cvt_pk_bf16_f32 v%d, v%d, v%d" % (H + 1, D + 2, D + 3))
    a("s_mul_i32 s%d, s%d, 20480" % (S_IT, S_KS))
    for e in range(4):
        a("s_add_u32 s%d, s%d, 0x%x" % (S_TMP + e, S_IT, WS_UPD + 2560 * e))
    a("s_waitcnt vmcnt(0)")
    Y = 4
    for j in range(22):
        if j < 20:
            a("ds_read_b64_tr_b16 %s, v%d offset:%d" % (vr(AF + 2 * (j & 1), 2), TR2, 64 * j))
            wl(0)
            a("v_mfma_f32_32x32x8_bf16 %s, %s, %s, 0" % (vr(Y + 16 * (j % 3), 16), vr(H, 2), vr(AF + 2 * (j & 1), 2)))
        else:
            a("s_nop 3")
        if j == 1:
            a("s_nop 7")
        if j >= 2:
            a("s_nop 1")
            for e in range(4):
                a("buffer_atomic_add_f32 v%d, v%d, %s, s%d offen offset:%d" % (Y + 16 * ((j - 2) % 3) + e, TB, sr(S_Q, 4), S_TMP + e, 128 * (j - 2)))
    a("s_lshl_b32 s%d, s2, 7" % S_TMP)
    a("s_add_u32 s%d, s%d, 0x%x" % (S_TMP, S_TMP, WS_FLG + 32768))
    a("v_mov_b32 v2, 0")
    a("v_mov_b32 v3, 1")
    a("s_waitcnt vmcnt(0)")
    a("s_mov_b64 exec, 1")
    a("buffer_store_dword v3, v2, %s, s%d offen sc1" % (sr(S_Q, 4), S_TMP))
    a("s_mov_b64 exec, -1")
    a("s_branch L2_hend")
    a("L2_hwarm:")
    a("s_sub_u32 s%d, s%d, s%d" % (S_FB, S_W, S_TMP))
    a("s_sub_u32 s%d, s%d, 1" % (S_FB, S_FB))
    a("s_and_b32 s%d, s%d, 3" % (S_FB, S_FB))
    a("s_cmp_lg_u32 s%d, 1" % S_FB)
    a("s_cbranch_scc1 L2_hnofill")
    for i in range(4):
        a("v_mov_b32 v%d, -1" % (4 + i))
    a("v_lshrrev_b32 v2, 5, v0")
    a("v_lshlrev_b32 v2, 14, v2")
    a("v_and_b32 v3, 31, v0")
    a("v_lshl_add_u32 v2, v3, 4, v2")
    a("v_lshrrev_b32 v3, 4, v0")
    a("v_lshlrev_b32 v3, 13, v3")
    a("v_and_b32 v8, 15, v0")
    a("v_lshl_add_u32 v3, v8, 4, v3")
    a("s_lshr_b32 s%d, s2, 5" % S_TMP)
    a("s_lshl_b32 s%d, s%d, 18" % (S_TMP + 1, S_TMP))
    a("s_lshl_b32 s%d, s%d, 9" % (S_TMP + 2, S_H))
    a("s_add_u32 s%d, s%d, s%d" % (S_TMP + 1, S_TMP + 1, S_TMP + 2))
    a("s_add_u32 s%d, s%d, 0x%x" % (S_TMP + 1, S_TMP + 1, WS_O))
    for j in range(8):
        a("buffer_store_dwordx4 v[4:7], v2, %s, s%d offen sc1" % (sr(S_Q, 4), S_TMP + 1))
        if j < 7:
            a("s_add_u32 s%d, s%d, 32768" % (S_TMP + 1, S_TMP + 1))
    a("s_lshl_b32 s%d, s%d, 16" % (S_TMP + 1, S_TMP))
    a("s_lshl_b32 s%d, s%d, 8" % (S_TMP + 2, S_H))
    a("s_add_u32 s%d, s%d, s%d" % (S_TMP + 1, S_TMP + 1, S_TMP + 2))
    a("s_add_u32 s%d, s%d, 0x%x" % (S_TMP + 1, S_TMP + 1, WS_OB))
    a("s_add_u32 s%d, s%d, 32768" % (S_TMP + 2, S_TMP + 1))
    a("buffer_store_dwordx4 v[4:7], v3, %s, s%d offen sc1" % (sr(S_Q, 4), S_TMP + 1))
    a("buffer_store_dwordx4 v[4:7], v3, %s, s%d offen sc1" % (sr(S_Q, 4), S_TMP + 2))
    a("s_lshl_b32 s%d, s2, 7" % S_TMP)
    a("s_add_u32 s%d, s%d, 0x%x" % (S_TMP, S_TMP, WS_FLG))
    a("v_mov_b32 v2, 0")
    a("s_waitcnt vmcnt(0)")
    a("s_mov_b64 exec, 1")
    a("buffer_store_dword v4, v2, %s, s%d offen sc1" % (sr(S_Q, 4), S_TMP))
    a("s_mov_b64 exec, -1")
    a("L2_hnofill:")
    tile_ids()
    a("s_add_u32 s36, s4, 0x%x" % WS_SEL)
    a("s_addc_u32 s37, s5, 0")
    a("s_load_dwordx8 s[64:71], s[36:37], 0")
    a("s_mul_i32 s38, s%d, 102400" % S_CB)
    a("s_add_u32 s38, s38, 0x%x" % WS_WOT)
    a("v_lshlrev_b32 v2, 7, v0")
    a("s_lshr_b32 s%d, s2, 5" % S_TMP)
    a("s_mul_i32 s%d, s%d, 12800" % (S_TMP, S_TMP))
    a("s_mul_i32 s%d, s%d, 4608" % (S_TMP + 1, S_FB))
    a("s_add_u32 s%d, s%d, s%d" % (S_TMP, S_TMP, S_TMP + 1))
    a("s_add_u32 s%d, s%d, s38" % (S_TMP, S_TMP))
    a("s_cmp_eq_u32 s%d, 2" % S_FB)
    a("s_cbranch_scc1 L2_hx")
    a("buffer_load_dword v4, v2, %s, s%d offen" % (sr(S_Q, 4), S_TMP))
    a("s_branch L2_hx1")
    a("L2_hx:")
    srd(a, 72, 62, 63, 2621440)
    a("v_mul_u32_u24 v2, 1280, v0")
    a("s_mul_i32 s%d, s%d, 81920" % (S_TMP, S_RB))
    a("s_mul_i32 s%d, s%d, 160" % (S_TMP + 1, S_CB))
    a("s_add_u32 s%d, s%d, s%d" % (S_TMP, S_TMP, S_TMP + 1))
    a("buffer_load_dword v4, v2, s[72:75], s%d offen" % S_TMP)
    a("buffer_load_dword v4, v2, s[72:75], s%d offen offset:156" % S_TMP)
    a("L2_hx1:")
    a("v_and_b32 v2, 3, v0")
    a("v_lshlrev_b32 v2, 2, v2")
    a("s_mul_i32 s39, s%d, 20" % S_ROT)
    a("s_mov_b32 s%d, 0" % S_G)
    a("L2_hph:")
    a("s_lshl_b32 s%d, s%d, 3" % (S_TMP + 1, S_G))
    a("s_lshr_b32 s%d, 0x%x, s%d" % (S_TMP, 0 | 50 << 8 | 30 << 16 | 81 << 24, S_TMP + 1))
    a("s_and_b32 s%d, s%d, 255" % (S_TMP, S_TMP))
    a("s_lshr_b32 s%d, 0x%x, s%d" % (S_KS, 30 | 81 << 8 | 50 << 16 | 100 << 24, S_TMP + 1))
    a("s_and_b32 s%d, s%d, 255" % (S_KS, S_KS))
    a("s_add_u32 s%d, s%d, s%d" % (S_TMP, S_TMP, S_FB))
    a("s_mov_b32 s%d, %d" % (S_TMP + 1, SPIN))
    a("L2_hwait:")
    a("ds_read_b32 v3, v2 offset:%d" % L_MARK)
    a("s_sub_u32 s%d, s%d, 1" % (S_TMP + 1, S_TMP + 1))
    a("s_cbranch_scc1 L2_hw")
    wl(0)
    a("v_cmp_ne_u32 vcc, 0x%x, v3" % MARK)
    a("s_cbranch_vccz L2_hw")
    a("s_sleep 8")
    a("s_branch L2_hwait")
    a("L2_hw:")
    a("s_add_u32 s%d, s%d, s39" % (S_TMP + 1, S_TMP))
    a("s_cmp_ge_u32 s%d, 80" % (S_TMP + 1))
    a("s_cselect_b32 s%d, 80, 0" % (S_TMP + 2))
    a("s_sub_u32 s%d, s%d, s%d" % (S_TMP + 1, S_TMP + 1, S_TMP + 2))
    a("s_cmp_ge_u32 s%d, 80" % S_TMP)
    a("s_cselect_b32 s%d, s%d, s%d" % (S_TMP + 1, S_TMP, S_TMP + 1))
    a("s_lshl_b32 s%d, s%d, 10" % (S_TMP + 1, S_TMP + 1))
    a("s_add_u32 s%d, s%d, s38" % (S_TMP + 1, S_TMP + 1))
    a("s_cmp_ge_u32 s%d, 50" % S_TMP)
    a("s_cselect_b32 s%d, %d, 0" % (S_TMP + 2, L_W1 - 51200 - L_W0))
    a("s_lshl_b32 s%d, s%d, 10" % (S_TMP + 3, S_TMP))
    a("s_add_u32 s%d, s%d, s%d" % (S_TMP + 2, S_TMP + 2, S_TMP + 3))
    a("s_add_u32 m0, s%d, %d" % (S_TMP + 2, L_W0))
    a("s_add_u32 s%d, s%d, 3" % (S_TMP, S_TMP))
    a("buffer_load_dwordx4 v%d, %s, s%d offen lds" % (VL, sr(S_Q, 4), S_TMP + 1))
    a("s_cmp_lt_u32 s%d, s%d" % (S_TMP, S_KS))
    a("s_cbranch_scc1 L2_hw")
    a("v_add_u32 v2, 16, v2")
    a("s_add_u32 s%d, s%d, 1" % (S_G, S_G))
    a("s_cmp_lt_u32 s%d, 4" % S_G)
    a("s_cbranch_scc1 L2_hph")
    a("s_cmp_lg_u32 s%d, 2" % S_FB)
    a("s_cbranch_scc1 L2_hnot2")
    a("v_and_b32 v2, 31, v0")
    a("v_lshlrev_b32 v2, 7, v2")
    a("s_lshr_b32 s%d, s%d, 2" % (S_TMP, S_RB))
    a("s_lshl_b32 s%d, s%d, 12" % (S_TMP, S_TMP))
    a("s_add_u32 s%d, s%d, 0x%x" % (S_TMP, S_TMP, WS_FLG))
    a("s_mov_b32 s%d, %d" % (S_TMP + 1, SPIN))
    a("L2_hp2:")
    a("buffer_load_dword v4, v2, %s, s%d offen sc1" % (sr(S_Q, 4), S_TMP))
    a("s_sub_u32 s%d, s%d, 1" % (S_TMP + 1, S_TMP + 1))
    a("s_cbranch_scc1 L2_hdone")
    a("s_waitcnt vmcnt(0)")
    a("v_cmp_eq_u32 vcc, 0, v4")
    a("s_cbranch_vccz L2_hdone")
    a("s_sleep 8")
    a("s_branch L2_hp2")
    a("L2_hnot2:")
    a("s_cmp_lg_u32 s%d, 0" % S_FB)
    a("s_cbranch_scc1 L2_hdone")
    a("s_mov_b32 s%d, 0" % S_TMP)
    for sl in range(8):
        a("s_lshr_b32 s%d, s%d, 6" % (S_TMP + 1, 64 + sl))
        a("s_cmp_eq_u32 s%d, s%d" % (S_TMP + 1, S_RB))
        a("s_cselect_b32 s%d, 1, s%d" % (S_TMP, S_TMP))
    a("s_cmp_eq_u32 s%d, 0" % S_TMP)
    a("s_cbranch_scc1 L2_hdone")
    a("v_lshlrev_b32 v2, 7, v0")
    for j in range(3):
        a("s_mov_b32 s%d, 0x%x" % (S_TMP + 2 + j, WS_FLG + 32768 + 8192 * j))
    a("s_mov_b32 s%d, %d" % (S_TMP + 1, SPIN))
    a("L2_hpoll:")
    for j in range(3):
        a("buffer_load_dword v%d, v2, %s, s%d offen sc1" % (4 + j, sr(S_Q, 4), S_TMP + 2 + j))
    a("s_sub_u32 s%d, s%d, 1" % (S_TMP + 1, S_TMP + 1))
    a("s_cbranch_scc1 L2_hpolled")
    a("s_waitcnt vmcnt(0)")
    a("v_min3_u32 v4, v4, v5, v6")
    a("v_cmp_eq_u32 vcc, 0, v4")
    a("s_cbranch_vccz L2_hpolled")
    a("s_sleep 8")
    a("s_branch L2_hpoll")
    a("L2_hpolled:")
    a("v_lshrrev_b32 v2, 3, v0")
    a("v_and_b32 v3, 7, v0")
    a("v_lshlrev_b32 v3, 4, v3")
    a("v_mul_u32_u24 v100, 2560, v2")
    a("v_add_u32 v100, v100, v3")
    a("v_mul_u32_u24 v101, 320, v2")
    a("v_add_u32 v101, v101, v3")
    a("s_mul_i32 s%d, s%d, 320" % (S_TMP, S_CB))
    a("s_add_u32 s%d, s%d, 0x%x" % (S_TMP, S_TMP, WS_UPD))
    for rp in range(8):
        for j in range(3):
            a("buffer_load_dwordx4 %s, v100, %s, s%d offen offset:%d sc1" % (vr(4 + 12 * rp + 4 * j, 4), sr(S_Q, 4), S_TMP, 128 * j))
        if rp < 7:
            a("s_add_u32 s%d, s%d, 20480" % (S_TMP, S_TMP))
    a("v_cmp_gt_u32 vcc, 64, v3")
    a("s_waitcnt vmcnt(0)")
    for rp in range(1, 8):
        for j in range(6):
            a("v_pk_add_f32 %s, %s, %s" % (vr(4 + 2 * j, 2), vr(4 + 2 * j, 2), vr(4 + 12 * rp + 2 * j, 2)))
    a("ds_write_b128 v101, v[4:7] offset:%d" % L_Y)
    a("ds_write_b128 v101, v[8:11] offset:%d" % (L_Y + 128))
    a("s_mov_b64 exec, vcc")
    a("ds_write_b128 v101, v[12:15] offset:%d" % (L_Y + 256))
    a("s_mov_b64 exec, -1")
    a("L2_hdone:")
    a("s_waitcnt vmcnt(0) lgkmcnt(0)")
    a("L2_hend:")
    diag(4, 8)
    a("s_endpgm")
    a("L2_code_end:")
    return kernel_desc(name, 168, 80)
```

```python
from common import *
import os
DIAG = os.environ.get("DIAG")
L_FL = 102400
L_G = L_FL + 64
K3_LDS = L_G + 40960
K3_NW = 8

def gen_k3(a, name="oproj_kernel"):
    S_WS, S_X, S_OUT = 8, 12, 16
    S_SEL = 24
    S_RB, S_CB, S_W = 32, 33, 34
    S_O = 36
    S_T = 42
    def stamp(i):
        if DIAG:
            a("s_memtime s[%d:%d]" % (60 + 2 * i, 61 + 2 * i))
    def diag_out():
        if DIAG:
            a("s_memtime s[54:55]")
            a("s_memrealtime s[56:57]")
            a("s_waitcnt lgkmcnt(0)")
            a("s_sub_u32 s54, s54, s50")
            a("s_sub_u32 s56, s56, s52")
            a("v_mov_b32 v4, s54")
            a("v_mov_b32 v5, s56")
            a("v_mov_b32 v6, s52")
            a("v_mov_b32 v7, 0")
            a("s_lshl_b32 s58, s2, 4")
            a("s_add_u32 s58, s58, s%d" % S_W)
            a("s_lshl_b32 s58, s58, 4")
            a("s_add_u32 s58, s58, 0x%x" % (WS_DIAG + 0x20000))
            a("buffer_store_dwordx4 v[4:7], v7, %s, s58 offen" % sr(S_WS, 4))
            for i in range(8):
                a("s_sub_u32 s%d, s%d, s50" % (60 + 2 * i, 60 + 2 * i))
                a("v_mov_b32 v%d, s%d" % (8 + i, 60 + 2 * i))
            a("s_lshl_b32 s58, s2, 4")
            a("s_add_u32 s58, s58, s%d" % S_W)
            a("s_lshl_b32 s58, s58, 5")
            a("s_add_u32 s58, s58, 0x%x" % (WS_DIAG + 0x40000))
            a("buffer_store_dwordx4 v[8:11], v7, %s, s58 offen" % sr(S_WS, 4))
            a("buffer_store_dwordx4 v[12:15], v7, %s, s58 offen offset:16" % sr(S_WS, 4))
    kernel_begin(a, name)
    a("s_cmp_ge_u32 s2, 256")
    a("s_cbranch_scc1 L3_end")
    a("s_load_dwordx2 s[4:5], s[0:1], %d" % KA_WS)
    a("s_load_dwordx2 s[6:7], s[0:1], %d" % KA_X)
    a("s_load_dwordx2 s[20:21], s[0:1], %d" % KA_OUT)
    if DIAG:
        a("s_memtime s[50:51]")
        a("s_memrealtime s[52:53]")
    a("v_lshrrev_b32 v1, 6, v0")
    a("v_and_b32 v0, 63, v0")
    a("s_bfe_u32 s%d, s2, 0x20001" % S_RB)
    a("v_readfirstlane_b32 s%d, v1" % S_W)
    a("s_lshl_b32 s%d, s%d, 3" % (S_RB, S_RB))
    a("s_lshr_b32 s%d, s2, 5" % S_T)
    a("s_add_u32 s%d, s%d, s%d" % (S_RB, S_RB, S_T))
    a("s_and_b32 s%d, s2, 1" % S_CB)
    a("s_lshl_b32 s%d, s%d, 2" % (S_CB, S_CB))
    a("s_bfe_u32 s35, s2, 0x20003")
    a("s_add_u32 s%d, s%d, s35" % (S_CB, S_CB))
    a("v_lshlrev_b32 v1, 4, v0")
    a("v_mov_b32 v3, %d" % L_FL)
    a("v_mov_b32 v4, 0")
    a("v_mov_b32 v5, 0")
    for i in range(6):
        a("ds_write_b64 v3, v[4:5] offset:%d" % (8 * i))
    a("s_lshr_b32 s49, s%d, 2" % S_W)
    a("s_and_b32 s%d, s%d, 3" % (S_W, S_W))
    a("L3_compute:")
    ACC = 4
    OF = 24
    WF = [104, 124]
    VX, T0, T1, T2, VB, VG = 144, 145, 146, 147, 148, 149
    NV = 152
    a("s_lshl_b32 s40, s%d, 2" % S_RB)
    a("s_add_u32 s40, s40, s%d" % S_W)
    a("v_and_b32 v%d, 15, v0" % T0)
    a("v_lshrrev_b32 v%d, 4, v0" % T1)
    a("v_lshlrev_b32 v%d, 9, v%d" % (VB, T1))
    a("v_lshl_add_u32 v%d, v%d, 3, v%d" % (VB, T0, VB))
    a("s_lshl_b32 s%d, s40, 4" % S_T)
    a("v_add_u32 v%d, s%d, v%d" % (T0, S_T, T0))
    a("v_mul_u32_u24 v%d, 1280, v%d" % (VX, T0))
    a("v_mul_u32_u24 v%d, 40, v%d" % (T1, T1))
    a("s_mul_i32 s%d, s%d, 160" % (S_T, S_CB))
    a("v_add_u32 v%d, s%d, v%d" % (T1, S_T, T1))
    a("v_add_u32 v%d, v%d, v%d" % (VX, VX, T1))
    a("s_mul_i32 s%d, s%d, 10240" % (S_T, S_W))
    a("s_add_u32 s%d, s%d, %d" % (S_T, S_T, L_G))
    a("v_add_u32 v%d, s%d, v1" % (VG, S_T))
    a("s_cmp_eq_u32 s49, 1")
    a("s_cbranch_scc1 L3_gate")
    a("s_lshl_b32 s41, s40, 14")
    a("s_add_u32 s41, s41, 0x%x" % WS_O)
    for p in range(4):
        a("s_add_u32 s%d, s35, %d" % (S_T, p))
        a("s_and_b32 s%d, s%d, 3" % (S_T, S_T))
        a("s_lshl_b32 s%d, s%d, 12" % (S_T, S_T))
        a("s_add_u32 s%d, s41, s%d" % (S_O + p, S_T))
    a("s_lshr_b32 s41, s40, 1")
    a("s_lshl_b32 s41, s41, 13")
    a("s_and_b32 s%d, s40, 1" % S_T)
    a("s_lshl_b32 s%d, s%d, 7" % (S_T, S_T))
    a("s_add_u32 s41, s41, s%d" % S_T)
    a("s_add_u32 s41, s41, 0x%x" % WS_OB)
    a("s_add_u32 s44, s41, 4096")
    a("v_add_u32 v2, 61440, v1")
    S_WB = 72
    a("s_mul_i32 s45, s%d, 102400" % S_CB)
    a("s_lshl_b32 s46, s%d, 10" % S_W)
    a("s_add_u32 s45, s45, s46")
    a("s_add_u32 s45, s45, 0x%x" % WS_WOT)
    for p in range(4):
        a("s_add_u32 s%d, s35, %d" % (S_T, p))
        a("s_and_b32 s%d, s%d, 3" % (S_T, S_T))
        a("s_mul_i32 s%d, s%d, 20480" % (S_T, S_T))
        a("s_add_u32 s%d, s45, s%d" % (S_WB + p, S_T))
    a("s_add_u32 s%d, s45, 81920" % (S_WB + 4))
    a("v_mov_b32 v%d, 1" % T0)
    a("s_waitcnt lgkmcnt(0)")
    srd(a, S_WS, 4, 5, WS_END)
    stream = []
    def wpiece(m):
        p, r = divmod(m, 5)
        L = ["s_add_u32 m0, s46, %d" % (4096 * m)]
        L.append("s_add_u32 s%d, s%d, 4096" % (S_WB + p, S_WB + p) if r else "s_nop 0")
        L.append("buffer_load_dwordx4 v1, %s, s%d offen lds" % (sr(S_WS, 4), S_WB + p))
        return ((4096 * m) // 5120, L)
    def opiece(ks):
        p, i = divmod(ks, 4)
        if p < 4:
            return [(ks, ["buffer_load_dwordx4 %s, v1, %s, s%d offen offset:%d" % (vr(OF + 4 * ks, 4), sr(S_WS, 4), S_O + p, 1024 * i)])]
        return [(ks, ["buffer_load_dwordx2 %s, v%d, %s, s%d offen offset:%d" % (vr(OF + 4 * ks + 2 * h, 2), VB, sr(S_WS, 4), (41, 44)[i >> 1], 2048 * (i & 1) + 256 * h)]) for h in range(2)]
    ws_ = [wpiece(m) for m in range(25)]
    for ks in range(20):
        stream += [x for x in ws_ if x[0] == ks] + opiece(ks)
    CH = int(os.environ.get("K3_CH", "2"))
    LAG = int(os.environ.get("K3_LAG", "2"))
    NGR = 20 // CH
    pos = [0]
    def issue_one():
        for l in stream[pos[0]][1]:
            a(l)
        pos[0] += 1
    def upto(g):
        return sum(1 for k, _ in stream if k < g * CH)
    while pos[0] < upto(1):
        issue_one()
    a("s_barrier")
    srd(a, S_OUT, 20, 21, 2621440)
    while pos[0] < upto(LAG):
        issue_one()
    def reads(ks):
        b = ks & 1
        base = ks * 5120
        va, off = ("v1", base) if base + 4096 < 65536 else ("v2", base - 61440)
        return ["ds_read_b128 %s, %s offset:%d" % (vr(WF[b] + 4 * t, 4), va, off + 1024 * t) for t in range(5)]
    G, XF = OF, OF + 20
    for g in range(NGR):
        a("s_waitcnt vmcnt(%d)" % (pos[0] - upto(g + 1)))
        a("s_mov_b64 exec, 1")
        a("ds_add_u32 v3, v%d offset:%d" % (T0, 4 * g))
        a("s_mov_b64 exec, -1")
        target = upto(min(NGR, g + LAG + 1))
        if pos[0] < target:
            issue_one()
        a("s_mov_b32 s47, 0x10000")
        a("L3_spin%d:" % g)
        a("ds_read_b32 v%d, v3 offset:%d" % (T2, 4 * g))
        a("s_sub_u32 s47, s47, 1")
        a("s_cbranch_scc1 L3_go%d" % g)
        a("s_waitcnt lgkmcnt(0)")
        a("v_readfirstlane_b32 s48, v%d" % T2)
        a("s_cmp_lt_u32 s48, %d" % (8 if g == NGR - 1 else 4))
        a("s_cbranch_scc1 L3_spin%d" % g)
        a("L3_go%d:" % g)
        if (g * CH) % 4 == 0:
            stamp(g * CH // 4)
        for l in reads(CH * g):
            a(l)
        if pos[0] < target:
            issue_one()
        for i in range(CH):
            ks = CH * g + i
            nxt = reads(ks + 1) if i < CH - 1 else []
            if ks == 19:
                nxt = ["ds_read_b128 %s, v%d offset:%d" % (vr(G + 4 * t, 4), VG, 1024 * t) for t in range(5)]
            for t in range(5):
                a("s_waitcnt lgkmcnt(%d)" % (4 if nxt else 4 - t))
                c = vr(ACC + 4 * t, 4)
                a("v_mfma_f32_16x16x32_bf16 %s, %s, %s, %s" % (c, vr(WF[ks & 1] + 4 * t, 4), vr(OF + 4 * ks, 4), "0" if ks == 0 else c))
                if nxt:
                    a(nxt.pop(0))
                if t % 2 == 1 and pos[0] < target:
                    issue_one()
        while pos[0] < target:
            issue_one()
    for t in range(5):
        a("ds_read_b128 %s, v%d offset:%d" % (vr(XF + 4 * t, 4), VG, 5120 + 1024 * t))
    stamp(5)
    X = WF[0]
    for i in range(20):
        if i % 4 == 0:
            a("s_waitcnt lgkmcnt(%d)" % (0 if DIAG else 4 - i // 4))
        a("v_fmac_f32 v%d, v%d, v%d" % (XF + i, ACC + i, G + i))
        if i & 1:
            a("v_cvt_pk_bf16_f32 v%d, v%d, v%d" % (X + i // 2, XF + i - 1, XF + i))
        if i == 7:
            a("buffer_store_dwordx4 %s, v%d, %s, 0 offen" % (vr(X, 4), VX, sr(S_OUT, 4)))
        if i == 15:
            a("buffer_store_dwordx4 %s, v%d, %s, 0 offen offset:16" % (vr(X + 4, 4), VX, sr(S_OUT, 4)))
    a("buffer_store_dwordx2 %s, v%d, %s, 0 offen offset:32" % (vr(X + 8, 2), VX, sr(S_OUT, 4)))
    if DIAG:
        a("s_add_u32 s%d, s%d, 4" % (S_W, S_W))
    diag_out()
    a("L3_end:")
    a("s_endpgm")
    a("L3_gate:")
    X, U, XF, R, VU, SG, MRS = 4, 16, 36, 56, 76, 77, 78
    a("v_lshlrev_b32 v%d, 2, v%d" % (T2, T0))
    a("s_mov_b32 s45, 0x%x" % WS_STAT)
    a("s_mov_b32 s46, 0x%x" % (WS_STAT + 8192))
    a("s_waitcnt lgkmcnt(0)")
    a("s_add_u32 s22, s4, 0x%x" % WS_SEL)
    a("s_addc_u32 s23, s5, 0")
    a("s_load_dwordx8 %s, s[22:23], 0" % sr(S_SEL, 8))
    a("s_load_dwordx8 s[80:87], s[22:23], 32")
    srd(a, S_WS, 4, 5, WS_END)
    srd(a, S_X, 6, 7, 2621440)
    a("s_barrier")
    a("buffer_load_dwordx4 %s, v%d, %s, 0 offen" % (vr(X, 4), VX, sr(S_X, 4)))
    a("buffer_load_dwordx4 %s, v%d, %s, 0 offen offset:16" % (vr(X + 4, 4), VX, sr(S_X, 4)))
    a("buffer_load_dwordx2 %s, v%d, %s, 0 offen offset:32" % (vr(X + 8, 2), VX, sr(S_X, 4)))
    a("buffer_load_dword v%d, v%d, %s, s45 offen" % (MRS, T2, sr(S_WS, 4)))
    a("buffer_load_dword v%d, v%d, %s, s46 offen" % (MRS + 1, T2, sr(S_WS, 4)))
    for i in range(20):
        a("v_mov_b32 v%d, 0" % (U + i))
    a("v_mov_b32 v%d, 0x7f000000" % VU)
    a("v_mov_b32 v%d, 0" % SG)
    a("s_mov_b64 s[88:89], 0")
    a("s_waitcnt lgkmcnt(0)")
    for s in range(8):
        a("v_cmp_eq_u32 vcc, s%d, v%d" % (S_SEL + s, T0))
        a("v_mov_b32 v%d, %d" % (R, 2560 * s))
        a("v_mov_b32 v%d, s%d" % (R + 1, 80 + s))
        a("s_or_b64 s[88:89], s[88:89], vcc")
        a("v_cndmask_b32 v%d, v%d, v%d, vcc" % (VU, VU, R))
        a("v_cndmask_b32 v%d, v%d, v%d, vcc" % (SG, SG, R + 1))
    a("v_lshl_add_u32 v%d, v%d, 1, v%d" % (VU, T1, VU))
    a("s_mov_b32 s%d, 0x%x" % (S_T, WS_UPD))
    a("s_cbranch_scc0 L3_noupd")
    for c in range(5):
        a("buffer_load_dwordx4 %s, v%d, %s, s%d offen offset:%d" % (vr(U + 4 * c, 4), VU, sr(S_WS, 4), S_T, 16 * c))
    a("s_waitcnt vmcnt(0)")
    for i in range(20):
        bf16_round(a, U + i, U + i)
    for i in range(20):
        a("v_mul_f32 v%d, v%d, v%d" % (U + i, U + i, SG))
    for i in range(20):
        bf16_round(a, U + i, U + i)
    a("L3_noupd:")
    a("s_waitcnt vmcnt(0)")
    for i in range(10):
        a("v_lshlrev_b32 v%d, 16, v%d" % (XF + 2 * i, X + i))
        a("v_and_b32 v%d, 0xffff0000, v%d" % (XF + 2 * i + 1, X + i))
    for t in range(5):
        a("ds_write_b128 v%d, %s offset:%d" % (VG, vr(XF + 4 * t, 4), 5120 + 1024 * t))
    def repack():
        for i in range(10):
            a("v_cvt_pk_bf16_f32 v%d, v%d, v%d" % (X + i, R + 2 * i, R + 2 * i + 1))
        for i in range(10):
            a("v_lshlrev_b32 v%d, 16, v%d" % (R + 2 * i, X + i))
            a("v_and_b32 v%d, 0xffff0000, v%d" % (R + 2 * i + 1, X + i))
    for i in range(20):
        a("v_sub_f32 v%d, v%d, v%d" % (R + i, XF + i, MRS))
    repack()
    for i in range(20):
        a("v_mul_f32 v%d, v%d, v%d" % (R + i, R + i, MRS + 1))
    repack()
    for i in range(20):
        a("v_add_f32 v%d, v%d, v%d" % (U + i, U + i, R + i))
    for i in range(20):
        a("v_mul_f32 v%d, 0xbfb8aa3b, v%d" % (R + i, U + i))
    for i in range(20):
        a("v_exp_f32 v%d, v%d" % (R + i, R + i))
    for i in range(20):
        a("v_add_f32 v%d, 1.0, v%d" % (R + i, R + i))
    for i in range(20):
        a("v_rcp_f32 v%d, v%d" % (R + i, R + i))
    for i in range(20):
        a("v_mul_f32 v%d, v%d, v%d" % (U + i, U + i, R + i))
    for t in range(5):
        a("ds_write_b128 v%d, %s offset:%d" % (VG, vr(U + 4 * t, 4), 1024 * t))
    a("v_mov_b32 v4, 1")
    a("s_waitcnt lgkmcnt(0)")
    a("s_mov_b64 exec, 1")
    a("ds_add_u32 v3, v4 offset:%d" % (4 * (NGR - 1)))
    if DIAG:
        a("s_mov_b64 exec, -1")
        stamp(0)
        a("s_add_u32 s%d, s%d, 8" % (S_W, S_W))
    diag_out()
    a("s_endpgm")
    return kernel_desc(name, NV, 96)
```

```python
from common import *
import os
DIAG = os.environ.get("DIAG")
RT = os.environ.get("RT")
K2_PRIO = os.environ.get("K2_PRIO", "5,7,99")
K2_K0 = int(os.environ.get("K2_K0", "3"))
K2_NW = 12
L_MARK = 10240
L_W0, L_W1 = 11264, 92160
L_EX = 62464
L_GX = 143360
L_P2 = 2560
L_Y = 0
MARK = 0xffff7fff
SPIN = 1 << 18

def gen_k2(a, name="attn_kernel"):
    QBW, NG, KS, NT, UN = 2, 4, 2, 32, int(os.environ.get('K2_UN', '4'))
    NIT = NT // UN
    r = [4]
    def alloc(n):
        b = r[0]; r[0] += (n + 1) // 2 * 2; return b
    QA = [alloc(4) for _ in range(QBW)]
    QB = [alloc(2) for _ in range(QBW)]
    KA, KB = alloc(4), alloc(2)
    V0, V1 = alloc(4), alloc(4)
    P0, P1 = alloc(4), alloc(4)
    SA, SB = alloc(16), alloc(16)
    AKA, AKB, AV, AV1 = alloc(1), r[0] - 1, alloc(1), r[0] - 1
    assert r[0] <= 104
    O = [104, 120]
    MS, PK, A, B = 136, 150, 156, 157
    M = [162, 163]
    T0, T1, T2, T3 = 164, 165, 166, 167
    LANE = 0
    S_KV, S_Q = 8, 12
    S_H, S_QB, S_W, S_T = 16, 17, 18, 19
    S_VM, S_HI = 20, 22
    S_IT, S_FB, S_KS, S_G = 24, 25, 26, 27
    S_TMP = 28
    qk1 = lambda S, q: a("v_mfma_f32_32x32x16_bf16 %s, %s, %s, 0" % (vr(S, 16), vr(KA, 4), vr(QA[q], 4)))
    qk2 = lambda S, q: a("v_mfma_f32_32x32x8_bf16 %s, %s, %s, %s" % (vr(S, 16), vr(KB, 2), vr(QB[q], 2), vr(S, 16)))
    pv0 = lambda q: a("v_mfma_f32_32x32x16_bf16 %s, %s, %s, %s" % (vr(O[q], 16), vr(V0, 4), vr(P0, 4), vr(O[q], 16)))
    pv1 = lambda q: a("v_mfma_f32_32x32x16_bf16 %s, %s, %s, %s" % (vr(O[q], 16), vr(V1, 4), vr(P1, 4), vr(O[q], 16)))
    rka = lambda t: a("ds_read_b128 %s, v%d offset:%d" % (vr(KA, 4), AKA, t * 2560))
    rkb = lambda t: a("ds_read_b32 v%d, v%d offset:%d" % (KB, AKB, t * 2560 + 1024))
    rv0 = lambda t: a("ds_read_b128 %s, v%d offset:%d" % (vr(V0, 4), AV, t * 2560 + 1280))
    rv1 = lambda t: a("ds_read_b128 %s, v%d offset:%d" % (vr(V1, 4), AV1, t * 2560 + 1280))
    mon = lambda: a("s_mov_b64 exec, %s" % sr(S_VM, 2))
    moff = lambda: a("s_mov_b64 exec, -1")
    wl = lambda k: a("s_waitcnt lgkmcnt(%d)" % k)
    def diag(regs, base):
        if DIAG:
            a("s_memtime s[46:47]")
            a("s_memrealtime s[48:49]")
            a("s_waitcnt lgkmcnt(0)")
            a("s_sub_u32 s44, s44, s40")
            a("s_sub_u32 s46, s46, s40")
            a("s_sub_u32 s48, s48, s42")
            a("s_sub_u32 s52, s52, s40")
            a("v_mov_b32 v%d, s44" % regs)
            a("v_mov_b32 v%d, s46" % (regs + 1))
            a("v_mov_b32 v%d, s48" % (regs + 2))
            a("v_mov_b32 v%d, s52" % (regs + 3))
            a("s_lshl_b32 s50, s2, 4")
            a("s_add_u32 s50, s50, s%d" % S_W)
            a("s_lshl_b32 s50, s50, 4")
            a("s_add_u32 s50, s50, 0x%x" % WS_DIAG)
            a("v_mov_b32 v%d, 0" % base)
            a("buffer_store_dwordx4 %s, v%d, %s, s50 offen" % (vr(regs, 4), base, sr(S_Q, 4)))

    kernel_begin(a, name)
    a("s_cmp_ge_u32 s2, 256")
    a("s_cbranch_scc1 L2_end")
    a("s_load_dwordx2 s[4:5], s[0:1], %d" % KA_WS)
    if DIAG:
        a("s_memtime s[40:41]")
        a("s_memrealtime s[42:43]")
    a("s_setprio 3")
    a("v_lshrrev_b32 v%d, 6, v0" % T0)
    a("v_and_b32 v0, 63, v0")
    a("s_and_b32 s%d, s2, 7" % S_H)
    a("s_lshl_b32 s%d, s%d, 2" % (S_H, S_H))
    a("s_bfe_u32 s%d, s2, 0x20003" % S_TMP)
    a("s_add_u32 s%d, s%d, s%d" % (S_H, S_H, S_TMP))
    a("v_readfirstlane_b32 s%d, v%d" % (S_W, T0))
    a("s_mul_i32 s%d, s%d, 163840" % (S_TMP + 1, S_H))
    a("s_mov_b32 s%d, 163840" % (S_KV + 2))
    a("s_mov_b32 s%d, 0x20000" % (S_KV + 3))
    a("s_cmp_lt_u32 s%d, 4" % S_W)
    a("s_cbranch_scc1 L2_helper")
    a("s_lshr_b32 s%d, s2, 5" % S_QB)
    a("s_mov_b32 s%d, 0x000fffff" % S_VM)
    a("s_mov_b32 s%d, 0x000fffff" % (S_VM + 1))
    a("s_mov_b32 s%d, 0" % S_HI)
    a("s_mov_b32 s%d, -1" % (S_HI + 1))
    a("v_and_b32 v%d, 31, v%d" % (T0, LANE))
    a("v_lshrrev_b32 v%d, 5, v%d" % (T1, LANE))
    a("v_lshlrev_b32 v%d, 4, v%d" % (AKA, LANE))
    a("v_and_b32 v%d, 7, v%d" % (AKB, LANE))
    a("v_lshlrev_b32 v%d, 4, v%d" % (AKB, AKB))
    a("v_and_b32 v%d, 16, v%d" % (T2, LANE))
    a("v_lshl_add_u32 v%d, v%d, 3, v%d" % (AKB, T2, AKB))
    a("v_and_b32 v%d, 8, v%d" % (T2, LANE))
    a("v_add_u32 v%d, v%d, v%d" % (AKB, AKB, T2))
    a("v_lshl_add_u32 v%d, v%d, 2, v%d" % (AKB, T1, AKB))
    a("s_and_b32 s%d, s%d, 3" % (S_G, S_W))
    a("s_lshr_b32 s%d, s%d, 3" % (S_KS, S_W))
    a("s_lshl_b32 s%d, s%d, 3" % (S_T, S_QB))
    a("s_lshl_b32 s%d, s%d, 1" % (S_TMP, S_G))
    a("s_add_u32 s%d, s%d, s%d" % (S_T, S_T, S_TMP))
    a("s_mul_i32 s%d, s%d, 81920" % (S_TMP, S_H))
    a("s_mul_i32 s%d, s%d, 1280" % (S_TMP + 2, S_T))
    a("s_add_u32 s%d, s%d, s%d" % (S_TMP, S_TMP, S_TMP + 2))
    a("s_add_u32 s%d, s%d, 0x%x" % (S_TMP, S_TMP, WS_Q))
    a("s_mul_i32 s%d, s%d, %d" % (S_TMP + 3, S_KS, NT * 2560))
    a("s_waitcnt lgkmcnt(0)")
    srd(a, S_Q, 4, 5, WS_END)
    for q in range(QBW):
        a("buffer_load_dwordx4 %s, v%d, %s, s%d offen offset:%d" % (vr(QA[q], 4), AKA, sr(S_Q, 4), S_TMP, 1280 * q))
        a("buffer_load_dword v%d, v%d, %s, s%d offen offset:%d" % (QB[q], AKB, sr(S_Q, 4), S_TMP, 1280 * q + 1024))
    a("s_add_u32 s%d, s4, s%d" % (S_KV, S_TMP + 1))
    a("s_addc_u32 s%d, s5, 0" % (S_KV + 1))
    a("v_lshrrev_b32 v%d, 2, v%d" % (T2, T0))
    a("v_add_u32 v%d, v%d, v%d" % (AV, T2, T1))
    a("v_and_b32 v%d, 3, v%d" % (AV, AV))
    a("v_lshlrev_b32 v%d, 6, v%d" % (AV, AV))
    a("v_lshl_add_u32 v%d, v%d, 8, v%d" % (AV, T2, AV))
    a("v_and_b32 v%d, 3, v%d" % (T2, LANE))
    a("v_lshl_add_u32 v%d, v%d, 4, v%d" % (AV, T2, AV))
    a("v_add_u32 v%d, s%d, v%d" % (AKA, S_TMP + 3, AKA))
    a("v_add_u32 v%d, s%d, v%d" % (AKB, S_TMP + 3, AKB))
    a("v_add_u32 v%d, s%d, v%d" % (AV, S_TMP + 3, AV))
    a("v_xor_b32 v%d, 128, v%d" % (AV1, AV))
    a("v_mov_b32 v%d, 0x3f80" % (KB + 1))
    for q in range(QBW):
        a("v_mov_b32 v%d, 0" % (QB[q] + 1))
    for i in range(4):
        a("v_mov_b32 v%d, 0" % (P1 + i))
    for q in range(QBW):
        for i in range(16):
            a("v_mov_b32 v%d, 0" % (O[q] + i))
    a("v_mov_b32 v%d, 0x3f803f80" % T3)
    a("v_cmp_eq_u32 vcc, 20, v%d" % T0)
    a("v_cmp_eq_u32 s[%d:%d], 24, v%d" % (S_TMP + 4, S_TMP + 5, T0))
    a("s_or_b64 vcc, vcc, s[%d:%d]" % (S_TMP + 4, S_TMP + 5))
    a("s_mov_b32 s%d, 0" % S_IT)
    a("s_mov_b32 s%d, 0" % S_FB)
    a("v_cndmask_b32 v%d, 0, v%d, vcc" % (T3, T3))
    for i in range(8):
        a("v_mov_b32 v%d, v%d" % (V0 + i, T3))
    a("s_barrier")
    if DIAG:
        a("s_memtime s[52:53]")
    rka(0); rkb(0)
    mon(); rv0(0); moff()
    a("s_waitcnt vmcnt(0) lgkmcnt(%d)" % (0 if DIAG else 1))
    def rowmax(dst, S, first):
        a("v_max3_f32 v%d, v%d, v%d, v%d" % (T0, S, S + 1, S + 2))
        a("v_max3_f32 v%d, v%d, v%d, v%d" % (T1, S + 3, S + 4, S + 5))
        a("v_max3_f32 v%d, v%d, v%d, v%d" % (T0, T0, S + 6, S + 7))
        a("v_max3_f32 v%d, v%d, v%d, v%d" % (T1, T1, S + 8, S + 9))
        a("v_max3_f32 v%d, v%d, v%d, v%d" % (T0, T0, S + 10, S + 11))
        a("v_max3_f32 v%d, v%d, v%d, v%d" % (T1, T1, S + 12, S + 13))
        a("v_max3_f32 v%d, v%d, v%d, v%d" % (T0, T0, S + 14, S + 15))
        if first:
            a("v_max_f32 v%d, v%d, v%d" % (dst, T0, T1))
        else:
            a("v_max3_f32 v%d, v%d, v%d, v%d" % (dst, T0, T1, dst))
    def xhalf_max(rr):
        a("v_mov_b32 v%d, v%d" % (T1, rr))
        a("s_nop 1")
        a("v_permlane32_swap_b32 v%d, v%d" % (rr, T1))
        a("s_nop 1")
        a("v_max_f32 v%d, v%d, v%d" % (rr, rr, T1))
    SS = [SA, SB]
    for q in range(QBW):
        qk1(SS[q], q); qk2(SS[q], q)
    a("s_nop 9")
    for q in range(QBW):
        rowmax(M[q], SS[q], True)
        xhalf_max(M[q])
        a("v_and_b32 v%d, 0xffff0000, v%d" % (T0, M[q]))
        a("v_sub_f32 v%d, v%d, v%d" % (T1, M[q], T0))
        a("v_and_b32 v%d, 0xffff0000, v%d" % (T1, T1))
        a("v_add_f32 v%d, v%d, v%d" % (M[q], T0, T1))
        a("v_cndmask_b32 v%d, v%d, v%d, %s" % (T0, T0, T1, sr(S_HI, 2)))
        a("v_xor_b32 v%d, 0x80000000, v%d" % (T0, T0))
        a("v_lshrrev_b32 v%d, 16, v%d" % (QB[q] + 1, T0))
        if q == 0:
            qk1(SA, 0)
            a("s_nop 0")
            qk2(SA, 0)
    if DIAG:
        a("s_memtime s[44:45]")
        a("s_waitcnt lgkmcnt(0)")
    a(".p2align 6")
    a("L2_loop:")
    def adv():
        a("v_add_u32 v%d, %d, v%d" % (AKA, UN * 2560, AKA))
        a("v_add_u32 v%d, %d, v%d" % (AKB, UN * 2560, AKB))
        a("v_add_u32 v%d, %d, v%d" % (AV, UN * 2560, AV))
        a("v_add_u32 v%d, %d, v%d" % (AV1, UN * 2560, AV1))
    for n in range(UN):
        for ph in range(2):
            Sc, Sn = (SA, SB) if ph == 0 else (SB, SA)
            ex = lambda i: a("v_exp_f32 v%d, v%d" % (Sc + i, Sc + i))
            cv = lambda i: a("v_cvt_pk_bf16_f32 v%d, v%d, v%d" % (P0 + i, Sc + 2 * i, Sc + 2 * i + 1))
            if ph == 0:
                qk1(Sn, 1); rka(n + 1); ex(0); ex(1); ex(2); ex(3); cv(0); cv(1)
                pv1(1); mon(); rv1(n); moff(); ex(4); ex(5); ex(6); ex(7); cv(2); cv(3)
                qk2(Sn, 1); rkb(n + 1); ex(8); ex(9); ex(10); ex(11); cv(4); cv(5); wl(2)
                pv0(0); ex(12); ex(13); ex(14); ex(15); cv(6); cv(7)
            else:
                qk1(Sn, 0); ex(0); ex(1); ex(2); ex(3); cv(0); cv(1); wl(0)
                pv1(0); ex(4); ex(5); ex(6); ex(7); cv(2); cv(3)
                qk2(Sn, 0); ex(8); ex(9); ex(10); ex(11); cv(4); cv(5)
                pv0(1); mon(); rv0(n + 1); moff(); ex(12); ex(13); ex(14); ex(15)
                if n == UN - 1:
                    adv()
                cv(6); cv(7)
    if DIAG == "2":
        a("s_sub_u32 s54, s54, s40")
        a("s_mov_b32 m0, s%d" % S_IT)
        a("s_nop 0")
        a("v_writelane_b32 v2, s54, m0")
        a("s_memtime s[54:55]")
    a("s_add_u32 s%d, s%d, 1" % (S_IT, S_IT))
    pr = [int(x) for x in K2_PRIO.split(",")]
    SYNC_IT = 4 // UN
    MARK_IT = [16 // UN, 24 // UN]
    special = sorted(set([SYNC_IT] + MARK_IT + [p for p in pr if p < NIT] + [NIT]))
    mask = sum(1 << s for s in special)
    a("s_bitcmp1_b32 0x%x, s%d" % (mask, S_IT))
    a("s_cbranch_scc0 L2_loop")
    for s in special:
        if s == NIT:
            continue
        a("s_cmp_lg_u32 s%d, %d" % (S_IT, s))
        a("s_cbranch_scc1 L2_sp%d" % s)
        if s in pr:
            a("s_setprio %d" % (2 - pr.index(s)))
        if s == SYNC_IT:
            a("s_barrier")
        if s in MARK_IT:
            a("s_lshl_b32 s%d, s%d, 2" % (S_TMP, S_W))
            a("s_add_u32 s%d, s%d, %d" % (S_TMP, S_TMP, L_MARK - 16 + 32 * MARK_IT.index(s)))
            a("v_mov_b32 v%d, s%d" % (T0, S_TMP))
            a("v_mov_b32 v%d, 0x%x" % (T1, MARK))
            a("ds_write_b32 v%d, v%d" % (T0, T1))
            wl(0)
        a("s_branch L2_loop")
        a("L2_sp%d:" % s)
    wl(0)
    pv1(QBW - 1)
    a("L2_epi:")
    if RT:
        a("s_memrealtime s[44:45]")
    if DIAG == "2":
        a("s_lshl_b32 s50, s2, 4")
        a("s_add_u32 s50, s50, s%d" % S_W)
        a("s_lshl_b32 s50, s50, 8")
        a("s_add_u32 s50, s50, 0x%x" % (WS_DIAG - 0x100000))
        a("v_lshlrev_b32 v3, 2, v%d" % LANE)
        a("buffer_store_dword v2, v3, %s, s50 offen" % sr(S_Q, 4))
    diag(P0, T0)
    a("s_nop 15")
    a("v_mov_b32 v%d, 0x%x" % (T2, (127 - 30) << 23))
    a("v_mov_b32 v%d, 0x%x" % (T3, (127 + 30) << 23))
    a("s_mov_b64 vcc, 0")
    for q in range(QBW):
        Oq = O[q]
        a("v_cndmask_b32 v%d, v%d, v%d, %s" % (Oq + 12, Oq + 12, Oq + 8, sr(S_HI, 2)))
        a("v_mov_b32 v%d, v%d" % (Oq + 13, M[q]))
        a("v_cmp_nge_f32 s[%d:%d], v%d, v%d" % (S_TMP + 4, S_TMP + 5, Oq + 12, T2))
        a("v_cmp_nle_f32 s[%d:%d], v%d, v%d" % (S_TMP + 6, S_TMP + 7, Oq + 12, T3))
        a("s_or_b64 vcc, vcc, s[%d:%d]" % (S_TMP + 4, S_TMP + 5))
        a("s_or_b64 vcc, vcc, s[%d:%d]" % (S_TMP + 6, S_TMP + 7))
    a("s_cselect_b32 s%d, 1, 0" % S_TMP)
    a("s_andn2_b32 s%d, s%d, s%d" % (S_TMP, S_TMP, S_FB))
    a("s_cbranch_scc1 L2_fallback")
    S_RB, S_CB, S_ROT, S_TT = 20, 21, 24, 25
    ACC, OF, WF = 4, 24, 64
    VB = 3
    S_O, S_WA = 32, 64
    def tile_ids():
        a("s_and_b32 s%d, s2, 7" % S_RB)
        a("s_lshl_b32 s%d, s%d, 2" % (S_RB, S_RB))
        a("s_lshr_b32 s%d, s2, 6" % S_TMP)
        a("s_add_u32 s%d, s%d, s%d" % (S_RB, S_RB, S_TMP))
        a("s_bfe_u32 s%d, s2, 0x30003" % S_CB)
    tile_ids()
    a("s_lshl_b32 s%d, s%d, 2" % (S_TT, S_RB))
    a("s_add_u32 s%d, s%d, s%d" % (S_TT, S_TT, S_G))
    a("s_lshl_b32 s%d, s%d, 14" % (S_O, S_TT))
    a("s_lshl_b32 s%d, s%d, 13" % (S_TMP + 2, S_KS))
    a("s_add_u32 s%d, s%d, s%d" % (S_O, S_O, S_TMP + 2))
    a("s_add_u32 s%d, s%d, 0x%x" % (S_O, S_O, WS_O))
    a("s_add_u32 s%d, s%d, 4096" % (S_O + 1, S_O))
    a("s_lshr_b32 s36, s%d, 1" % S_TT)
    a("s_lshl_b32 s36, s36, 13")
    a("s_and_b32 s%d, s%d, 1" % (S_TMP, S_TT))
    a("s_lshl_b32 s%d, s%d, 7" % (S_TMP, S_TMP))
    a("s_add_u32 s36, s36, s%d" % S_TMP)
    a("s_lshl_b32 s%d, s%d, 12" % (S_TMP + 2, S_KS))
    a("s_add_u32 s36, s36, s%d" % (S_TMP + 2))
    a("s_add_u32 s36, s36, 0x%x" % WS_OB)
    waddr = lambda ks: L_W0 + 5120 * ks if ks < 10 else L_W1 + 5120 * (ks - 10)
    first_ks = lambda i, sp: 8 * sp + 2 * i if i < 4 else 16 + 2 * sp + (i - 4)
    a("s_cmp_eq_u32 s%d, 0" % S_KS)
    for i in range(6):
        a("s_mov_b32 s%d, %d" % (S_WA + i, waddr(first_ks(i, 1))))
        a("s_cselect_b32 s%d, %d, s%d" % (S_WA + i, waddr(first_ks(i, 0)), S_WA + i))
    a("v_lshlrev_b32 v1, 4, v0")
    a("v_and_b32 v2, 15, v0")
    a("v_lshrrev_b32 v%d, 4, v0" % VB)
    a("v_lshlrev_b32 v%d, 9, v%d" % (VB, VB))
    a("v_lshl_add_u32 v%d, v2, 3, v%d" % (VB, VB))
    for i in range(20):
        a("v_mov_b32 v%d, 0" % (ACC + i))
    a("v_bfe_u32 v%d, v%d, 4, 1" % (T1, LANE))
    a("v_and_b32 v%d, 7, v%d" % (T2, LANE))
    a("v_lshl_add_u32 v%d, v%d, 3, v%d" % (T1, T1, T2))
    a("v_bfe_u32 v%d, v%d, 3, 1" % (T2, LANE))
    a("v_lshlrev_b32 v%d, 14, v%d" % (A, T2))
    a("v_lshl_add_u32 v%d, v%d, 4, v%d" % (A, T1, A))
    a("v_lshlrev_b32 v%d, 7, v%d" % (B, T2))
    a("v_lshl_add_u32 v%d, v%d, 3, v%d" % (B, T1, B))
    a("v_lshrrev_b32 v%d, 5, v%d" % (T1, LANE))
    a("v_lshl_add_u32 v%d, v%d, 8, v%d" % (A, T1, A))
    a("s_add_u32 s%d, s%d, s%d" % (S_T, S_T, S_KS))
    a("s_lshl_b32 s38, s%d, 15" % S_T)
    a("s_lshl_b32 s%d, s%d, 9" % (S_TMP + 1, S_H))
    a("s_add_u32 s38, s38, s%d" % (S_TMP + 1))
    a("s_lshl_b32 s39, s%d, 13" % S_T)
    a("s_lshl_b32 s%d, s%d, 8" % (S_TMP + 2, S_H))
    a("s_add_u32 s39, s39, s%d" % (S_TMP + 2))
    a("s_add_u32 s38, s38, 0x%x" % WS_O)
    a("s_add_u32 s39, s39, 0x%x" % WS_OB)
    a("s_mul_i32 s%d, s%d, 7168" % (S_TMP, S_G))
    a("s_add_u32 s%d, s%d, %d" % (S_TMP, S_TMP, L_EX))
    a("v_lshl_add_u32 v%d, v%d, 4, s%d" % (T0, LANE, S_TMP))
    a("v_lshl_add_u32 v%d, v%d, 3, s%d" % (T3, LANE, S_TMP))
    a("s_setprio 3")
    a("s_cmp_eq_u32 s%d, 0" % S_KS)
    a("s_barrier")
    a("s_cbranch_scc1 L2_c0")
    for c in range(3):
        a("ds_write_b128 v%d, %s offset:%d" % (T0, vr(O[0] + 4 * c, 4), 1024 * c))
    a("ds_write_b64 v%d, %s offset:%d" % (T3, vr(O[0] + 12, 2), 3072))
    for i in range(14):
        a("v_mov_b32 v%d, v%d" % (O[0] + i, O[1] + i))
    a("v_add_u32 v%d, 3584, v%d" % (T0, T0))
    a("v_add_u32 v%d, 3584, v%d" % (T3, T3))
    a("s_branch L2_c1")
    a("L2_c0:")
    for c in range(3):
        a("ds_write_b128 v%d, %s offset:%d" % (T0, vr(O[1] + 4 * c, 4), 3584 + 1024 * c))
    a("ds_write_b64 v%d, %s offset:%d" % (T3, vr(O[1] + 12, 2), 3584 + 3072))
    a("L2_c1:")
    def bloads(i):
        if i < 4:
            return ["buffer_load_dwordx4 %s, v1, %s, s%d offen offset:%d sc1" % (vr(OF + 8 * i + 4 * q, 4), sr(S_Q, 4), S_O + (i >> 1), 2048 * (i & 1) + 1024 * q) for q in range(2)]
        return ["buffer_load_dwordx2 %s, v%d, %s, s36 offen offset:%d sc1" % (vr(OF + 32 + 4 * (i - 4) + 2 * h, 2), VB, sr(S_Q, 4), 2048 * (i - 4) + 256 * h) for h in range(2)]
    EARLY = os.environ.get("K2_EARLY", "1") == "1"
    if EARLY:
        for l in bloads(4) + bloads(5):
            a(l)
    wl(0)
    a("s_barrier")
    Oq = O[0]
    a("ds_read_b64 %s, v%d offset:%d" % (vr(MS + 12, 2), T3, 3072))
    for c in range(3):
        a("ds_read_b128 %s, v%d offset:%d" % (vr(MS + 4 * c, 4), T0, 1024 * c))
    wl(3)
    a("v_max_f32 v%d, v%d, v%d" % (T1, Oq + 13, MS + 13))
    a("v_sub_f32 v%d, v%d, v%d" % (T2, Oq + 13, T1))
    a("v_sub_f32 v%d, v%d, v%d" % (T3, MS + 13, T1))
    a("v_exp_f32 v%d, v%d" % (T2, T2))
    a("v_exp_f32 v%d, v%d" % (T3, T3))
    a("v_mul_f32 v%d, v%d, v%d" % (PK, Oq + 12, T2))
    a("v_fmac_f32 v%d, v%d, v%d" % (PK, MS + 12, T3))
    a("v_rcp_f32 v%d, v%d" % (PK + 1, PK))
    a("s_nop 0")
    a("v_mul_f32 v%d, v%d, v%d" % (T2, T2, PK + 1))
    a("v_mul_f32 v%d, v%d, v%d" % (T3, T3, PK + 1))
    for i in range(12):
        a("v_mul_f32 v%d, v%d, v%d" % (Oq + i, Oq + i, T2))
    wl(0)
    for i in range(12):
        a("v_fmac_f32 v%d, v%d, v%d" % (Oq + i, MS + i, T3))
    for i in range(6):
        a("v_cvt_pk_bf16_f32 v%d, v%d, v%d" % (PK + i, Oq + 2 * i, Oq + 2 * i + 1))
    for i in range(6):
        a("v_min_u32 v%d, -2, v%d" % (PK + i, PK + i))
    a("buffer_store_dwordx4 %s, v%d, %s, s38 offen sc1" % (vr(PK, 4), A, sr(S_Q, 4)))
    a("s_mov_b32 exec_hi, 0")
    a("buffer_store_dwordx2 %s, v%d, %s, s39 offen sc1" % (vr(PK + 4, 2), B, sr(S_Q, 4)))
    a("s_mov_b64 exec, -1")
    if RT:
        a("s_memrealtime s[52:53]")
        a("s_mov_b32 s91, 0")
    a("s_barrier")
    if RT == "2":
        a("s_waitcnt vmcnt(0)")
        a("s_memrealtime s[44:45]")
    if os.environ.get("K2_DLY"):
        a("s_sleep %s" % os.environ.get("K2_DLY"))
    if not EARLY:
        for l in bloads(4) + bloads(5):
            a(l)
    S_PEND, S_NREQ, S_GO = S_TMP + 2, S_TMP + 3, 34
    a("s_mov_b32 s%d, 63" % S_PEND)
    a("s_mov_b32 s%d, 15" % S_NREQ)
    a("s_mov_b32 s%d, %d" % (S_TMP + 1, SPIN))
    a("s_waitcnt vmcnt(%d)" % (2 if EARLY else 0))
    a("L2_pass:")
    a("s_andn2_b32 s%d, s%d, s%d" % (S_GO, S_PEND, S_NREQ))
    for j in range(2):
        b0 = OF + 32 + 4 * j
        a("s_bitcmp1_b32 s%d, %d" % (S_PEND, 4 + j))
        a("s_cbranch_scc0 L2_q%d" % j)
        a("v_max3_u32 v%d, v%d, v%d, v%d" % (T0, b0, b0 + 1, b0 + 2))
        a("v_max_u32 v%d, v%d, v%d" % (T0, T0, b0 + 3))
        a("v_cmp_eq_u32 vcc, -1, v%d" % T0)
        for m in range(2):
            i = 2 * j + m
            a("s_bitcmp1_b32 s%d, %d" % (S_NREQ, i))
            a("s_cbranch_scc0 L2_r%d" % i)
            a("s_cmp_lg_u32 %s, 0" % ("vcc_lo", "vcc_hi")[m])
            a("s_cbranch_scc1 L2_r%d" % i)
            for l in bloads(i):
                a(l)
            a("s_bitset0_b32 s%d, %d" % (S_NREQ, i))
            a("L2_r%d:" % i)
        a("s_cbranch_vccz L2_q%d" % j)
        a("s_bitset0_b32 s%d, %d" % (S_GO, 4 + j))
        for l in bloads(4 + j):
            a(l)
        a("L2_q%d:" % j)
    if RT:
        a("s_cmp_lg_u32 s%d, %d" % (S_TMP + 1, SPIN))
        a("s_cbranch_scc1 L2_rt1")
        a("s_memrealtime s[54:55]")
        a("s_bcnt1_i32_b32 s88, s%d" % S_NREQ)
        a("L2_rt1:")
        a("s_cmp_lg_u32 s%d, 0" % S_NREQ)
        a("s_cbranch_scc1 L2_rt2")
        a("s_cmp_lg_u32 s91, 0")
        a("s_cbranch_scc1 L2_rt2")
        a("s_memrealtime s[90:91]")
        a("s_waitcnt lgkmcnt(0)")
        a("s_mov_b32 s91, 1")
        a("L2_rt2:")
    for i in (4, 5, 0, 1, 2, 3):
        nk = 2 if i < 4 else 1
        b0 = OF + 8 * i if i < 4 else OF + 32 + 4 * (i - 4)
        a("s_bitcmp1_b32 s%d, %d" % (S_GO, i))
        a("s_cbranch_scc0 L2_pn%d" % i)
        a("v_add_u32 v2, s%d, v1" % (S_WA + i))
        for n in range(5 * nk):
            a("ds_read_b128 %s, v2 offset:%d" % (vr(WF + 4 * n, 4), 1024 * n))
        if nk == 2:
            a("v_max3_u32 v%d, v%d, v%d, v%d" % (T0, b0, b0 + 1, b0 + 2))
            a("v_max3_u32 v%d, v%d, v%d, v%d" % (T1, b0 + 3, b0 + 4, b0 + 5))
            a("v_max3_u32 v%d, v%d, v%d, v%d" % (T0, T0, b0 + 6, b0 + 7))
            a("v_max_u32 v%d, v%d, v%d" % (T0, T0, T1))
            a("v_cmp_eq_u32 vcc, -1, v%d" % T0)
            a("s_cbranch_vccnz L2_pr%d" % i)
        a("s_bitset0_b32 s%d, %d" % (S_PEND, i))
        for n in range(5 * nk):
            if n % 2 == 0 or n == 5 * nk - 1:
                a("s_waitcnt lgkmcnt(%d)" % (0 if RT else max(0, 5 * nk - n - 2)))
            c = vr(ACC + 4 * (n % 5), 4)
            a("v_mfma_f32_16x16x32_bf16 %s, %s, %s, %s" % (c, vr(WF + 4 * n, 4), vr(b0 + 4 * (n // 5), 4), c))
        a("L2_pn%d:" % i)
    a("s_cmp_eq_u32 s%d, 0" % S_PEND)
    a("s_cbranch_scc1 L2_fin")
    a("s_waitcnt vmcnt(0)")
    a("s_sub_u32 s%d, s%d, 1" % (S_TMP + 1, S_TMP + 1))
    a("s_cbranch_scc0 L2_pass")
    a("L2_fin:")
    if RT:
        a("s_sub_u32 s92, %d, s%d" % (SPIN, S_TMP + 1))
    a("s_mul_i32 s%d, s%d, 5120" % (S_TMP, S_G))
    a("s_add_u32 s%d, s%d, %d" % (S_TMP, S_TMP, L_GX))
    a("s_mul_i32 s%d, s%d, 7168" % (S_TMP + 3, S_G))
    a("s_add_u32 s%d, s%d, %d" % (S_TMP + 3, S_TMP + 3, L_EX + 3584))
    a("s_lshl_b32 s%d, s%d, 11" % (S_TMP + 1, S_G))
    a("s_add_u32 s%d, s%d, %d" % (S_TMP + 1, S_TMP + 1, L_P2))
    a("s_add_u32 s%d, s%d, 3072" % (S_TMP + 2, S_TMP))
    a("s_cmp_eq_u32 s%d, 0" % S_KS)
    a("s_cselect_b32 s%d, s%d, s%d" % (S_TMP, S_TMP, S_TMP + 3))
    a("s_cselect_b32 s%d, s%d, s%d" % (S_TMP + 1, S_TMP + 2, S_TMP + 1))
    a("v_add_u32 v2, s%d, v1" % S_TMP)
    a("v_add_u32 v3, s%d, v1" % (S_TMP + 1))
    for t in range(5):
        a("ds_write_b128 v%d, %s offset:%d" % (2 if t < 3 else 3, vr(ACC + 4 * t, 4), 1024 * (t % 3)))
    wl(0)
    a("s_barrier")
    if RT:
        a("s_memrealtime s[46:47]")
        a("s_waitcnt lgkmcnt(0)")
        for i, r_ in enumerate((44, 52, 54, 46)):
            a("v_mov_b32 v%d, s%d" % (4 + i, r_))
        a("s_lshl_b32 s50, s2, 4")
        a("s_add_u32 s50, s50, s%d" % S_W)
        a("s_lshl_b32 s50, s50, 5")
        a("s_add_u32 s50, s50, 0x%x" % (WS_DIAG + 0x20000))
        a("v_mov_b32 v8, 0")
        a("buffer_store_dwordx4 v[4:7], v8, %s, s50 offen" % sr(S_Q, 4))
        for i, r_ in enumerate((90, 91, 92, 88)):
            a("v_mov_b32 v%d, s%d" % (12 + i, r_))
        a("buffer_store_dwordx4 v[12:15], v8, %s, s50 offen offset:16" % sr(S_Q, 4))
    a("L2_end:")
    a("s_endpgm")
    for i in range(4):
        a("L2_pr%d:" % i)
        for l in bloads(i):
            a(l)
        wl(0)
        a("s_branch L2_pn%d" % i)
    a("L2_fallback:")
    gka = lambda: a("buffer_load_dwordx4 %s, v%d, %s, 0 offen" % (vr(KA, 4), AKA, sr(S_KV, 4)))
    gkb = lambda: a("buffer_load_dword v%d, v%d, %s, 0 offen offset:1024" % (KB, AKB, sr(S_KV, 4)))
    def back(regs):
        for x in regs:
            a("v_subrev_u32 v%d, %d, v%d" % (x, NT * 2560, x))
    back([AKA, AKB, AV, AV1])
    for q in range(QBW):
        a("v_mov_b32 v%d, 0" % (QB[q] + 1))
        a("v_mov_b32 v%d, 0xff800000" % M[q])
    a("s_mov_b32 s%d, 0" % S_IT)
    wl(0)
    a("L2_fb1:")
    gka(); gkb()
    a("s_waitcnt vmcnt(0)")
    for q in range(QBW):
        qk1(SS[q], q); qk2(SS[q], q)
    a("v_add_u32 v%d, 2560, v%d" % (AKA, AKA))
    a("v_add_u32 v%d, 2560, v%d" % (AKB, AKB))
    a("s_nop 15")
    for q in range(QBW):
        rowmax(M[q], SS[q], False)
    a("s_add_u32 s%d, s%d, 1" % (S_IT, S_IT))
    a("s_cmp_lt_u32 s%d, %d" % (S_IT, NT))
    a("s_cbranch_scc1 L2_fb1")
    for q in range(QBW):
        xhalf_max(M[q])
        for i in range(16):
            a("v_mov_b32 v%d, 0" % (O[q] + i))
    back([AKA, AKB])
    a("s_mov_b32 s%d, 0" % S_IT)
    a("L2_fb2:")
    gka(); gkb(); mon()
    a("buffer_load_dwordx4 %s, v%d, %s, 0 offen offset:1280" % (vr(V0, 4), AV, sr(S_KV, 4)))
    a("buffer_load_dwordx4 %s, v%d, %s, 0 offen offset:1280" % (vr(V1, 4), AV1, sr(S_KV, 4)))
    moff()
    a("s_waitcnt vmcnt(0)")
    for q in range(QBW):
        qk1(SA, q); qk2(SA, q)
        a("s_nop 15")
        for i in range(16):
            a("v_sub_f32 v%d, v%d, v%d" % (SA + i, SA + i, M[q]))
        for i in range(16):
            a("v_exp_f32 v%d, v%d" % (SA + i, SA + i))
        a("s_nop 0")
        for i in range(8):
            a("v_cvt_pk_bf16_f32 v%d, v%d, v%d" % (P0 + i, SA + 2 * i, SA + 2 * i + 1))
        a("s_nop 1")
        pv0(q); pv1(q)
    a("v_add_u32 v%d, 2560, v%d" % (AKA, AKA))
    a("v_add_u32 v%d, 2560, v%d" % (AKB, AKB))
    a("v_add_u32 v%d, 2560, v%d" % (AV, AV))
    a("v_add_u32 v%d, 2560, v%d" % (AV1, AV1))
    a("s_add_u32 s%d, s%d, 1" % (S_IT, S_IT))
    a("s_cmp_lt_u32 s%d, %d" % (S_IT, NT))
    a("s_cbranch_scc1 L2_fb2")
    a("s_mov_b32 s%d, 1" % S_FB)
    a("s_branch L2_epi")

    a("L2_helper:")
    VL = 1
    a("s_load_dwordx4 s[56:59], s[0:1], %d" % KA_WG)
    a("s_load_dwordx2 s[76:77], s[0:1], %d" % KA_WD)
    a("s_load_dwordx2 s[62:63], s[0:1], %d" % KA_X)
    a("s_load_dwordx2 s[60:61], s[0:1], %d" % KA_OUT)
    XS, AF, D, U, H = 4, 84, 104, 108, 112
    TA, TB, TC, TR, TR2, TG = 2, 3, 114, 115, 110, 111
    S_GT, S_UP, S_DN = 64, 68, 72
    a("v_lshlrev_b32 v%d, 4, v%d" % (VL, LANE))
    a("v_and_b32 v%d, 7, v%d" % (TA, LANE))
    a("v_lshlrev_b32 v%d, 2, v%d" % (TA, TA))
    a("s_lshr_b32 s%d, s%d, 1" % (S_TMP + 2, S_W))
    a("s_mul_i32 s%d, s%d, 81920" % (S_TMP + 2, S_TMP + 2))
    a("s_and_b32 s%d, s%d, 1" % (S_TMP + 3, S_W))
    a("s_lshl_b32 s%d, s%d, 12" % (S_TMP + 3, S_TMP + 3))
    a("s_add_u32 s%d, s%d, s%d" % (S_TMP + 2, S_TMP + 2, S_TMP + 3))
    a("s_mov_b32 m0, s%d" % (S_TMP + 2))
    a("s_mov_b32 s%d, 0" % S_IT)
    a("s_waitcnt lgkmcnt(0)")
    a("s_add_u32 s%d, s4, s%d" % (S_KV, S_TMP + 1))
    a("s_addc_u32 s%d, s5, 0" % (S_KV + 1))
    srd(a, S_Q, 4, 5, WS_END)
    a("s_mov_b32 s%d, 0x%x" % (S_TMP, WS_SEL))
    a("buffer_load_dword v%d, v%d, %s, s%d offen" % (TA, TA, sr(S_Q, 4), S_TMP))
    def group():
        for j in range(4):
            a("buffer_load_dwordx4 v%d, %s, s%d offen offset:%d lds" % (VL, sr(S_KV, 4), S_TMP + 2, 1024 * j))
        a("s_add_u32 s%d, s%d, 8192" % (S_TMP + 2, S_TMP + 2))
        a("s_mov_b32 m0, s%d" % (S_TMP + 2))
        a("s_add_u32 s%d, s%d, 1" % (S_IT, S_IT))
    for _ in range(K2_K0):
        group()
    a("v_mul_u32_u24 v%d, 3072, v%d" % (TG, LANE))
    a("v_lshrrev_b32 v%d, 4, v%d" % (TC, LANE))
    a("v_bfe_u32 v%d, v%d, 2, 2" % (TB, LANE))
    a("v_lshl_add_u32 v%d, v%d, 3, v%d" % (TR, TC, TB))
    a("v_lshlrev_b32 v%d, 4, v%d" % (TR, TR))
    a("v_bfe_u32 v4, v%d, 1, 1" % LANE)
    a("v_lshl_add_u32 v%d, v4, 3, v%d" % (TR, TR))
    a("v_and_b32 v4, 1, v%d" % LANE)
    a("v_mul_u32_u24 v4, 81920, v4")
    a("v_add_u32 v%d, v%d, v4" % (TR, TR))
    a("v_lshrrev_b32 v4, 5, v%d" % LANE)
    a("v_lshl_add_u32 v%d, v4, 2, v%d" % (TR2, TB))
    a("v_mul_u32_u24 v%d, 1280, v%d" % (TR2, TR2))
    a("v_mul_u32_u24 v%d, 10240, v4" % TB)
    a("v_and_b32 v4, 31, v%d" % LANE)
    a("v_lshl_add_u32 v%d, v4, 2, v%d" % (TB, TB))
    a("v_and_b32 v4, 16, v%d" % LANE)
    a("v_lshl_add_u32 v%d, v4, 1, v%d" % (TR2, TR2))
    a("v_and_b32 v4, 3, v%d" % LANE)
    a("v_lshl_add_u32 v%d, v4, 3, v%d" % (TR2, TR2))
    a("s_waitcnt vmcnt(%d)" % (4 * (K2_K0 - 2)))
    a("v_mul_u32_u24 v%d, 1280, v%d" % (TA, TA))
    a("v_lshl_add_u32 v%d, v%d, 4, v%d" % (TA, TC, TA))
    a("s_barrier")
    a("L2_hld:")
    group()
    a("s_cmp_lt_u32 s%d, 10" % S_IT)
    a("s_cbranch_scc1 L2_hld")
    a("s_lshr_b32 s%d, s2, 3" % S_G)
    a("s_and_b32 s%d, s2, 7" % S_KS)
    a("s_mul_i32 s%d, s%d, 24" % (S_FB, S_KS))
    a("s_add_u32 s%d, s%d, s%d" % (S_FB, S_FB, S_G))
    srd(a, S_GT, 56, 57, 1966080)
    srd(a, S_UP, 58, 59, 1966080)
    srd(a, S_DN, 76, 77, 1966080)
    if DIAG:
        a("s_memtime s[52:53]")
    a("s_waitcnt vmcnt(0)")
    if DIAG:
        a("s_memtime s[44:45]")
    a("s_barrier")
    a("s_setprio %s" % os.environ.get("K2_HPRIO", "3"))
    a("s_and_b32 s%d, s%d, 3" % (S_TMP, S_G))
    a("s_cmp_lg_u32 s%d, s%d" % (S_TMP, S_W))
    a("s_cbranch_scc1 L2_hwarm")
    a("s_cmp_ge_u32 s2, %s" % os.environ.get("K2_MOE", "192"))
    a("s_cbranch_scc1 L2_hend")
    a("s_lshl_b32 s%d, s%d, 4" % (S_TMP + 1, S_FB))
    a("s_and_b32 s%d, s%d, 7" % (S_TMP + 2, S_G))
    a("s_mov_b32 s%d, 10" % S_IT)
    a("L2_hgu:")
    a("s_mul_i32 s%d, s%d, %d" % (S_TMP + 3, S_TMP + 2, 64 * 3072))
    a("s_add_u32 s%d, s%d, s%d" % (S_TMP + 3, S_TMP + 3, S_TMP + 1))
    a("s_lshl_b32 s%d, s%d, 10" % (S_TMP + 4, S_TMP + 2))
    a("s_mov_b32 m0, s%d" % (S_TMP + 4))
    a("s_add_u32 s%d, s%d, 81920" % (S_TMP + 4, S_TMP + 4))
    a("buffer_load_dwordx4 v%d, %s, s%d offen lds" % (TG, sr(S_GT, 4), S_TMP + 3))
    a("s_mov_b32 m0, s%d" % (S_TMP + 4))
    a("s_add_u32 s%d, s%d, 1" % (S_TMP + 2, S_TMP + 2))
    a("buffer_load_dwordx4 v%d, %s, s%d offen lds" % (TG, sr(S_UP, 4), S_TMP + 3))
    a("s_cmp_eq_u32 s%d, 10" % (S_TMP + 2))
    a("s_cselect_b32 s%d, 0, s%d" % (S_TMP + 2, S_TMP + 2))
    a("s_sub_u32 s%d, s%d, 1" % (S_IT, S_IT))
    a("s_cmp_lg_u32 s%d, 0" % S_IT)
    a("s_cbranch_scc1 L2_hgu")
    a("s_mov_b32 s%d, 0x%x" % (S_TMP, WS_XN))
    for j in range(20):
        a("buffer_load_dwordx4 %s, v%d, %s, s%d offen offset:%d" % (vr(XS + 4 * j, 4), TA, sr(S_Q, 4), S_TMP, 64 * j))
    a("s_waitcnt vmcnt(0)")
    for j in range(20):
        for h in range(2):
            a("ds_read_b64_tr_b16 %s, v%d offset:%d" % (vr(AF + 4 * (j & 1) + 2 * h, 2), TR, 512 * j + 64 * h))
        wl(0)
        a("v_mfma_f32_16x16x32_bf16 %s, %s, %s, %s" % (vr(D, 4), vr(AF + 4 * (j & 1), 4), vr(XS + 4 * j, 4), "0" if j == 0 else vr(D, 4)))
    a("s_mul_i32 s%d, s%d, 10240" % (S_TMP + 3, S_FB))
    for j in range(10):
        if j % 4 == 0:
            a("s_mov_b32 m0, %d" % (1024 * j))
            if j:
                a("s_add_u32 s%d, s%d, 4096" % (S_TMP + 3, S_TMP + 3))
            else:
                a("s_nop 0")
        a("buffer_load_dwordx4 v%d, %s, s%d offen offset:%d lds" % (VL, sr(S_DN, 4), S_TMP + 3, 1024 * (j % 4)))
    a("v_cvt_pk_bf16_f32 v%d, v%d, v%d" % (H, D, D + 1))
    a("v_cvt_pk_bf16_f32 v%d, v%d, v%d" % (H + 1, D + 2, D + 3))
    a("v_mov_b32 v%d, v%d" % (U, H))
    a("v_mov_b32 v%d, v%d" % (U + 1, H + 1))
    a("s_nop 0")
    a("v_permlane16_swap_b32 v%d, v%d" % (H, U))
    a("v_permlane16_swap_b32 v%d, v%d" % (H + 1, U + 1))
    E = XS
    for e in range(2):
        a("v_lshlrev_b32 v%d, 16, v%d" % (D + 2 * e, H + e))
        a("v_and_b32 v%d, 0xffff0000, v%d" % (D + 2 * e + 1, H + e))
    for e in range(4):
        a("v_mul_f32 v%d, 0xbfb8aa3b, v%d" % (E + e, D + e))
    for e in range(4):
        a("v_exp_f32 v%d, v%d" % (E + e, E + e))
    for e in range(4):
        a("v_add_f32 v%d, 1.0, v%d" % (E + e, E + e))
    for e in range(4):
        a("v_rcp_f32 v%d, v%d" % (E + e, E + e))
    for e in range(4):
        a("v_mul_f32 v%d, v%d, v%d" % (D + e, D + e, E + e))
    a("v_cvt_pk_bf16_f32 v%d, v%d, v%d" % (H, D, D + 1))
    a("v_cvt_pk_bf16_f32 v%d, v%d, v%d" % (H + 1, D + 2, D + 3))
    for e in range(2):
        a("v_lshlrev_b32 v%d, 16, v%d" % (D + 2 * e, H + e))
        a("v_and_b32 v%d, 0xffff0000, v%d" % (D + 2 * e + 1, H + e))
        a("v_lshlrev_b32 v%d, 16, v%d" % (E + 2 * e, U + e))
        a("v_and_b32 v%d, 0xffff0000, v%d" % (E + 2 * e + 1, U + e))
    for e in range(4):
        a("v_mul_f32 v%d, v%d, v%d" % (D + e, D + e, E + e))
    a("v_cvt_pk_bf16_f32 v%d, v%d, v%d" % (H, D, D + 1))
    a("v_cvt_pk_bf16_f32 v%d, v%d, v%d" % (H + 1, D + 2, D + 3))
    a("s_mul_i32 s%d, s%d, 20480" % (S_IT, S_KS))
    for e in range(4):
        a("s_add_u32 s%d, s%d, 0x%x" % (S_TMP + e, S_IT, WS_UPD + 2560 * e))
    a("s_waitcnt vmcnt(0)")
    Y = 4
    for j in range(22):
        if j < 20:
            a("ds_read_b64_tr_b16 %s, v%d offset:%d" % (vr(AF + 2 * (j & 1), 2), TR2, 64 * j))
            wl(0)
            a("v_mfma_f32_32x32x8_bf16 %s, %s, %s, 0" % (vr(Y + 16 * (j % 3), 16), vr(H, 2), vr(AF + 2 * (j & 1), 2)))
        else:
            a("s_nop 3")
        if j == 1:
            a("s_nop 7")
        if j >= 2:
            a("s_nop 1")
            for e in range(4):
                a("buffer_atomic_add_f32 v%d, v%d, %s, s%d offen offset:%d" % (Y + 16 * ((j - 2) % 3) + e, TB, sr(S_Q, 4), S_TMP + e, 128 * (j - 2)))
    a("s_lshl_b32 s%d, s2, 7" % S_TMP)
    a("s_add_u32 s%d, s%d, 0x%x" % (S_TMP, S_TMP, WS_FLG + 32768))
    a("v_mov_b32 v2, 0")
    a("v_mov_b32 v3, 1")
    a("s_waitcnt vmcnt(0)")
    a("s_mov_b64 exec, 1")
    a("buffer_store_dword v3, v2, %s, s%d offen sc1" % (sr(S_Q, 4), S_TMP))
    a("s_mov_b64 exec, -1")
    a("s_branch L2_hend")
    a("L2_hwarm:")
    a("s_sub_u32 s%d, s%d, s%d" % (S_FB, S_W, S_TMP))
    a("s_sub_u32 s%d, s%d, 1" % (S_FB, S_FB))
    a("s_and_b32 s%d, s%d, 3" % (S_FB, S_FB))
    a("s_cmp_lg_u32 s%d, 1" % S_FB)
    a("s_cbranch_scc1 L2_hnofill")
    for i in range(4):
        a("v_mov_b32 v%d, -1" % (4 + i))
    a("v_lshrrev_b32 v2, 5, v0")
    a("v_lshlrev_b32 v2, 14, v2")
    a("v_and_b32 v3, 31, v0")
    a("v_lshl_add_u32 v2, v3, 4, v2")
    a("v_lshrrev_b32 v3, 4, v0")
    a("v_lshlrev_b32 v3, 13, v3")
    a("v_and_b32 v8, 15, v0")
    a("v_lshl_add_u32 v3, v8, 4, v3")
    a("s_lshr_b32 s%d, s2, 5" % S_TMP)
    a("s_lshl_b32 s%d, s%d, 18" % (S_TMP + 1, S_TMP))
    a("s_lshl_b32 s%d, s%d, 9" % (S_TMP + 2, S_H))
    a("s_add_u32 s%d, s%d, s%d" % (S_TMP + 1, S_TMP + 1, S_TMP + 2))
    a("s_add_u32 s%d, s%d, 0x%x" % (S_TMP + 1, S_TMP + 1, WS_O))
    for j in range(8):
        a("buffer_store_dwordx4 v[4:7], v2, %s, s%d offen sc1" % (sr(S_Q, 4), S_TMP + 1))
        if j < 7:
            a("s_add_u32 s%d, s%d, 32768" % (S_TMP + 1, S_TMP + 1))
    a("s_lshl_b32 s%d, s%d, 16" % (S_TMP + 1, S_TMP))
    a("s_lshl_b32 s%d, s%d, 8" % (S_TMP + 2, S_H))
    a("s_add_u32 s%d, s%d, s%d" % (S_TMP + 1, S_TMP + 1, S_TMP + 2))
    a("s_add_u32 s%d, s%d, 0x%x" % (S_TMP + 1, S_TMP + 1, WS_OB))
    a("s_add_u32 s%d, s%d, 32768" % (S_TMP + 2, S_TMP + 1))
    a("buffer_store_dwordx4 v[4:7], v3, %s, s%d offen sc1" % (sr(S_Q, 4), S_TMP + 1))
    a("buffer_store_dwordx4 v[4:7], v3, %s, s%d offen sc1" % (sr(S_Q, 4), S_TMP + 2))
    a("s_lshl_b32 s%d, s2, 7" % S_TMP)
    a("s_add_u32 s%d, s%d, 0x%x" % (S_TMP, S_TMP, WS_FLG))
    a("v_mov_b32 v2, 0")
    a("s_waitcnt vmcnt(0)")
    a("s_mov_b64 exec, 1")
    a("buffer_store_dword v4, v2, %s, s%d offen sc1" % (sr(S_Q, 4), S_TMP))
    a("s_mov_b64 exec, -1")
    a("L2_hnofill:")
    tile_ids()
    a("s_add_u32 s36, s4, 0x%x" % WS_SEL)
    a("s_addc_u32 s37, s5, 0")
    a("s_load_dwordx8 s[64:71], s[36:37], 0")
    a("s_mul_i32 s38, s%d, 102400" % S_CB)
    a("s_add_u32 s38, s38, 0x%x" % WS_WOT)
    a("v_lshlrev_b32 v2, 7, v0")
    a("s_lshr_b32 s%d, s2, 6" % S_TMP)
    a("s_mul_i32 s%d, s%d, 25600" % (S_TMP, S_TMP))
    a("s_mul_i32 s%d, s%d, 12800" % (S_TMP + 1, S_FB))
    a("s_add_u32 s%d, s%d, s%d" % (S_TMP, S_TMP, S_TMP + 1))
    a("s_add_u32 s%d, s%d, s38" % (S_TMP, S_TMP))
    a("s_add_u32 s%d, s%d, 4608" % (S_TMP + 1, S_TMP))
    a("s_cmp_eq_u32 s%d, 2" % S_FB)
    a("s_cbranch_scc1 L2_hx")
    a("buffer_load_dword v4, v2, %s, s%d offen" % (sr(S_Q, 4), S_TMP))
    a("buffer_load_dword v4, v2, %s, s%d offen" % (sr(S_Q, 4), S_TMP + 1))
    a("s_branch L2_hx1")
    a("L2_hx:")
    a("v_and_b32 v2, 31, v0")
    a("v_lshlrev_b32 v2, 7, v2")
    a("s_lshr_b32 s%d, s%d, 2" % (S_TMP, S_RB))
    a("s_lshl_b32 s%d, s%d, 12" % (S_TMP, S_TMP))
    a("s_add_u32 s%d, s%d, 0x%x" % (S_TMP, S_TMP, WS_FLG))
    a("s_mov_b32 s%d, %d" % (S_TMP + 1, SPIN))
    a("L2_hp2:")
    a("s_sleep 32")
    a("buffer_load_dword v4, v2, %s, s%d offen sc1" % (sr(S_Q, 4), S_TMP))
    a("s_sub_u32 s%d, s%d, 1" % (S_TMP + 1, S_TMP + 1))
    a("s_cbranch_scc1 L2_hp2d")
    a("s_waitcnt vmcnt(0)")
    a("v_cmp_eq_u32 vcc, 0, v4")
    a("s_cbranch_vccnz L2_hp2")
    a("L2_hp2d:")
    a("L2_hx1:")
    a("v_and_b32 v2, 3, v0")
    a("v_lshlrev_b32 v2, 2, v2")
    a("s_mov_b32 s%d, 0" % S_G)
    a("L2_hph:")
    a("s_lshl_b32 s%d, s%d, 3" % (S_TMP + 1, S_G))
    a("s_lshr_b32 s%d, 0x%x, s%d" % (S_TMP, 0 | 50 << 8 | 30 << 16 | 81 << 24, S_TMP + 1))
    a("s_and_b32 s%d, s%d, 255" % (S_TMP, S_TMP))
    a("s_lshr_b32 s%d, 0x%x, s%d" % (S_KS, 30 | 81 << 8 | 50 << 16 | 100 << 24, S_TMP + 1))
    a("s_and_b32 s%d, s%d, 255" % (S_KS, S_KS))
    a("s_add_u32 s%d, s%d, s%d" % (S_TMP, S_TMP, S_FB))
    a("s_mov_b32 s%d, %d" % (S_TMP + 1, SPIN))
    a("L2_hwait:")
    a("ds_read_b32 v3, v2 offset:%d" % L_MARK)
    a("s_sub_u32 s%d, s%d, 1" % (S_TMP + 1, S_TMP + 1))
    a("s_cbranch_scc1 L2_hw")
    wl(0)
    a("v_cmp_ne_u32 vcc, 0x%x, v3" % MARK)
    a("s_cbranch_vccz L2_hw")
    a("s_sleep 8")
    a("s_branch L2_hwait")
    a("L2_hw:")
    a("s_lshl_b32 s%d, s%d, 10" % (S_TMP + 1, S_TMP))
    a("s_add_u32 s%d, s%d, s38" % (S_TMP + 1, S_TMP + 1))
    a("s_cmp_ge_u32 s%d, 50" % S_TMP)
    a("s_cselect_b32 s%d, %d, 0" % (S_TMP + 2, L_W1 - 51200 - L_W0))
    a("s_lshl_b32 s%d, s%d, 10" % (S_TMP + 3, S_TMP))
    a("s_add_u32 s%d, s%d, s%d" % (S_TMP + 2, S_TMP + 2, S_TMP + 3))
    a("s_add_u32 m0, s%d, %d" % (S_TMP + 2, L_W0))
    a("s_add_u32 s%d, s%d, 3" % (S_TMP, S_TMP))
    a("buffer_load_dwordx4 v%d, %s, s%d offen lds" % (VL, sr(S_Q, 4), S_TMP + 1))
    a("s_cmp_lt_u32 s%d, s%d" % (S_TMP, S_KS))
    a("s_cbranch_scc1 L2_hw")
    a("v_add_u32 v2, 16, v2")
    a("s_add_u32 s%d, s%d, 1" % (S_G, S_G))
    a("s_cmp_lt_u32 s%d, 4" % S_G)
    a("s_cbranch_scc1 L2_hph")
    a("s_cmp_lg_u32 s%d, 0" % S_FB)
    a("s_cbranch_scc1 L2_hdone")
    a("s_mov_b32 s%d, 0" % S_TMP)
    for sl in range(8):
        a("s_lshr_b32 s%d, s%d, 6" % (S_TMP + 1, 64 + sl))
        a("s_cmp_eq_u32 s%d, s%d" % (S_TMP + 1, S_RB))
        a("s_cselect_b32 s%d, 1, s%d" % (S_TMP, S_TMP))
    a("s_cmp_eq_u32 s%d, 0" % S_TMP)
    a("s_cbranch_scc1 L2_hdone")
    a("v_lshlrev_b32 v2, 7, v0")
    for j in range(3):
        a("s_mov_b32 s%d, 0x%x" % (S_TMP + 2 + j, WS_FLG + 32768 + 8192 * j))
    a("s_mov_b32 s%d, %d" % (S_TMP + 1, SPIN))
    a("L2_hpoll:")
    for j in range(3):
        a("buffer_load_dword v%d, v2, %s, s%d offen sc1" % (4 + j, sr(S_Q, 4), S_TMP + 2 + j))
    a("s_sub_u32 s%d, s%d, 1" % (S_TMP + 1, S_TMP + 1))
    a("s_cbranch_scc1 L2_hpolled")
    a("s_waitcnt vmcnt(0)")
    a("v_min3_u32 v4, v4, v5, v6")
    a("v_cmp_eq_u32 vcc, 0, v4")
    a("s_cbranch_vccz L2_hpolled")
    a("s_sleep 8")
    a("s_branch L2_hpoll")
    a("L2_hpolled:")
    a("v_lshrrev_b32 v2, 3, v0")
    a("v_and_b32 v3, 7, v0")
    a("v_lshlrev_b32 v3, 4, v3")
    a("v_mul_u32_u24 v100, 2560, v2")
    a("v_add_u32 v100, v100, v3")
    a("v_mul_u32_u24 v101, 320, v2")
    a("v_add_u32 v101, v101, v3")
    a("s_mul_i32 s%d, s%d, 320" % (S_TMP, S_CB))
    a("s_add_u32 s%d, s%d, 0x%x" % (S_TMP, S_TMP, WS_UPD))
    for rp in range(8):
        for j in range(3):
            a("buffer_load_dwordx4 %s, v100, %s, s%d offen offset:%d sc1" % (vr(4 + 12 * rp + 4 * j, 4), sr(S_Q, 4), S_TMP, 128 * j))
        if rp < 7:
            a("s_add_u32 s%d, s%d, 20480" % (S_TMP, S_TMP))
    a("v_cmp_gt_u32 vcc, 64, v3")
    a("s_waitcnt vmcnt(0)")
    for rp in range(1, 8):
        for j in range(6):
            a("v_pk_add_f32 %s, %s, %s" % (vr(4 + 2 * j, 2), vr(4 + 2 * j, 2), vr(4 + 12 * rp + 2 * j, 2)))
    a("ds_write_b128 v101, v[4:7] offset:%d" % L_Y)
    a("ds_write_b128 v101, v[8:11] offset:%d" % (L_Y + 128))
    a("s_mov_b64 exec, vcc")
    a("ds_write_b128 v101, v[12:15] offset:%d" % (L_Y + 256))
    a("s_mov_b64 exec, -1")
    a("L2_hdone:")
    a("s_waitcnt vmcnt(0) lgkmcnt(0)")
    a("L2_hend:")
    diag(4, 8)
    tile_ids()
    X, G, R, U, XF, MRS, ROW, CO, SG, VX, P1_, P2_ = 4, 14, 24, 44, 64, 84, 86, 87, 88, 89, 90, 91
    S_X, S_OUT = 8, 56
    a("s_add_u32 s36, s4, 0x%x" % WS_SEL)
    a("s_addc_u32 s37, s5, 0")
    srd(a, S_X, 62, 63, 2621440)
    srd(a, S_OUT, 60, 61, 2621440)
    a("s_load_dwordx16 s[64:79], s[36:37], 0")
    a("s_lshl_b32 s%d, s%d, 2" % (S_TT, S_RB))
    a("s_add_u32 s%d, s%d, s%d" % (S_TT, S_TT, S_W))
    a("v_and_b32 v%d, 15, v0" % ROW)
    a("v_lshrrev_b32 v%d, 4, v0" % CO)
    a("s_lshl_b32 s%d, s%d, 4" % (S_TMP, S_TT))
    a("v_add_u32 v%d, s%d, v%d" % (ROW, S_TMP, ROW))
    a("v_mul_u32_u24 v%d, 1280, v%d" % (VX, ROW))
    a("v_mul_u32_u24 v%d, 40, v%d" % (CO, CO))
    a("s_mul_i32 s%d, s%d, 160" % (S_TMP, S_CB))
    a("v_add3_u32 v%d, v%d, v%d, s%d" % (VX, VX, CO, S_TMP))
    a("v_lshlrev_b32 v2, 2, v%d" % ROW)
    a("s_mov_b32 s%d, 0x%x" % (S_TMP, WS_STAT))
    a("s_mov_b32 s%d, 0x%x" % (S_TMP + 1, WS_STAT + 8192))
    a("buffer_load_dwordx4 %s, v%d, %s, 0 offen" % (vr(X, 4), VX, sr(S_X, 4)))
    a("buffer_load_dwordx4 %s, v%d, %s, 0 offen offset:16" % (vr(X + 4, 4), VX, sr(S_X, 4)))
    a("buffer_load_dwordx2 %s, v%d, %s, 0 offen offset:32" % (vr(X + 8, 2), VX, sr(S_X, 4)))
    a("buffer_load_dword v%d, v2, %s, s%d offen" % (MRS, sr(S_Q, 4), S_TMP))
    a("buffer_load_dword v%d, v2, %s, s%d offen" % (MRS + 1, sr(S_Q, 4), S_TMP + 1))
    a("s_setprio 0")
    a("s_waitcnt lgkmcnt(0)")
    a("s_barrier")
    a("s_barrier")
    a("s_barrier")
    for i in range(20):
        a("v_mov_b32 v%d, 0" % (U + i))
    a("s_mov_b64 s[38:39], 0")
    for sl in range(8):
        a("v_cmp_eq_u32 vcc, s%d, v%d" % (64 + sl, ROW))
        a("v_mov_b32 v%d, %d" % (R, L_Y + 320 * sl))
        a("v_mov_b32 v%d, s%d" % (R + 1, 72 + sl))
        a("s_or_b64 s[38:39], s[38:39], vcc")
        a("v_cndmask_b32 v2, v2, v%d, vcc" % R)
        a("v_cndmask_b32 v%d, v%d, v%d, vcc" % (SG, SG, R + 1))
    a("s_cbranch_scc0 L2_noupd")
    a("v_lshl_add_u32 v2, v%d, 1, v2" % CO)
    a("s_mov_b64 exec, s[38:39]")
    for c in range(5):
        a("ds_read_b128 %s, v2 offset:%d" % (vr(U + 4 * c, 4), 16 * c))
    wl(0)
    for i in range(20):
        bf16_round(a, U + i, U + i)
    for i in range(20):
        a("v_mul_f32 v%d, v%d, v%d" % (U + i, U + i, SG))
    for i in range(20):
        bf16_round(a, U + i, U + i)
    a("s_mov_b64 exec, -1")
    a("L2_noupd:")
    a("s_waitcnt vmcnt(0)")
    def unpack(dst, src):
        for i in range(10):
            a("v_lshlrev_b32 v%d, 16, v%d" % (dst + 2 * i, src + i))
            a("v_and_b32 v%d, 0xffff0000, v%d" % (dst + 2 * i + 1, src + i))
    def pack(dst, src):
        for i in range(10):
            a("v_cvt_pk_bf16_f32 v%d, v%d, v%d" % (dst + i, src + 2 * i, src + 2 * i + 1))
    unpack(XF, X)
    for i in range(20):
        a("v_sub_f32 v%d, v%d, v%d" % (R + i, XF + i, MRS))
    pack(G, R)
    unpack(R, G)
    for i in range(20):
        a("v_mul_f32 v%d, v%d, v%d" % (R + i, R + i, MRS + 1))
    pack(G, R)
    unpack(R, G)
    for i in range(20):
        a("v_add_f32 v%d, v%d, v%d" % (U + i, U + i, R + i))
    for i in range(20):
        a("v_mul_f32 v%d, 0xbfb8aa3b, v%d" % (R + i, U + i))
    for i in range(20):
        a("v_exp_f32 v%d, v%d" % (R + i, R + i))
    for i in range(20):
        a("v_add_f32 v%d, 1.0, v%d" % (R + i, R + i))
    for i in range(20):
        a("v_rcp_f32 v%d, v%d" % (R + i, R + i))
    for i in range(20):
        a("v_mul_f32 v%d, v%d, v%d" % (U + i, U + i, R + i))
    a("s_mul_i32 s%d, s%d, 5120" % (S_TMP, S_W))
    a("s_add_u32 s%d, s%d, %d" % (S_TMP, S_TMP, L_GX))
    a("v_add_u32 v%d, s%d, v1" % (P1_, S_TMP))
    a("s_mul_i32 s%d, s%d, 7168" % (S_TMP, S_W))
    a("s_add_u32 s%d, s%d, %d" % (S_TMP, S_TMP, L_EX + 3584))
    a("v_add_u32 v%d, s%d, v1" % (P2_, S_TMP))
    a("s_lshl_b32 s%d, s%d, 11" % (S_TMP, S_W))
    a("s_add_u32 s%d, s%d, %d" % (S_TMP, S_TMP, L_P2))
    a("v_add_u32 v3, s%d, v1" % S_TMP)
    a("s_barrier")
    S0, S1 = 24, 104
    for t in range(5):
        a("ds_read_b128 %s, v%d offset:%d" % (vr(S0 + 4 * t, 4), P1_, 1024 * t))
        a("ds_read_b128 %s, v%d offset:%d" % (vr(S1 + 4 * t, 4), P2_ if t < 3 else 3, 1024 * (t % 3)))
    for i in range(20):
        if i % 4 == 0:
            wl(8 - i // 2)
        a("v_add_f32 v%d, v%d, v%d" % (S0 + i, S0 + i, S1 + i))
        a("v_fmac_f32 v%d, v%d, v%d" % (XF + i, S0 + i, U + i))
        if i & 1:
            a("v_cvt_pk_bf16_f32 v%d, v%d, v%d" % (X + i // 2, XF + i - 1, XF + i))
        if i == 7:
            a("buffer_store_dwordx4 %s, v%d, %s, 0 offen" % (vr(X, 4), VX, sr(S_OUT, 4)))
        if i == 15:
            a("buffer_store_dwordx4 %s, v%d, %s, 0 offen offset:16" % (vr(X + 4, 4), VX, sr(S_OUT, 4)))
    a("buffer_store_dwordx2 %s, v%d, %s, 0 offen offset:32" % (vr(X + 8, 2), VX, sr(S_OUT, 4)))
    a("s_endpgm")
    a("L2_code_end:")
    return kernel_desc(name, 168, 96 if RT else 80)
```

```python
import sys
from common import *
from k2 import gen_k2, K2_NW

HEADER = open("cdna_kernels/%s.s.ref" % NAME).read().split("; Override launch")[0]

def build(which):
    a = Asm()
    launches = []
    descs = []
    if "1" in which:
        from k1 import gen_k1, K1_LDS
        launches.append("; @launch kernel=qkv_kernel grid=(256,1,1) block=(512,1,1) lds=%d" % K1_LDS)
        descs.append(gen_k1(a))
    if "2" in which:
        launches.append("; @launch kernel=attn_kernel grid=(256,1,1) block=(%d,1,1) lds=163840" % (64 * K2_NW))
        descs.append(gen_k2(a))
    if "3" in which:
        from k3 import gen_k3, K3_LDS, K3_NW
        launches.append("; @launch kernel=oproj_kernel grid=(256,1,1) block=(%d,1,1) lds=%d" % (64 * K3_NW, K3_LDS))
        descs.append(gen_k3(a))
    a("L_code_end:")
    a("s_endpgm")
    out = HEADER + "\n".join(launches) + "\n" + '.amdgcn_target "amdgcn-amd-amdhsa--gfx950"\n' + a.text() + "".join(descs)
    import os, re
    if os.environ.get("TL"):
        lines = []
        kidx = -1
        for l in out.split("\n"):
            m = re.match(r"(\w+_kernel):$", l)
            if m:
                kidx += 1
                lines.append(l)
                lines.append("    s_memrealtime s[96:97]")
                lines.append("    s_load_dwordx2 s[92:93], s[0:1], 80")
                lines.append("    v_readfirstlane_b32 s98, v0")
                lines.append("    s_mov_b32 s99, s2")
                continue
            if l.strip() == "s_endpgm" and kidx >= 0:
                lines += ["    s_branch LTL_%d" % kidx]
                continue
            lines.append(l)
        i = max(j for j, l in enumerate(lines) if l.startswith("L_code_end:"))
        tail = []
        for k in range(3):
            tail += ["LTL_%d:" % k, "    s_memrealtime s[90:91]", "    s_waitcnt vmcnt(0) lgkmcnt(0)", "    s_memrealtime s[100:101]", "    s_waitcnt lgkmcnt(0)",
                     "    s_mov_b32 s94, 0x%x" % WS_END, "    s_mov_b32 s95, 0x20000", "    s_mov_b64 exec, 1",
                     "    s_lshr_b32 s98, s98, 6", "    s_lshl_b32 s99, s99, 4", "    s_add_u32 s99, s99, s98", "    s_lshl_b32 s99, s99, 4",
                     "    s_add_u32 s99, s99, 0x%x" % (WS_DIAG + 0x80000 + k * 0x20000),
                     "    v_mov_b32 v0, s96", "    v_mov_b32 v1, s90", "    v_mov_b32 v2, s100", "    v_mov_b32 v3, 0",
                     "    buffer_store_dwordx4 v[0:3], v3, s[92:95], s99 offen", "    s_endpgm"]
        lines[i + 1:i + 2] = ["    s_endpgm"] + tail
        out = "\n".join(lines)
        out = re.sub(r"amdhsa_next_free_sgpr \d+", "amdhsa_next_free_sgpr 102", out)
    if os.environ.get("TL") == "2":
        body = """
.globl rep_kernel
.p2align 8
.type rep_kernel,@function
rep_kernel:
    s_cmp_ge_u32 s2, 1
    s_cbranch_scc1 LR_end
    s_memrealtime s[20:21]
    s_load_dwordx4 s[4:7], s[0:1], 72
    s_waitcnt lgkmcnt(0)
    s_mov_b32 s8, s6
    s_mov_b32 s9, s7
    s_mov_b32 s10, 0x%x
    s_mov_b32 s11, 0x20000
    s_mov_b32 s12, s4
    s_mov_b32 s13, s5
    s_mov_b32 s14, 256
    s_mov_b32 s15, 0x20000
    v_lshlrev_b32 v1, 8, v0
    v_mov_b32 v20, 0
""" % WS_END
        for k, nw in ((0, 8), (1, 12)):
            body += "    s_mov_b32 s16, 0x%x\n" % (WS_DIAG + 0x80000 + k * 0x20000)
            for w in range(nw):
                body += "    buffer_load_dwordx4 v[4:7], v1, s[8:11], s16 offen offset:%d\n    s_waitcnt vmcnt(0)\n" % (16 * w)
                body += "    v_sub_u32 v4, s20, v4\n    v_sub_u32 v5, s20, v5\n    v_sub_u32 v6, s20, v6\n    v_sub_u32 v8, 0, v4\n    v_sub_u32 v9, 0, v5\n    v_sub_u32 v10, 0, v6\n"
                body += "    buffer_atomic_umax v4, v20, s[12:15], 0 offen offset:%d\n" % (16 * k)
                body += "    buffer_atomic_umax v8, v20, s[12:15], 0 offen offset:%d\n" % (16 * k + 4)
                body += "    buffer_atomic_umax v9, v20, s[12:15], 0 offen offset:%d\n" % (16 * k + 8)
                body += "    buffer_atomic_umax v10, v20, s[12:15], 0 offen offset:%d\n    s_waitcnt vmcnt(0)\n" % (16 * k + 12)
        body += "LR_end:\n    s_endpgm\n"
        i = out.index('.section .rodata')
        out = out[:i] + body + out[i:] + kernel_desc("rep_kernel", 32, 32)
        out = out.replace('.amdgcn_target', '; @launch kernel=rep_kernel grid=(1,1,1) block=(256,1,1) lds=0\n.amdgcn_target', 1)
    wsb = int(os.environ.get("WSB", "0"), 0)
    if wsb:
        out = re.sub(r"s_mov_b32 (s\d+), s42\n\s+s_mov_b32 (s\d+), s43", lambda m: "s_add_u32 %s, s42, 0x%x\n    s_addc_u32 %s, s43, 0" % (m.group(1), wsb, m.group(2)), out)
        k2 = out.index("attn_kernel:")
        head, tail = out[:k2], out[k2:]
        tail = re.sub(r"s_mov_b32 (s\d+), s4\n\s+s_mov_b32 (s\d+), s5", lambda m: "s_add_u32 %s, s4, 0x%x\n    s_addc_u32 %s, s5, 0" % (m.group(1), wsb, m.group(2)), tail)
        tail = re.sub(r"s_add_u32 (s22|s36), s4, 0x([0-9a-f]+)", lambda m: "s_add_u32 %s, s4, 0x%x" % (m.group(1), int(m.group(2), 16) + wsb), tail)
        tail = tail.replace("s_mul_i32 s29, s16, 163840\n", "s_mul_i32 s29, s16, 163840\n    s_add_u32 s29, s29, 0x%x\n" % wsb)
        out = head + tail
    mod = os.environ.get("STMOD", "")
    if mod:
        lines = []
        for l in out.split("\n"):
            if re.match(r"\s*buffer_store_dwordx[24] ", l) and " sc" not in l and " nt" not in l:
                l = l + " " + mod
            lines.append(l)
        out = "\n".join(lines)
    return out

if __name__ == "__main__":
    which = sys.argv[1] if len(sys.argv) > 1 else "123"
    path = sys.argv[2] if len(sys.argv) > 2 else "cdna_kernels/%s.s" % NAME
    open(path, "w").write(build(which))
    print("wrote", path)
```

```python
NAME = "recurrent_scan__mha_block__moe_arch_mod__prompt"

class Asm:
    def __init__(self):
        self.lines = []
    def __call__(self, s):
        for l in s.split("\n"):
            l = l.strip()
            if not l:
                continue
            if l.endswith(":") or l.startswith("."):
                self.lines.append(l)
            else:
                self.lines.append("    " + l)
    def text(self):
        return "\n".join(self.lines) + "\n"

def vr(a, n=1):
    return "v%d" % a if n == 1 else "v[%d:%d]" % (a, a + n - 1)

def sr(a, n=1):
    return "s%d" % a if n == 1 else "s[%d:%d]" % (a, a + n - 1)

def kernel_begin(a, name):
    a(".text")
    a(".globl %s" % name)
    a(".p2align 8")
    a(".type %s,@function" % name)
    a("%s:" % name)

def kernel_desc(name, vgpr, sgpr, accum=None):
    if accum is None:
        accum = (vgpr + 3) // 4 * 4
    return """.section .rodata,"a"
.p2align 6
.amdhsa_kernel %s
  .amdhsa_next_free_vgpr %d
  .amdhsa_next_free_sgpr %d
  .amdhsa_accum_offset %d
  .amdhsa_group_segment_fixed_size 0
  .amdhsa_kernarg_size 88
  .amdhsa_user_sgpr_count 2
  .amdhsa_user_sgpr_kernarg_segment_ptr 1
  .amdhsa_system_sgpr_workgroup_id_x 1
.end_amdhsa_kernel
""" % (name, vgpr, sgpr, accum)

KA_X, KA_WQKV, KA_WO, KA_BX, KA_WR, KA_WG, KA_WU, KA_WD, KA_OUT, KA_DBG, KA_WS = [8 * i for i in range(11)]

WS_KV = 0x000000
WS_Q = 0x500000
WS_O = 0x780000
WS_OB = 0x980000
WS_WOT = 0xA00000
WS_STAT = 0xB00000
WS_CS = 0xB04000
WS_KEY = 0xB08000
WS_SEL = 0xB0A000
WS_FLG = 0xC00000
WS_UPD = 0xD00000
WS_XN = 0xD80000
WS_DIAG = 0x1000000
WS_END = 0x1100000

def srd(a, d, base_lo, base_hi, nbytes, off=0):
    if off:
        a("s_add_u32 s%d, s%d, 0x%x" % (d, base_lo, off))
        a("s_addc_u32 s%d, s%d, 0" % (d + 1, base_hi))
    else:
        a("s_mov_b32 s%d, s%d" % (d, base_lo))
        a("s_mov_b32 s%d, s%d" % (d + 1, base_hi))
    a("s_mov_b32 s%d, 0x%x" % (d + 2, nbytes))
    a("s_mov_b32 s%d, 0x20000" % (d + 3))

import struct
def f2u(x):
    return struct.unpack("<I", struct.pack("<f", x))[0]

def bf16_round(a, d, s):
    a("v_cvt_pk_bf16_f32 v%d, v%d, v%d" % (d, s, s))
    a("v_and_b32 v%d, 0xffff0000, v%d" % (d, d))

def code_prefetch(a, sbase, vtmp, vjunk, start, end, vlane="v0", nmax=4):
    lab = "Lpc_%d" % len(a.lines)
    a("s_getpc_b64 s[%d:%d]" % (sbase, sbase + 1))
    a("%s:" % lab)
    a("s_add_u32 s%d, s%d, %s-%s" % (sbase, sbase, start, lab))
    a("s_addc_u32 s%d, s%d, %s" % (sbase + 1, sbase + 1, "0" if False else "((%s-%s)>>32)" % (start, lab)))
    a("s_mov_b32 s%d, %s-%s" % (sbase + 2, end, start))
    a("s_mov_b32 s%d, 0x20000" % (sbase + 3))
    a("v_lshlrev_b32 v%d, 7, %s" % (vtmp, vlane))
    for i in range(nmax):
        a("buffer_load_dword v%d, v%d, s[%d:%d], 0 offen" % (vjunk, vtmp, sbase, sbase + 3))
        if i + 1 < nmax:
            a("v_add_u32 v%d, 8192, v%d" % (vtmp, vtmp))

import os
FUSE = os.environ.get("FUSE", "1") == "1"
FLG_A = WS_FLG
FLG_M = WS_FLG + 32768
FLG_G = WS_FLG + 65536
FLG_S = WS_FLG + 98304
S_PFL = 55
```

```python
from common import *
import os
DIAG = os.environ.get("DIAG")
SLOT = 16384 + 4 * 5152
NS = 4
L_ST = NS * SLOT
K1_LDS = L_ST + 1664
POLL_ST = int(os.environ.get('K1_POLL', '8'))
QSCALE = f2u(1.4426950408889634 * 20 ** -0.5)
SPIN_MAX = 1 << 16
QM = ' ' + os.environ.get('K1_QM', 'sc1')

S_X, S_W, S_WS, S_DBG = 8, 12, 16, 44
S_WV = 20

def gen_k1(a, name="qkv_kernel"):
    from k1s import gen_spare
    S_RB, S_CB, S_J = 21, 22, 23
    S_T = 24
    S_R4, S_C6 = 33, 34
    S_ST, S_DL, S_MASK, S_STATE = 36, 37, 38, 48
    def stamp(i):
        if DIAG:
            a("s_memtime s[%d:%d]" % (60 + 2 * i, 61 + 2 * i))
    def diag_out():
        if DIAG:
            a("s_memrealtime s[56:57]")
            a("s_waitcnt lgkmcnt(0)")
            a("s_sub_u32 s56, s56, s52")
            a("s_mov_b64 exec, -1")
            a("v_mov_b32 v3, 0")
            for i in range(6):
                a("s_sub_u32 s%d, s%d, s50" % (60 + 2 * i, 60 + 2 * i))
                a("v_mov_b32 v%d, s%d" % (4 + i, 60 + 2 * i))
            a("v_mov_b32 v10, s56")
            a("v_mov_b32 v11, s52")
            a("s_lshl_b32 s58, s2, 3")
            a("s_add_u32 s58, s58, s%d" % S_WV)
            a("s_lshl_b32 s58, s58, 5")
            a("s_add_u32 s58, s58, 0x%x" % (WS_DIAG + 0x60000))
            a("s_mov_b64 exec, 1")
            a("buffer_store_dwordx4 v[4:7], v3, %s, s58 offen" % sr(S_WS, 4))
            a("buffer_store_dwordx4 v[8:11], v3, %s, s58 offen offset:16" % sr(S_WS, 4))
    def done(nbar=0):
        if FUSE:
            for _ in range(nbar):
                a("s_barrier")
            a("s_branch L2_entry")
        else:
            a("s_endpgm")
    kernel_begin(a, name)
    a("s_cmp_ge_u32 s2, 256")
    a("s_cbranch_scc1 L1_end")
    a("s_load_dwordx4 s[4:7], s[0:1], 0")
    a("s_load_dwordx4 s[40:43], s[0:1], %d" % KA_DBG)
    if DIAG:
        a("s_memtime s[50:51]")
        a("s_memrealtime s[52:53]")
        for i in range(6):
            a("s_mov_b32 s%d, 0" % (60 + 2 * i))
    a("v_lshrrev_b32 v1, 6, v0")
    a("v_and_b32 v0, 63, v0")
    a("s_mov_b32 s%d, 0x7f000000" % S_PFL)
    a("v_readfirstlane_b32 s%d, v1" % S_WV)
    if FUSE:
        a("s_nop 0")
        a("s_cmp_ge_u32 s%d, 8" % S_WV)
        a("s_cbranch_scc1 L1_idle")
    a("s_cmp_lt_u32 s2, 64")
    a("s_cbranch_scc1 L1_spare")
    a("s_sub_u32 s%d, s2, 64" % S_T)
    a("s_lshr_b32 s%d, s%d, 3" % (S_J, S_T))
    a("s_mul_i32 s%d, s%d, 43" % (S_T + 2, S_J))
    a("s_lshr_b32 s%d, s%d, 8" % (S_T + 2, S_T + 2))
    a("s_mul_i32 s%d, s%d, 6" % (S_T + 3, S_T + 2))
    a("s_sub_u32 s%d, s%d, s%d" % (S_T + 3, S_J, S_T + 3))
    a("s_bfe_u32 s%d, s%d, 0x20001" % (S_RB, S_T))
    a("s_lshl_b32 s%d, s%d, 2" % (S_RB, S_RB))
    a("s_add_u32 s%d, s%d, s%d" % (S_RB, S_RB, S_T + 2))
    a("s_and_b32 s%d, s%d, 1" % (S_CB, S_T))
    a("s_mul_i32 s%d, s%d, 6" % (S_CB, S_CB))
    a("s_add_u32 s%d, s%d, s%d" % (S_CB, S_CB, S_T + 3))
    a("s_mov_b32 s%d, s%d" % (S_R4, S_T + 2))
    a("s_mov_b32 s%d, s%d" % (S_C6, S_T + 3))
    a("s_mov_b32 s39, %d" % SLOT)
    a("s_cmp_ge_u32 s%d, 4" % S_WV)
    a("s_cbranch_scc1 L1_compute")
    VX = [2, 3, 4, 5]; VW = [6, 7, 8, 9, 10]; T0, T1, T2 = 11, 12, 13
    S_LW, S_MX, S_MW, S_SX, S_SW = S_WV, 25, 26, 27, 28
    a("s_lshl_b32 s29, s%d, 7" % S_RB)
    a("s_lshl_b32 s30, s%d, 5" % S_LW)
    a("s_add_u32 s29, s29, s30")
    a("v_lshrrev_b32 v%d, 3, v0" % T0)
    a("v_add_u32 v%d, s29, v%d" % (T0, T0))
    a("v_mul_u32_u24 v%d, 1280, v%d" % (T0, T0))
    a("v_lshrrev_b32 v%d, 4, v0" % T1)
    a("v_and_b32 v%d, 2, v%d" % (T2, T1))
    a("v_lshlrev_b32 v%d, 1, v%d" % (T2, T2))
    a("v_xor_b32 v%d, v%d, v%d" % (T1, T1, T2))
    a("v_and_b32 v%d, 7, v0" % T2)
    a("v_xor_b32 v%d, v%d, v%d" % (T1, T1, T2))
    a("v_lshl_add_u32 v%d, v%d, 4, v%d" % (VX[0], T1, T0))
    a("v_xor_b32 v%d, 4, v%d" % (T1, T1))
    a("v_lshl_add_u32 v%d, v%d, 4, v%d" % (VX[1], T1, T0))
    a("v_add_u32 v%d, %d, v%d" % (VX[1], 8 * 1280 - 1024, VX[1]))
    a("v_add_u32 v%d, %d, v%d" % (VX[2], 16 * 1280 - 2048, VX[0]))
    a("v_add_u32 v%d, %d, v%d" % (VX[3], 16 * 1280 - 2048, VX[1]))
    a("s_mul_i32 s29, s%d, %d" % (S_LW, 16 * 3840))
    a("s_mul_i32 s30, s%d, 320" % S_CB)
    a("s_add_u32 s29, s29, s30")
    a("v_lshlrev_b32 v%d, 4, v0" % T0)
    a("v_add_u32 v%d, s29, v%d" % (T0, T0))
    a("v_mul_u32_u24 v%d, 3277, v0" % T1)
    a("s_movk_i32 s30, %d" % (3840 - 320))
    for i in range(5):
        a("v_add_u32 v%d, %d, v%d" % (T2, 64 * i * 3277, T1))
        a("v_lshrrev_b32 v%d, 16, v%d" % (T2, T2))
        a("v_mad_u32_u24 v%d, v%d, s30, v%d" % (VW[i], T2, T0))
    a("v_add_u32 v%d, 4096, v%d" % (VW[4], VW[4]))
    a("s_lshl_b32 s%d, s%d, 12" % (S_MX, S_LW))
    a("s_mul_i32 s%d, s%d, 5152" % (S_MW, S_LW))
    a("s_add_u32 s%d, s%d, 16384" % (S_MW, S_MW))
    if os.environ.get("K1_ROT", "1") == "1":
        a("s_lshl_b32 s29, s%d, 1" % S_C6)
        a("s_min_u32 s29, s29, 9")
        a("s_mul_i32 s30, s%d, 5" % S_R4)
        a("s_add_u32 s30, s30, 1")
        a("s_lshr_b32 s30, s30, 1")
        a("s_add_u32 s29, s29, s30")
        a("s_cmp_ge_u32 s29, 10")
        a("s_cselect_b32 s30, 10, 0")
        a("s_sub_u32 s29, s29, s30")
    else:
        a("s_mov_b32 s29, 0")
    a("s_lshl_b32 s%d, s29, 7" % S_SX)
    a("s_mul_i32 s%d, s29, %d" % (S_SW, 64 * 3840))
    VFL, VZ, VSA, VCA, ST0, ST1, ST2 = 14, 15, 16, 17, 20, 24, 28
    a("s_lshl_b32 s30, s%d, 12" % S_WV)
    a("v_mov_b32 v%d, s30" % VZ)
    a("s_waitcnt lgkmcnt(0)")
    srd(a, S_X, 4, 5, 2621440)
    srd(a, S_W, 6, 7, 2457600)
    def poll_issue(mode=""):
        a("s_mov_b64 exec, 1")
        a("buffer_load_dword v%d, v%d, %s, 0 offen %s" % (VFL, VZ, sr(S_DBG, 4), mode))
        a("s_mov_b64 exec, -1")
    stamp(0)
    def half(h):
        n = h // 2
        base = (n % NS) * SLOT
        if h % 2 == 0:
            a("s_add_u32 m0, s%d, %d" % (S_MX, base))
            a("s_nop 0")
            for i in range(4):
                a("buffer_load_dwordx4 v%d, %s, s%d offen offset:%d lds" % (VX[i], sr(S_X, 4), S_SX, 1024 * i))
            a("s_add_u32 s%d, s%d, 128" % (S_SX, S_SX))
            a("s_cmp_eq_u32 s%d, 1280" % S_SX)
            a("s_cselect_b32 s%d, 0, s%d" % (S_SX, S_SX))
            return 4
        a("s_add_u32 m0, s%d, %d" % (S_MW, base))
        a("s_nop 0")
        for i in range(4):
            a("buffer_load_dwordx4 v%d, %s, s%d offen offset:%d lds" % (VW[i], sr(S_W, 4), S_SW, 1024 * i))
        a("s_add_u32 m0, s%d, %d" % (S_MW, base + 4096))
        a("s_nop 0")
        a("buffer_load_dwordx4 v%d, %s, s%d offen lds" % (VW[4], sr(S_W, 4), S_SW))
        a("s_add_u32 s%d, s%d, %d" % (S_SW, S_SW, 64 * 3840))
        a("s_cmp_eq_u32 s%d, %d" % (S_SW, 640 * 3840))
        a("s_cselect_b32 s%d, 0, s%d" % (S_SW, S_SW))
        return 5
    AH = [int(x) for x in os.environ.get("K1_AHEAD", "1,1,1,2,2,2,2,2,2,2").split(",")]
    ops = []
    issued = 0
    for st in range(10):
        upto = min(20, 2 * st + 2 + AH[st])
        while issued < upto:
            ops.append((issued, half(issued)))
            if issued == 1:
                srd(a, S_WS, 42, 43, WS_END)
                srd(a, S_DBG, 40, 41, 256)
            if issued == int(os.environ.get("K1_TCH", "-1")):
                a("s_cmp_lt_u32 s%d, 4" % S_CB)
                a("s_cselect_b32 s31, 0x%x, 0" % WS_Q)
                a("s_cselect_b32 s29, 0, 1")
                a("s_lshl_b32 s32, 81920, s29")
                a("s_lshl_b32 s35, 1280, s29")
                a("s_cmp_ge_u32 s%d, 8" % S_CB)
                a("s_cselect_b32 s31, 1280, s31")
                a("s_and_b32 s29, s%d, 3" % S_CB)
                a("s_lshl_b32 s29, s29, 2")
                a("s_add_u32 s29, s29, s%d" % S_WV)
                a("s_lshl_b32 s29, s29, 1")
                a("s_mul_i32 s29, s29, s32")
                a("s_add_u32 s31, s31, s29")
                a("s_lshl_b32 s29, s%d, 2" % S_RB)
                a("s_mul_i32 s29, s29, s35")
                a("s_add_u32 s31, s31, s29")
                a("s_add_u32 s32, s32, s31")
                a("v_lshrrev_b32 v18, 4, v0")
                a("v_mul_lo_u32 v18, s35, v18")
                a("v_and_b32 v19, 15, v0")
                a("v_min_u32 v19, 9, v19")
                a("v_lshl_add_u32 v18, v19, 7, v18")
                a("buffer_load_dword v19, v18, %s, s31 offen" % sr(S_WS, 4))
                a("buffer_load_dword v19, v18, %s, s32 offen" % sr(S_WS, 4))
                ops.append((issued + 0.6, 2))
            if issued == 2 * POLL_ST + 1:
                poll_issue()
                ops.append((issued + 0.5, 1))
            issued += 1
        a("s_waitcnt vmcnt(%d)" % sum(c for h, c in ops if h > 2 * st + 1))
        if st == POLL_ST + 1:
            break
        a("s_barrier")
    assert issued == 20, "stat loads must follow the last staging load"
    left = 9 - st
    a("s_cmp_eq_u32 s%d, 0" % S_WV)
    a("s_cbranch_scc1 L1_ld_w0")
    def tail(extra):
        a("s_barrier")
        for s2 in range(st + 1, 10):
            a("s_waitcnt vmcnt(%d)" % (extra + sum(c for h, c in ops if h > 2 * s2 + 1)))
            a("s_barrier")
    tail(0)
    stamp(1)
    diag_out()
    done(3)
    def stat_loads():
        a("buffer_load_dwordx4 %s, v%d, %s, 0 offen sc1" % (vr(ST0, 4), VSA, sr(S_WS, 4)))
        a("buffer_load_dwordx4 %s, v%d, %s, 0 offen sc1" % (vr(ST1, 4), VCA, sr(S_WS, 4)))
        a("buffer_load_dwordx4 %s, v%d, %s, s32 offen sc1" % (vr(ST2, 4), VCA, sr(S_WS, 4)))
    a("L1_ld_w0:")
    a("v_readfirstlane_b32 s31, v%d" % VFL)
    a("s_movk_i32 s32, 7680")
    a("v_and_b32 v%d, 31, v0" % VSA)
    a("v_lshlrev_b32 v%d, 4, v%d" % (VSA, VSA))
    a("v_lshrrev_b32 v%d, 5, v0" % VCA)
    a("v_lshl_add_u32 v%d, v%d, 13, v%d" % (VSA, VCA, VSA))
    a("s_lshl_b32 s29, s%d, 9" % S_RB)
    a("s_add_u32 s29, s29, 0x%x" % WS_STAT)
    a("v_add_u32 v%d, s29, v%d" % (VSA, VSA))
    a("s_mul_i32 s29, s%d, 640" % S_CB)
    a("s_add_u32 s29, s29, 0x%x" % WS_CS)
    a("v_min_u32 v%d, 39, v0" % VCA)
    a("v_lshlrev_b32 v%d, 4, v%d" % (VCA, VCA))
    a("v_add_u32 v%d, %d, v%d" % (T1, L_ST + 1024, VCA))
    a("v_add_u32 v%d, s29, v%d" % (VCA, VCA))
    a("v_lshlrev_b32 v%d, 4, v0" % T0)
    a("v_add_u32 v%d, %d, v%d" % (T0, L_ST, T0))
    a("s_cmp_lt_u32 s31, 64")
    a("s_cbranch_scc1 L1_ld_late")
    stat_loads()
    stamp(2)
    tail(3)
    a("s_barrier")
    a("L1_ld_fin:")
    a("s_waitcnt vmcnt(0)")
    a("ds_write_b128 v%d, %s" % (T0, vr(ST0, 4)))
    for i in range(4):
        a("v_add_f32 v%d, v%d, v%d" % (ST1 + i, ST1 + i, ST2 + i))
    a("ds_write_b128 v%d, %s" % (T1, vr(ST1, 4)))
    a("s_waitcnt lgkmcnt(0)")
    a("s_barrier")
    stamp(1)
    diag_out()
    done(1)
    a("L1_ld_late:")
    poll_issue("offset:128")
    tail(1)
    a("s_barrier")
    a("s_mov_b32 s30, %d" % SPIN_MAX)
    a("L1_ld_spin:")
    a("s_waitcnt vmcnt(0)")
    a("v_readfirstlane_b32 s29, v%d" % VFL)
    a("s_cmp_ge_u32 s29, 64")
    a("s_cbranch_scc1 L1_ld_got")
    a("s_sleep 32")
    poll_issue("sc1")
    a("s_sub_u32 s30, s30, 1")
    a("s_cbranch_scc0 L1_ld_spin")
    a("L1_ld_got:")
    stat_loads()
    stamp(3)
    a("s_branch L1_ld_fin")
    a("L1_compute:")
    ACC = 4
    XF = [84, 120]
    WF = [100, 136]
    AX = [156, 157]; AW = [158]
    T0, T1, T2, T3 = 84, 85, 86, 87
    VSA, VCA, JUNK = 159, 160, 161
    SA_, SB_, SC_, SD_ = 162, 163, 164, 165
    NV = 168
    PRE = os.environ.get('K1_PRE', '0') == '1'
    S_WM, S_WN = 24, 25
    acc = lambda mt, t: ACC + (mt * 5 + t) * 4
    a("s_bfe_u32 s%d, s%d, 0x10001" % (S_WM, S_WV))
    a("s_and_b32 s%d, s%d, 1" % (S_WN, S_WV))
    a("s_waitcnt lgkmcnt(0)")
    srd(a, S_WS, 42, 43, WS_END)
    if not FUSE:
        a("s_cmp_lg_u32 s%d, 4" % S_WV)
        a("s_cbranch_scc1 L1_notouch0")
        code_prefetch(a, S_DBG, 166, JUNK, name, "L1_spare", nmax=1)
        a("L1_notouch0:")
    a("s_lshl_b32 s%d, s%d, 4" % (S_PFL, S_CB))
    a("s_add_u32 s%d, s%d, s%d" % (S_PFL, S_PFL, S_RB))
    a("s_lshl_b32 s%d, s%d, 5" % (S_PFL, S_PFL))
    a("s_lshl_b32 s32, s%d, 1" % S_WN)
    a("s_add_u32 s32, s32, s%d" % S_WM)
    a("s_add_u32 s%d, s%d, s32" % (S_PFL, S_PFL))
    a("s_lshl_b32 s%d, s%d, 2" % (S_PFL, S_PFL))
    a("s_add_u32 s%d, s%d, 0x%x" % (S_PFL, S_PFL, FLG_G))
    a("v_and_b32 v%d, 15, v0" % T0)
    a("v_lshrrev_b32 v%d, 4, v0" % T1)
    a("v_lshrrev_b32 v%d, 1, v%d" % (T2, T0))
    a("v_and_b32 v%d, 2, v%d" % (T3, T2))
    a("v_lshlrev_b32 v%d, 1, v%d" % (T3, T3))
    a("v_xor_b32 v%d, v%d, v%d" % (T2, T2, T3))
    a("v_lshlrev_b32 v%d, 1, v%d" % (T3, T1))
    a("v_xor_b32 v%d, v%d, v%d" % (T2, T2, T3))
    a("v_lshlrev_b32 v%d, 7, v%d" % (T3, T0))
    a("v_lshl_add_u32 v%d, v%d, 4, v%d" % (AX[0], T2, T3))
    a("s_lshl_b32 s32, s%d, 13" % S_WM)
    a("v_add_u32 v%d, s32, v%d" % (AX[0], AX[0]))
    a("v_xor_b32 v%d, 16, v%d" % (AX[1], AX[0]))
    a("v_mul_u32_u24 v%d, 5152, v%d" % (T2, T1))
    a("v_lshrrev_b32 v%d, 2, v%d" % (T3, T0))
    a("v_mul_u32_u24 v%d, 320, v%d" % (T3, T3))
    a("v_add_u32 v%d, v%d, v%d" % (T2, T2, T3))
    a("v_and_b32 v%d, 3, v0" % T3)
    a("v_mul_u32_u24 v%d, 40, v%d" % (T3, T3))
    a("v_add_u32 v%d, v%d, v%d" % (T2, T2, T3))
    a("s_mul_i32 s32, s%d, 160" % S_WN)
    a("s_add_u32 s32, s32, 16384")
    a("v_add_u32 v%d, s32, v%d" % (AW[0], T2))
    for i in range(80):
        a("v_mov_b32 v%d, 0" % (ACC + i))
    a("s_mov_b32 s%d, 0" % S_ST)
    a("s_lshl_b32 s26, s%d, 8" % S_WM)
    a("s_add_u32 s26, s26, %d" % L_ST)
    a("s_mul_i32 s27, s%d, 320" % S_WN)
    a("s_add_u32 s27, s27, %d" % (L_ST + 1024))
    def reads(b):
        L = []
        for t in range(5):
            for h in range(2):
                L.append("ds_read_b64_tr_b16 %s, v%d offset:%d" % (vr(WF[b] + 4 * t + 2 * h, 2), AW[0], 2560 * b + 1280 * h + 8 * t))
        X = ["ds_read_b128 %s, v%d offset:%d" % (vr(XF[b] + 4 * mt, 4), AX[b], 2048 * mt) for mt in range(4)]
        return [X[0]] + L + X[1:]
    def stat_reads(vt):
        MR, C0 = (124, 132) if vt == 0 else (124, 104)
        if vt == 0:
            for mt in range(4):
                a("ds_read2st64_b32 %s, v%d offset0:0 offset1:2" % (vr(MR + 2 * mt, 2), VSA))
                if mt < 3:
                    a("v_add_u32 v%d, 64, v%d" % (VSA, VSA))
            for t in range(5):
                a("ds_read_b128 %s, v%d offset:%d" % (vr(C0 + 4 * t, 4), VCA, 16 * t))
        else:
            for mt in range(4):
                a("ds_read_b128 %s, v%d offset:%d" % (vr(MR + 8 * mt, 4), VSA, 64 * mt))
                a("ds_read_b128 %s, v%d offset:%d" % (vr(MR + 8 * mt + 4, 4), VSA, 512 + 64 * mt))
            for t in range(5):
                a("ds_read_b32 v%d, v%d offset:%d" % (C0 + t, VCA, 16 * t))
    a("s_cmp_ge_u32 s%d, 8" % S_CB)
    a("s_cbranch_scc1 L1_preV")
    for vt in (0, 1):
        sfx = "V" if vt else "Q"
        a("L1_pre%s:" % sfx)
        if vt == 0:
            a("v_lshl_add_u32 v%d, v%d, 2, s26" % (VSA, T0))
            a("v_mul_u32_u24 v%d, 80, v%d" % (VCA, T1))
            a("v_add_u32 v%d, s27, v%d" % (VCA, VCA))
        else:
            a("v_lshl_add_u32 v%d, v%d, 4, s26" % (VSA, T1))
            a("v_lshrrev_b32 v%d, 2, v%d" % (VCA, T0))
            a("v_mul_u32_u24 v%d, 80, v%d" % (VCA, VCA))
            a("v_and_b32 v%d, 3, v0" % T3)
            a("v_lshl_add_u32 v%d, v%d, 2, v%d" % (VCA, T3, VCA))
            a("v_add_u32 v%d, s27, v%d" % (VCA, VCA))
        if vt == 0:
            assert WS_KV == 0
            a("s_cmp_lt_u32 s%d, 4" % S_CB)
            a("s_cselect_b32 s31, 0x%x, 1.0" % QSCALE)
            a("s_cselect_b32 s28, 0x%x, 0" % WS_Q)
            a("s_cselect_b32 s29, 0, 1")
            a("s_lshl_b32 s34, 81920, s29")
            a("s_lshl_b32 s35, 1280, s29")
            a("s_and_b32 s29, s%d, 3" % S_CB)
            a("s_lshl_b32 s29, s29, 3")
            a("s_lshl_b32 s30, s%d, 2" % S_WN)
            a("s_add_u32 s29, s29, s30")
            a("s_mul_i32 s29, s29, s34")
            a("s_add_u32 s28, s28, s29")
            a("s_lshl_b32 s29, s%d, 2" % S_RB)
            a("s_lshl_b32 s30, s%d, 1" % S_WM)
            a("s_add_u32 s29, s29, s30")
            a("s_mul_i32 s29, s29, s35")
            a("s_add_u32 s28, s28, s29")
            a("s_add_u32 s29, s28, s35")
            a("v_mul_lo_u32 v%d, s34, v%d" % (T3, T1))
            a("v_and_b32 v%d, 8, v%d" % (T2, T0))
            a("v_add_u32 v%d, v%d, v%d" % (T2, T2, T0))
            a("v_lshl_add_u32 v%d, v%d, 4, v%d" % (SB_, T0, T3))
            a("v_lshl_add_u32 v%d, v%d, 4, v%d" % (SA_, T2, T3))
            def stores(mt, P, PB):
                so = 28 + (mt >> 1)
                a("buffer_store_dwordx4 %s, v%d, %s, s%d offen offset:%d%s" % (vr(P, 4), SA_, sr(S_WS, 4), so, 128 * (mt & 1), QM))
                a("buffer_store_dwordx4 %s, v%d, %s, s%d offen offset:%d%s" % (vr(P + 4, 4), SA_, sr(S_WS, 4), so, 128 * (mt & 1) + 512, QM))
                if mt & 1:
                    a("buffer_store_dwordx4 %s, v%d, %s, s%d offen offset:1024%s" % (vr(PB - 2, 4), SB_, sr(S_WS, 4), so, QM))
            if PRE:
                for mt in range(4):
                    stores(mt, ACC, ACC + 2)
        else:
            a("s_and_b32 s29, s%d, 3" % S_CB)
            a("s_lshl_b32 s29, s29, 3")
            a("s_lshl_b32 s30, s%d, 2" % S_WN)
            a("s_add_u32 s29, s29, s30")
            a("s_mul_i32 s28, s29, 163840")
            a("s_lshl_b32 s29, s%d, 2" % S_RB)
            a("s_lshl_b32 s30, s%d, 1" % S_WM)
            a("s_add_u32 s29, s29, s30")
            a("s_mul_i32 s29, s29, 2560")
            a("s_add_u32 s28, s28, s29")
            a("s_add_u32 s28, s28, %d" % (WS_KV + 1280))
            a("s_mov_b32 s34, 163840")
            a("v_lshrrev_b32 v%d, 2, v%d" % (T2, T0))
            a("v_mul_lo_u32 v%d, s34, v%d" % (T0, T2))
            a("v_and_b32 v%d, 3, v0" % T2)
            a("v_lshl_add_u32 v%d, v%d, 4, v%d" % (T0, T2, T0))
            VT = [SA_, SB_, SC_, SD_]
            for t in range(4):
                a("v_add_u32 v%d, %d, v%d" % (T2, t, T1))
                a("v_and_b32 v%d, 3, v%d" % (T2, T2))
                a("v_lshl_add_u32 v%d, v%d, 6, v%d" % (VT[t], T2, T0))
            def storev(u, t, P):
                a("buffer_store_dwordx4 %s, v%d, %s, s28 offen offset:%d%s" % (vr(P, 4), VT[t & 3], sr(S_WS, 4), 2560 * u + 256 * t, QM))
            if PRE:
                for u in range(2):
                    for t in range(5):
                        storev(u, t, ACC)
        a("s_barrier")
        stamp(0)
        for l in reads(0):
            a(l)
        a(".p2align 6")
        a("L1_loop%s:" % sfx)
        for b in (0, 1):
            mf = []
            for mt in range(4):
                for t in range(5):
                    c = vr(acc(mt, t), 4)
                    x, w = vr(XF[b] + 4 * mt, 4), vr(WF[b] + 4 * t, 4)
                    mf.append("v_mfma_f32_16x16x32_bf16 %s, %s, %s, %s" % ((c, x, w, c) if vt else (c, w, x, c)))
            rd = reads(1 - b)
            if b == 0:
                rd += ["s_add_u32 s%d, s%d, 1" % (S_ST, S_ST), "s_and_b32 s%d, s%d, 3" % (S_DL, S_ST),
                       "s_cselect_b32 s%d, s39, %d" % (S_DL, -3 * SLOT & 0xffffffff),
                       "v_add_u32 v%d, s%d, v%d" % (AX[0], S_DL, AX[0]), "v_add_u32 v%d, s%d, v%d" % (AW[0], S_DL, AW[0]),
                       "v_add_u32 v%d, s%d, v%d" % (AX[1], S_DL, AX[1])]
                a("s_waitcnt lgkmcnt(0)")
            else:
                a("s_waitcnt lgkmcnt(0)")
                a(mf.pop(0))
                a("s_barrier")
            for m in mf:
                a(m)
                if rd:
                    a(rd.pop(0))
            assert not rd
        a("s_cmp_lt_u32 s%d, 10" % S_ST)
        a("s_cbranch_scc1 L1_loop%s" % sfx)
        stamp(1)
        a("s_waitcnt lgkmcnt(0)")
        a("s_barrier")
        stat_reads(vt)
        MR, C0 = (124, 132) if vt == 0 else (124, 104)
        pkfma = "v_pk_fma_f32 %s, %s, %s, %s op_sel:[%d,%d,0] op_sel_hi:[%d,%d,1] neg_lo:[1,0,0] neg_hi:[1,0,0]"
        pkmul = "v_pk_mul_f32 %s, %s, %s op_sel:[%d,0] op_sel_hi:[%d,1]"
        if vt == 0:
            a("s_waitcnt vmcnt(0) lgkmcnt(0)")
            if FUSE:
                a("s_barrier")
            stamp(4)
            for mt in range(4):
                a("v_mul_f32 v%d, s31, v%d" % (MR + 2 * mt + 1, MR + 2 * mt + 1))
            for mt in range(4):
                mr = vr(MR + 2 * mt, 2)
                for t in range(5):
                    for e in (0, 2):
                        c = vr(acc(mt, t) + e, 2)
                        a(pkfma % (c, mr, vr(C0 + 4 * t + e, 2), c, 0, 0, 0, 1))
                for t in range(5):
                    for e in (0, 2):
                        c = vr(acc(mt, t) + e, 2)
                        a(pkmul % (c, mr, c, 1, 1))
                P = 84 + 8 * mt
                PB = 116 + 2 * mt
                for t in range(5):
                    d = P + 2 * t if t < 4 else PB
                    a("v_cvt_pk_bf16_f32 v%d, v%d, v%d" % (d, acc(mt, t), acc(mt, t) + 1))
                    a("v_cvt_pk_bf16_f32 v%d, v%d, v%d" % (d + 1, acc(mt, t) + 2, acc(mt, t) + 3))
                stores(mt, P, PB)
        else:
            a("s_waitcnt vmcnt(0) lgkmcnt(0)")
            if FUSE:
                a("s_barrier")
            stamp(4)
            for u in range(2):
                for mt in (2 * u, 2 * u + 1):
                    for t in range(5):
                        for e in (0, 2):
                            c = vr(acc(mt, t) + e, 2)
                            a(pkfma % (c, vr(MR + 8 * mt + e, 2), vr(C0 + (t & ~1), 2), c, 0, t & 1, 1, t & 1))
                    for t in range(5):
                        for e in (0, 2):
                            c = vr(acc(mt, t) + e, 2)
                            a(pkmul % (c, vr(MR + 8 * mt + 4 + e, 2), c, 0, 1))
                for t in range(5):
                    P = 84 + 4 * t
                    for h in range(2):
                        mt = 2 * u + h
                        a("v_cvt_pk_bf16_f32 v%d, v%d, v%d" % (P + 2 * h, acc(mt, t), acc(mt, t) + 1))
                        a("v_cvt_pk_bf16_f32 v%d, v%d, v%d" % (P + 2 * h + 1, acc(mt, t) + 2, acc(mt, t) + 3))
                    storev(u, t, P)
        stamp(2)
        diag_out()
        done()
    if FUSE:
        a("L1_idle:")
        a("s_sub_u32 s24, s%d, 8" % S_WV)
        a("s_lshl_b32 s24, s24, 6")
        a("s_lshr_b32 s25, s2, 3")
        a("s_and_b32 s25, s25, %s" % os.environ.get("K1_CPM", "7"))
        a("s_cmp_lg_u32 s25, 0")
        a("s_cselect_b32 s24, 0x40000, s24")
        a("v_add_u32 v2, s24, v0")
        code_prefetch(a, S_DBG, 3, 4, name, "L_code_end", vlane="v2", nmax=1)
        a("v_add_u32 v3, 32768, v3")
        a("buffer_load_dword v4, v3, %s, 0 offen" % sr(S_DBG, 4))
        if os.environ.get("K1_TOUCH", "0") == "1":
            a("s_load_dwordx4 s[60:63], s[0:1], %d" % KA_WG)
            a("s_load_dwordx4 s[64:67], s[0:1], %d" % KA_WD)
            a("s_load_dwordx2 s[68:69], s[0:1], %d" % KA_WO)
            a("v_lshlrev_b32 v3, 20, v0")
            a("s_waitcnt lgkmcnt(0)")
            a("s_cmp_lg_u32 s%d, 9" % S_WV)
            a("s_cbranch_scc1 L1_idle_nt")
            for lo, n in ((42, WS_DIAG), (66, 2621440), (60, 1966080), (62, 1966080), (64, 1966080), (68, 819200)):
                srd(a, S_DBG, lo, lo + 1, n)
                a("buffer_load_dword v4, v3, %s, 0 offen sc1" % sr(S_DBG, 4))
            srd(a, S_DBG, 40, 41, 256)
            a("v_mov_b32 v5, 0")
            a("s_cmp_lt_u32 s2, 64")
            a("s_cselect_b32 s24, 64, 256")
            a("buffer_atomic_add v5, v3, %s, s24 offen sc1" % sr(S_DBG, 4))
            a("L1_idle_nt:")
        a("s_waitcnt lgkmcnt(0)")
        a("s_cmp_lt_u32 s2, 64")
        a("s_cbranch_scc1 L1_idle_sp")
        done(13)
        a("L1_idle_sp:")
        a("s_barrier")
        a("s_cmp_lg_u32 s%d, 8" % S_WV)
        a("s_cbranch_scc1 L1_idle_go")
        a("s_lshl_b32 s%d, s2, 7" % S_PFL)
        a("s_add_u32 s%d, s%d, 0x%x" % (S_PFL, S_PFL, FLG_S))
        a("L1_idle_go:")
        done(1)
    a("L1_spare:")
    nv2 = gen_spare(a, stamp, diag_out, done)
    a("L1_end:")
    a("s_endpgm")
    return kernel_desc(name, max(NV, nv2), 80)
```

```python
from common import *
import os
S_X, S_W, S_WS, S_DBG = 8, 12, 16, 44
S_WV = 20
XM = ' ' + os.environ.get('K1_XM', 'sc1')
L_CP = 65536
L_CNT = 66560

def ln_scalars(a, SUM, SQ, M, RS, T):
    a("v_mul_f32 v%d, 0x%x, v%d" % (M, f2u(1.0 / 640), SUM))
    a("v_mul_f32 v%d, 0x%x, v%d" % (T, f2u(1.0 / 640), SQ))
    a("v_fma_f32 v%d, -v%d, v%d, v%d" % (T, M, M, T))
    a("v_max_f32 v%d, 0, v%d" % (T, T))
    bf16_round(a, T, T)
    a("v_add_f32 v%d, 0x%x, v%d" % (T, f2u(1e-5), T))
    bf16_round(a, T, T)
    a("v_sqrt_f32 v%d, v%d" % (T, T))
    bf16_round(a, M, M)
    bf16_round(a, T, T)
    a("v_rcp_f32 v%d, v%d" % (RS, T))

def row16_sum(a, regs):
    for mode in ("quad_perm:[1,0,3,2]", "quad_perm:[2,3,0,1]", "row_half_mirror", "row_mirror"):
        if len(regs) < 3:
            a("s_nop %d" % (2 - len(regs)))
        for r in regs:
            a("v_add_f32_dpp v%d, v%d, v%d %s row_mask:0xf bank_mask:0xf" % (r, r, r, mode))

def gen_spare(a, stamp, diag_out, done):
    S_XC, S_IDX = 21, 22
    S_G = 24
    a("s_load_dwordx2 s[36:37], s[0:1], %d" % KA_WR)
    a("s_load_dwordx2 s[78:79], s[0:1], %d" % KA_WO)
    a("s_and_b32 s%d, s2, 7" % S_XC)
    a("s_lshr_b32 s%d, s2, 3" % S_IDX)
    a("v_mov_b32 v3, %d" % L_CNT)
    def signal1(T0, T1):
        n = len(a.lines)
        a("v_mov_b32 v%d, 1" % T1)
        a("s_mov_b64 exec, 1")
        a("ds_add_rtn_u32 v%d, v3, v%d offset:4" % (T0, T1))
        a("s_mov_b64 exec, 3")
        a("s_waitcnt lgkmcnt(0)")
        a("v_readfirstlane_b32 s38, v%d" % T0)
        a("v_lshlrev_b32 v%d, 7, v0" % T0)
        a("s_cmp_lg_u32 s38, 4")
        a("s_cbranch_scc1 LS_ns%d" % n)
        a("buffer_atomic_add v%d, v%d, %s, 0 offen sc1" % (T1, T0, sr(S_DBG, 4)))
        a("LS_ns%d:" % n)
        a("s_mov_b64 exec, -1")
    a("s_cmp_ge_u32 s%d, 4" % S_WV)
    a("s_cbranch_scc1 LS_cw")
    X = [4, 24]
    WR = 44
    F = 64
    SU = [104, 105]; SQ = [106, 107]; M = [108, 110]; RS = [109, 111]; RR = [112, 113]
    VA, VB, T0, T1, ROW, T2 = 114, 115, 116, 117, 118, 119
    a("s_lshr_b32 s38, s%d, 1" % S_XC)
    a("s_lshl_b32 s38, s38, 9")
    a("s_and_b32 s39, s%d, 1" % S_XC)
    a("s_lshl_b32 s39, s39, 3")
    a("s_add_u32 s39, s39, s%d" % S_IDX)
    a("s_lshl_b32 s39, s39, 5")
    a("s_add_u32 s38, s38, s39")
    a("s_lshl_b32 s39, s%d, 3" % S_WV)
    a("s_add_u32 s38, s38, s39")
    a("v_lshrrev_b32 v%d, 4, v0" % ROW)
    a("v_add_u32 v%d, s38, v%d" % (ROW, ROW))
    a("v_and_b32 v%d, 15, v0" % T0)
    a("v_lshlrev_b32 v%d, 4, v%d" % (VB, T0))
    a("v_mul_u32_u24 v%d, 1280, v%d" % (VA, ROW))
    a("v_add_u32 v%d, v%d, v%d" % (VA, VA, VB))
    for i in range(4):
        a("v_mov_b32 v%d, 0" % (F + i))
    a("ds_write_b128 v3, %s" % vr(F, 4))
    a("s_movk_i32 s39, 5120")
    a("s_waitcnt lgkmcnt(0)")
    srd(a, S_X, 4, 5, 2621440)
    for j in range(5):
        a("buffer_load_dwordx4 %s, v%d, %s, 0 offen offset:%d" % (vr(X[0] + 4 * j, 4), VA, sr(S_X, 4), 256 * j))
    for j in range(5):
        a("buffer_load_dwordx4 %s, v%d, %s, s39 offen offset:%d" % (vr(X[1] + 4 * j, 4), VA, sr(S_X, 4), 256 * j))
    srd(a, S_W, 36, 37, 1280)
    for j in range(5):
        a("buffer_load_dwordx4 %s, v%d, %s, 0 offen offset:%d" % (vr(WR + 4 * j, 4), VB, sr(S_W, 4), 256 * j))
    srd(a, S_WS, 42, 43, WS_END)
    srd(a, S_DBG, 40, 41, 256)
    if FUSE:
        a("s_lshl_b32 s38, s2, 7")
        a("s_add_u32 s38, s38, 0x%x" % FLG_S)
        a("s_cmp_eq_u32 s2, 0")
        a("s_cselect_b32 s39, 0x%x, s38" % (WS_SEL + 64))
        a("s_cmp_eq_u32 s%d, 1" % S_WV)
        a("s_cselect_b32 s38, s39, s38")
        a("v_mov_b32 v%d, s38" % T1)
        a("s_mov_b64 exec, 1")
        a("buffer_store_dword v%d, v%d, %s, 0 offen sc1" % (F, T1, sr(S_WS, 4)))
        a("s_mov_b64 exec, -1")
    a("s_barrier")
    a("s_mov_b32 s38, 0x3f803f80")
    for r in SU + SQ + RR:
        a("v_mov_b32 v%d, 0" % r)
    a("v_lshl_add_u32 v%d, v%d, 2, v%d" % (ROW, T0, ROW))
    a("v_cmp_eq_u32 s[32:33], 1, v%d" % T0)
    a("v_cmp_gt_u32 s[34:35], 2, v%d" % T0)
    a("v_lshlrev_b32 v%d, 2, v%d" % (T2, ROW))
    a("s_waitcnt vmcnt(%d)" % (6 if FUSE else 5))
    stamp(0)
    for j in range(20):
        for p in range(2):
            a("v_dot2c_f32_bf16 v%d, s38, v%d" % (SU[p], X[p] + j))
            a("v_dot2c_f32_bf16 v%d, v%d, v%d" % (SQ[p], X[p] + j, X[p] + j))
    a("s_nop 2")
    row16_sum(a, SU + SQ)
    for p in range(2):
        ln_scalars(a, SU[p], SQ[p], M[p], RS[p], T0)
    a("s_mov_b32 s38, 0x%x" % WS_STAT)
    a("s_mov_b32 s39, 0x%x" % (WS_STAT + 8192))
    a("v_cndmask_b32 v%d, v%d, v%d, s[32:33]" % (T0, M[0], M[1]))
    a("v_cndmask_b32 v%d, v%d, v%d, s[32:33]" % (T1, RS[0], RS[1]))
    a("s_mov_b64 exec, s[34:35]")
    a("buffer_store_dword v%d, v%d, %s, s38 offen sc1" % (T0, T2, sr(S_WS, 4)))
    a("buffer_store_dword v%d, v%d, %s, s39 offen sc1" % (T1, T2, sr(S_WS, 4)))
    a("s_mov_b64 exec, -1")
    for p in range(2):
        mr = vr(M[p], 2)
        for j in range(20):
            a("v_lshlrev_b32 v%d, 16, v%d" % (F + 2 * j, X[p] + j))
            a("v_and_b32 v%d, 0xffff0000, v%d" % (F + 2 * j + 1, X[p] + j))
        for j in range(20):
            a("v_pk_add_f32 %s, %s, %s op_sel:[0,0] op_sel_hi:[1,0] neg_lo:[0,1] neg_hi:[0,1]" % (vr(F + 2 * j, 2), vr(F + 2 * j, 2), mr))
        for j in range(20):
            a("v_cvt_pk_bf16_f32 v%d, v%d, v%d" % (X[p] + j, F + 2 * j, F + 2 * j + 1))
        for j in range(20):
            a("v_lshlrev_b32 v%d, 16, v%d" % (F + 2 * j, X[p] + j))
            a("v_and_b32 v%d, 0xffff0000, v%d" % (F + 2 * j + 1, X[p] + j))
        for j in range(20):
            a("v_pk_mul_f32 %s, %s, %s op_sel:[0,1] op_sel_hi:[1,1]" % (vr(F + 2 * j, 2), vr(F + 2 * j, 2), mr))
        for j in range(20):
            a("v_cvt_pk_bf16_f32 v%d, v%d, v%d" % (X[p] + j, F + 2 * j, F + 2 * j + 1))
        if p == 0:
            a("s_waitcnt vmcnt(0)")
            signal1(T0, T1)
            stamp(1)
        for j in range(20):
            a("v_dot2c_f32_bf16 v%d, v%d, v%d" % (RR[p], X[p] + j, WR + j))
    a("s_nop 2")
    row16_sum(a, RR)
    a("v_cndmask_b32 v%d, v%d, v%d, s[32:33]" % (RR[0], RR[0], RR[1]))
    bf16_round(a, RR[0], RR[0])
    a("v_ashrrev_i32 v%d, 31, v%d" % (T1, RR[0]))
    a("v_or_b32 v%d, 0x80000000, v%d" % (T1, T1))
    a("v_xor_b32 v%d, v%d, v%d" % (RR[0], RR[0], T1))
    a("v_and_b32 v%d, 0xffff0000, v%d" % (RR[0], RR[0]))
    a("v_sub_u32 v%d, 0xffff, v%d" % (T1, ROW))
    a("v_or_b32 v%d, v%d, v%d" % (RR[0], RR[0], T1))
    a("s_mov_b32 s49, 0x%x" % WS_KEY)
    a("s_mov_b64 exec, s[34:35]")
    a("buffer_store_dword v%d, v%d, %s, s49 offen sc1" % (RR[0], T2, sr(S_WS, 4)))
    a("s_mov_b64 exec, -1")
    def xn_stores():
        a("s_mov_b64 exec, -1")
        a("s_mov_b32 s39, 0x%x" % (WS_XN + 5120))
        a("s_mov_b32 s49, 0x%x" % WS_XN)
        for p in range(2):
            for j in range(5):
                a("buffer_store_dwordx4 %s, v%d, %s, s%d offen offset:%d%s" % (vr(X[p] + 4 * j, 4), VA, sr(S_WS, 4), (49, 39)[p], 256 * j, XM))
    stamp(2)
    a("v_mov_b32 v%d, 1" % T1)
    a("s_waitcnt vmcnt(0)")
    a("s_mov_b64 exec, 1")
    a("ds_add_rtn_u32 v%d, v3, v%d offset:8" % (T0, T1))
    a("s_waitcnt lgkmcnt(0)")
    a("v_readfirstlane_b32 s38, v%d" % T0)
    a("v_mov_b32 v%d, 192" % T0)
    a("s_cmp_eq_u32 s38, 3")
    a("s_mov_b32 s38, 0")
    a("s_cbranch_scc0 LS_xn")
    a("buffer_atomic_add v%d, v%d, %s, 0 offen sc0 sc1" % (T1, T0, sr(S_DBG, 4)))
    a("s_mov_b32 s38, 1")
    a("LS_xn:")
    xn_stores()
    a("s_cmp_eq_u32 s38, 0")
    a("s_cbranch_scc1 LS_rdone")
    a("s_waitcnt vmcnt(10)")
    a("v_readfirstlane_b32 s38, v%d" % T1)
    a("s_cmp_lg_u32 s38, 63")
    a("s_cbranch_scc1 LS_rdone")
    a("s_mov_b64 exec, -1")
    stamp(3)
    K = 64
    M1, M2, W = 96, 100, 104
    a("v_lshlrev_b32 v%d, 4, v0" % VB)
    a("s_mov_b32 s38, 0x%x" % WS_KEY)
    a("s_mov_b32 s39, 0x%x" % (WS_KEY + 4096))
    for j in range(8):
        a("buffer_load_dwordx4 %s, v%d, %s, s%d offen offset:%d sc1" % (vr(K + 4 * j, 4), VB, sr(S_WS, 4), 38 + (j >> 2), 1024 * (j & 3)))
    a("s_mov_b32 s39, 0")
    a("v_mov_b32 v%d, 0" % T2)
    a("s_waitcnt vmcnt(0)")
    stamp(4)
    a("LS_top2:")
    for c in range(4):
        a("v_max_u32 v%d, v%d, v%d" % (M1 + c, K + 8 * c, K + 8 * c + 1))
        a("v_min_u32 v%d, v%d, v%d" % (M2 + c, K + 8 * c, K + 8 * c + 1))
    for j in range(2, 8):
        for c in range(4):
            a("v_med3_u32 v%d, v%d, v%d, v%d" % (M2 + c, M1 + c, M2 + c, K + 8 * c + j))
            a("v_max_u32 v%d, v%d, v%d" % (M1 + c, M1 + c, K + 8 * c + j))
    for x, y in ((0, 1), (2, 3), (0, 2)):
        a("v_min_u32 v%d, v%d, v%d" % (W, M1 + x, M1 + y))
        a("v_max_u32 v%d, v%d, v%d" % (M1 + x, M1 + x, M1 + y))
        a("v_max3_u32 v%d, v%d, v%d, v%d" % (M2 + x, W, M2 + x, M2 + y))
    a("LS_top:")
    first = True
    for mode in ("quad_perm:[1,0,3,2] row_mask:0xf", "quad_perm:[2,3,0,1] row_mask:0xf", "row_half_mirror row_mask:0xf", "row_mirror row_mask:0xf",
                 "row_bcast:15 row_mask:0xa", "row_bcast:31 row_mask:0xc"):
        a("s_nop 1")
        src = M1 if first else W
        a("v_max_u32_dpp v%d, v%d, v%d %s bank_mask:0xf" % (W, src, src, mode))
        first = False
    a("s_mov_b32 m0, s39")
    a("v_readlane_b32 s49, v%d, 63" % W)
    a("s_add_u32 s39, s39, 1")
    a("s_cmp_lt_u32 s39, 8")
    a("v_cmp_eq_u32 vcc, s49, v%d" % M1)
    a("v_writelane_b32 v%d, s49, m0" % T2)
    a("s_cbranch_scc0 LS_topd")
    a("v_cndmask_b32 v%d, v%d, v%d, vcc" % (M1, M1, M2))
    a("v_cndmask_b32 v%d, v%d, 0, vcc" % (M2, M2))
    a("v_cmp_eq_u32 vcc, 0, v%d" % M1)
    a("s_cbranch_vccz LS_top")
    for j0 in range(0, 32, 4):
        for j in range(4):
            a("v_cmp_gt_u32 s[%d:%d], s49, v%d" % (24 + 2 * j, 25 + 2 * j, K + j0 + j))
        for j in range(4):
            a("v_cndmask_b32 v%d, 0, v%d, s[%d:%d]" % (K + j0 + j, K + j0 + j, 24 + 2 * j, 25 + 2 * j))
    a("s_branch LS_top2")
    a("LS_topd:")
    a("v_mov_b32 v%d, v%d" % (VA, T2))
    a("v_and_b32 v%d, 0xffff, v%d" % (T0, VA))
    a("v_sub_u32 v%d, 0xffff, v%d" % (T0, T0))
    a("v_and_b32 v%d, 0x7ff, v%d" % (T0, T0))
    a("v_lshlrev_b32 v%d, 2, v0" % VB)
    a("s_mov_b64 exec, 0xff")
    a("v_ashrrev_i32 v%d, 31, v%d" % (T1, VA))
    a("v_not_b32 v%d, v%d" % (T1, T1))
    a("v_or_b32 v%d, 0x80000000, v%d" % (T1, T1))
    a("v_xor_b32 v%d, v%d, v%d" % (VA, VA, T1))
    a("v_and_b32 v%d, 0xffff0000, v%d" % (VA, VA))
    a("v_mul_f32 v%d, 0xbfb8aa3b, v%d" % (VA, VA))
    a("v_exp_f32 v%d, v%d" % (VA, VA))
    a("s_mov_b32 s38, 0x%x" % WS_SEL)
    a("v_add_f32 v%d, 1.0, v%d" % (VA, VA))
    a("v_rcp_f32 v%d, v%d" % (VA, VA))
    a("buffer_store_dword v%d, v%d, %s, s38 offen sc1" % (T0, VB, sr(S_WS, 4)))
    bf16_round(a, VA, VA)
    a("buffer_store_dword v%d, v%d, %s, s38 offen offset:32 sc1" % (VA, VB, sr(S_WS, 4)))
    if FUSE:
        a("v_mov_b32 v%d, 1" % T0)
        a("s_waitcnt vmcnt(0)")
        a("s_mov_b64 exec, 1")
        a("buffer_store_dword v%d, v%d, %s, s38 offen offset:64 sc1" % (T0, VB, sr(S_WS, 4)))
    a("LS_rdone:")
    a("s_mov_b64 exec, -1")
    stamp(5)
    diag_out()
    a("s_waitcnt vmcnt(0)")
    done(1)
    a("LS_cw:")
    a("s_setprio 2")
    CW = 4
    CA = 44
    VC, VD, T0, T1, TR = 114, 115, 116, 117, 118
    a("s_sub_u32 s48, s%d, 4" % S_WV)
    a("s_lshr_b32 s38, s%d, 1" % S_XC)
    a("s_lshl_b32 s38, s38, 3")
    a("s_add_u32 s38, s38, s%d" % S_IDX)
    a("s_min_u32 s38, s38, 29")
    a("s_and_b32 s35, s38, 1")
    a("s_lshr_b32 s38, s38, 1")
    a("s_lshl_b32 s38, s38, 7")
    a("s_and_b32 s39, s%d, 1" % S_XC)
    a("s_mul_i32 s39, s39, 1920")
    a("s_add_u32 s23, s38, s39")
    a("s_lshl_b32 s39, s35, 2")
    a("s_add_u32 s39, s39, s48")
    a("s_mul_i32 s39, s39, %d" % (80 * 3840))
    a("s_add_u32 s38, s23, s39")
    a("v_lshrrev_b32 v%d, 3, v0" % T0)
    a("v_and_b32 v%d, 7, v0" % T1)
    a("v_lshlrev_b32 v%d, 4, v%d" % (T1, T1))
    a("v_mul_u32_u24 v%d, 3840, v%d" % (VC, T0))
    a("v_add_u32 v%d, v%d, v%d" % (VC, VC, T1))
    a("s_waitcnt lgkmcnt(0)")
    srd(a, S_W, 6, 7, 2457600)
    for j in range(10):
        a("buffer_load_dwordx4 %s, v%d, %s, s38 offen" % (vr(CW + 4 * j, 4), VC, sr(S_W, 4)))
        if j < 9:
            a("s_add_u32 s38, s38, %d" % (8 * 3840))
    srd(a, S_WS, 42, 43, WS_END)
    srd(a, S_G, 78, 79, 819200)
    if FUSE:
        srd(a, S_DBG, 40, 41, 256)
        NPF = 0
    else:
        a("s_cmp_lg_u32 s48, 0")
        a("s_cselect_b32 s34, 0x40000, 0")
        a("v_add_u32 v%d, s34, v0" % TR)
        code_prefetch(a, S_DBG, T0, 119, "L1_spare", "L1_end", vlane="v%d" % TR, nmax=1)
        a("s_cmp_ge_u32 s%d, 2" % S_IDX)
        a("s_cselect_b32 s34, 0x40000, s34")
        a("s_lshl_b32 s33, s%d, 6" % S_IDX)
        a("s_add_u32 s34, s34, s33")
        a("v_add_u32 v%d, s34, v0" % TR)
        code_prefetch(a, S_DBG, T0, 119, "L1_end", "L_code_end", vlane="v%d" % TR, nmax=1)
        srd(a, S_DBG, 40, 41, 256)
        a("s_lshl_b32 s34, s48, 6")
        a("v_add_u32 v%d, s34, v0" % TR)
        a("v_lshlrev_b32 v%d, 21, v%d" % (T0, TR))
        a("v_mov_b32 v%d, 0" % T1)
        a("buffer_load_dword v119, v%d, %s, 0 offen" % (T0, sr(S_WS, 4)))
        a("buffer_load_dword v119, v%d, %s, 0 offen" % (T0, sr(S_G, 4)))
        a("buffer_atomic_add v%d, v%d, %s, 0 offen offset:64 sc1" % (T1, T0, sr(S_DBG, 4)))
        NPF = 5
    a("s_barrier")
    a("s_cmp_ge_u32 s2, 40")
    a("s_cbranch_scc1 LS_noclr")
    for i in range(4):
        a("v_mov_b32 v%d, 0" % (CA + i))
    a("s_lshl_b32 s38, s2, 2")
    a("s_add_u32 s38, s38, s48")
    a("s_lshl_b32 s38, s38, 10")
    a("s_add_u32 s38, s38, 0x%x" % WS_UPD)
    a("v_lshlrev_b32 v%d, 4, v0" % T1)
    a("buffer_store_dwordx4 %s, v%d, %s, s38 offen sc1" % (vr(CA, 4), T1, sr(S_WS, 4)))
    a("LS_noclr:")
    a("s_sub_u32 s38, s2, 40")
    a("s_cmp_ge_u32 s38, 3")
    a("s_cbranch_scc1 LS_noclr2")
    a("s_lshl_b32 s38, s38, 2")
    a("s_add_u32 s38, s38, s48")
    a("s_lshl_b32 s38, s38, 13")
    a("s_add_u32 s38, s38, 0x%x" % WS_FLG)
    a("v_lshlrev_b32 v%d, 7, v0" % T1)
    for i in range(4):
        a("v_mov_b32 v%d, 0" % (CA + i))
    a("buffer_store_dwordx4 %s, v%d, %s, s38 offen sc1" % (vr(CA, 4), T1, sr(S_WS, 4)))
    a("LS_noclr2:")
    a("s_waitcnt vmcnt(%d)" % NPF)
    a("LS_cs:")
    stamp(0)
    F = 64
    for j in range(10):
        for d in range(4):
            if j == 0:
                a("v_lshlrev_b32 v%d, 16, v%d" % (CA + 2 * d, CW + d))
                a("v_and_b32 v%d, 0xffff0000, v%d" % (CA + 2 * d + 1, CW + d))
            else:
                a("v_lshlrev_b32 v%d, 16, v%d" % (F + 2 * d, CW + 4 * j + d))
                a("v_and_b32 v%d, 0xffff0000, v%d" % (F + 2 * d + 1, CW + 4 * j + d))
        if j:
            for d in range(4):
                a("v_pk_add_f32 %s, %s, %s" % (vr(CA + 2 * d, 2), vr(CA + 2 * d, 2), vr(F + 2 * d, 2)))
    a("s_nop 0")
    for mode in ("row_ror:8",):
        for d in range(8):
            a("v_add_f32_dpp v%d, v%d, v%d %s row_mask:0xf bank_mask:0xf" % (CA + d, CA + d, CA + d, mode))
    for d in range(4):
        a("v_permlane32_swap_b32 v%d, v%d" % (CA + d, CA + 4 + d))
    for d in range(4):
        a("v_add_f32 v%d, v%d, v%d" % (CA + d, CA + d, CA + 4 + d))
    a("s_nop 0")
    for d in range(2):
        a("v_permlane16_swap_b32 v%d, v%d" % (CA + d, CA + 2 + d))
    a("s_nop 0")
    for d in range(2):
        a("v_add_f32 v%d, v%d, v%d" % (CA + d, CA + d, CA + 2 + d))
    a("s_lshl_b32 s38, s48, 8")
    a("s_add_u32 s38, s38, %d" % L_CP)
    a("v_and_b32 v%d, 7, v0" % T0)
    a("v_lshlrev_b32 v%d, 5, v%d" % (T0, T0))
    a("v_lshrrev_b32 v%d, 4, v0" % T1)
    a("v_lshl_add_u32 v%d, v%d, 3, v%d" % (T0, T1, T0))
    a("v_add_u32 v%d, s38, v%d" % (T0, T0))
    a("v_mov_b32 v%d, 1" % T1)
    a("ds_write_b64 v%d, %s" % (T0, vr(CA, 2)))
    a("s_mov_b64 exec, 1")
    a("s_waitcnt vmcnt(0) lgkmcnt(0)")
    a("ds_add_rtn_u32 v%d, v3, v%d" % (T0, T1))
    a("s_mov_b64 exec, -1")
    a("s_waitcnt lgkmcnt(0)")
    a("v_readfirstlane_b32 s38, v%d" % T0)
    a("s_cmp_lg_u32 s38, 3")
    a("s_cbranch_scc1 LS_cs_done")
    a("v_lshlrev_b32 v%d, 2, v0" % T0)
    a("v_add_u32 v%d, %d, v%d" % (T1, L_CP, T0))
    for j in range(4):
        a("ds_read_b32 v%d, v%d offset:%d" % (F + j, T1, 256 * j))
    a("s_lshl_b32 s38, s23, 1")
    a("s_mul_i32 s39, s35, 7680")
    a("s_add_u32 s38, s38, s39")
    a("s_add_u32 s38, s38, 0x%x" % WS_CS)
    a("s_waitcnt lgkmcnt(0)")
    a("v_add_f32 v%d, v%d, v%d" % (F, F, F + 1))
    a("v_add_f32 v%d, v%d, v%d" % (F + 2, F + 2, F + 3))
    a("v_add_f32 v%d, v%d, v%d" % (F, F, F + 2))
    a("buffer_store_dword v%d, v%d, %s, s38 offen sc1" % (F, T0, sr(S_WS, 4)))
    a("s_waitcnt vmcnt(0)")
    signal1(T0, T1)
    a("LS_cs_done:")
    stamp(1)
    a("s_cmp_lg_u32 s%d, 7" % S_WV)
    a("s_cbranch_scc1 LS_end")
    a("s_setprio 0")
    a("s_lshr_b32 s36, s2, 2")
    a("s_and_b32 s48, s2, 3")
    a("s_lshr_b32 s38, s36, 1")
    a("s_mul_i32 s38, s38, 160")
    a("s_and_b32 s39, s36, 1")
    a("s_mul_i32 s39, s39, %d" % (320 * 1280))
    a("s_add_u32 s38, s38, s39")
    a("s_mul_i32 s39, s48, %d" % (80 * 1280))
    a("s_add_u32 s38, s38, s39")
    a("s_mov_b32 s39, 0")
    a("s_movk_i32 s37, %d" % (1280 - 160))
    a("v_lshlrev_b32 v%d, 4, v0" % T1)
    a("v_mul_u32_u24 v%d, 6554, v0" % TR)
    a("s_mov_b32 s49, 13")
    a("LS_wo_ld:")
    a("v_lshrrev_b32 v%d, 16, v%d" % (T0, TR))
    a("v_mad_u32_u24 v%d, v%d, s37, v%d" % (VD, T0, T1))
    a("s_mov_b32 m0, s39")
    a("v_add_u32 v%d, %d, v%d" % (TR, 64 * 6554, TR))
    a("s_cmp_eq_u32 s49, 1")
    a("s_cselect_b32 exec_hi, 0, -1")
    a("s_add_u32 s39, s39, 1024")
    a("buffer_load_dwordx4 v%d, %s, s38 offen lds" % (VD, sr(S_G, 4)))
    a("s_add_u32 s38, s38, 1024")
    a("s_sub_u32 s49, s49, 1")
    a("s_cmp_lg_u32 s49, 0")
    a("s_cbranch_scc1 LS_wo_ld")
    a("s_mov_b64 exec, -1")
    a("v_bfe_u32 v%d, v0, 4, 1" % T0)
    a("v_bfe_u32 v%d, v0, 2, 2" % T1)
    a("v_mul_u32_u24 v%d, 160, v%d" % (TR, T1))
    a("v_and_b32 v%d, 3, v0" % T1)
    a("v_mul_u32_u24 v%d, 40, v%d" % (T1, T1))
    a("v_add_u32 v%d, v%d, v%d" % (TR, TR, T1))
    a("v_lshrrev_b32 v%d, 5, v0" % T1)
    a("v_lshl_add_u32 v%d, v%d, 3, v%d" % (TR, T1, TR))
    a("v_mul_u32_u24 v%d, 6400, v%d" % (VC, T0))
    a("v_add_u32 v%d, v%d, v%d" % (VC, VC, TR))
    a("v_mul_u32_u24 v%d, 640, v%d" % (T0, T0))
    a("v_add_u32 v%d, v%d, v%d" % (TR, TR, T0))
    a("v_and_b32 v%d, 31, v0" % VD)
    a("v_lshlrev_b32 v%d, 4, v%d" % (VD, VD))
    a("v_lshl_add_u32 v%d, v%d, 10, v%d" % (VD, T1, VD))
    a("s_lshr_b32 s36, s2, 3")
    a("s_mul_i32 s36, s36, 102400")
    a("s_add_u32 s36, s36, 0x%x" % WS_WOT)
    a("s_and_b32 s37, s2, 7")
    a("s_mul_i32 s38, s37, 10240")
    a("s_add_u32 s38, s38, s36")
    a("s_lshr_b32 s39, s37, 1")
    a("s_mul_i32 s39, s39, 5120")
    a("s_and_b32 s37, s37, 1")
    a("s_lshl_b32 s37, s37, 9")
    a("s_add_u32 s39, s39, s37")
    a("s_add_u32 s39, s39, s36")
    a("s_add_u32 s39, s39, %d" % (16 * 5120))
    a("s_waitcnt vmcnt(0)")
    for n in range(5):
        B = 4 + 12 * n
        for ps in range(3):
            if n < 4:
                a("ds_read_b64_tr_b16 %s, v%d offset:%d" % (vr(B + 4 * ps, 2), TR, 3200 * n + 16 * ps))
                a("ds_read_b64_tr_b16 %s, v%d offset:%d" % (vr(B + 2 + 4 * ps, 2), TR, 3200 * n + 16 * ps + 1280))
            else:
                a("ds_read_b64_tr_b16 %s, v%d offset:%d" % (vr(B + 4 * ps, 2), VC, 2560 + 16 * ps))
                a("ds_read_b64_tr_b16 %s, v%d offset:%d" % (vr(B + 2 + 4 * ps, 2), VC, 2560 + 16 * ps + 3200))
        if n == 4:
            a("s_mov_b32 s38, s39")
        elif n == 2:
            a("s_add_u32 s38, s38, 5120")
        o = 512 * (n & 1)
        a("s_add_u32 s37, s38, 4096")
        a("s_waitcnt lgkmcnt(0)")
        a("buffer_store_dwordx4 %s, v%d, %s, s38 offen offset:%d%s" % (vr(B, 4), VD, sr(S_WS, 4), o, XM))
        a("buffer_store_dwordx4 %s, v%d, %s, s38 offen offset:%d%s" % (vr(B + 4, 4), VD, sr(S_WS, 4), o + 2048, XM))
        a("s_mov_b32 exec_hi, 0")
        a("buffer_store_dwordx4 %s, v%d, %s, s37 offen offset:%d%s" % (vr(B + 8, 4), VD, sr(S_WS, 4), o, XM))
        a("s_mov_b64 exec, -1")
    if FUSE:
        a("v_mov_b32 v2, 0")
        a("s_mov_b32 s30, 0x10000")
        a("s_mov_b64 exec, 1")
        a("LS_s1:")
        a("buffer_load_dword v3, v2, %s, 0 offen sc1" % sr(S_DBG, 4))
        a("s_sub_u32 s30, s30, 1")
        a("s_cbranch_scc1 LS_s1d")
        a("s_waitcnt vmcnt(0)")
        a("v_readfirstlane_b32 s29, v3")
        a("s_cmp_ge_u32 s29, 64")
        a("s_cbranch_scc1 LS_s1d")
        a("s_sleep 24")
        a("s_branch LS_s1")
        a("LS_s1d:")
        a("s_mov_b64 exec, -1")
    a("LS_end:")
    stamp(5)
    diag_out()
    a("s_waitcnt vmcnt(0)")
    done(1)
    return 120
```

```python
from common import *
import os
DIAG = os.environ.get("DIAG")
RT = os.environ.get("RT")
ROT = os.environ.get("K2_SPEC", "1") == "1"
K2_PRIO = os.environ.get("K2_PRIO", "5,7,99")
K2_K0 = int(os.environ.get("K2_K0", "2" if FUSE else "3"))
K2_NW = 12
L_MARK = 10240
L_W0, L_W1 = 11264, 92160
L_EX = 62464
L_GX = 143360
L_P2 = 2560
L_Y = 0
MARK = 0xffff7fff
SPIN = 1 << 18

def gen_k2(a, name="attn_kernel"):
    QBW, NG, KS, NT, UN = 2, 4, 2, 32, int(os.environ.get('K2_UN', '4'))
    NIT = NT // UN
    r = [4]
    def alloc(n):
        b = r[0]; r[0] += (n + 1) // 2 * 2; return b
    QA = [alloc(4) for _ in range(QBW)]
    QB = [alloc(2) for _ in range(QBW)]
    KA, KB = alloc(4), alloc(2)
    V0, V1 = alloc(4), alloc(4)
    P0, P1 = alloc(4), alloc(4)
    SA, SB = alloc(16), alloc(16)
    AKA, AKB, AV, AV1 = alloc(1), r[0] - 1, alloc(1), r[0] - 1
    assert r[0] <= 104
    O = [104, 120]
    MS, PK, A, B = 136, 150, 156, 157
    M = [162, 163]
    T0, T1, T2, T3 = 164, 165, 166, 167
    LANE = 0
    S_KV, S_Q = 8, 12
    S_H, S_QB, S_W, S_T = 16, 17, 18, 19
    S_VM, S_HI = 20, 22
    S_IT, S_FB, S_KS, S_G = 24, 25, 26, 27
    S_TMP = 28
    qk1 = lambda S, q: a("v_mfma_f32_32x32x16_bf16 %s, %s, %s, 0" % (vr(S, 16), vr(KA, 4), vr(QA[q], 4)))
    qk2 = lambda S, q: a("v_mfma_f32_32x32x8_bf16 %s, %s, %s, %s" % (vr(S, 16), vr(KB, 2), vr(QB[q], 2), vr(S, 16)))
    pv0 = lambda q: a("v_mfma_f32_32x32x16_bf16 %s, %s, %s, %s" % (vr(O[q], 16), vr(V0, 4), vr(P0, 4), vr(O[q], 16)))
    pv1 = lambda q: a("v_mfma_f32_32x32x16_bf16 %s, %s, %s, %s" % (vr(O[q], 16), vr(V1, 4), vr(P1, 4), vr(O[q], 16)))
    rka = lambda t: a("ds_read_b128 %s, v%d offset:%d" % (vr(KA, 4), AKA, t * 2560))
    rkb = lambda t: a("ds_read_b32 v%d, v%d offset:%d" % (KB, AKB, t * 2560 + 1024))
    rv0 = lambda t: a("ds_read_b128 %s, v%d offset:%d" % (vr(V0, 4), AV, t * 2560 + 1280))
    rv1 = lambda t: a("ds_read_b128 %s, v%d offset:%d" % (vr(V1, 4), AV1, t * 2560 + 1280))
    mon = lambda: a("s_mov_b64 exec, %s" % sr(S_VM, 2))
    moff = lambda: a("s_mov_b64 exec, -1")
    wl = lambda k: a("s_waitcnt lgkmcnt(%d)" % k)
    def diag(regs, base):
        if DIAG:
            a("s_memtime s[46:47]")
            a("s_memrealtime s[48:49]")
            a("s_waitcnt lgkmcnt(0)")
            a("s_sub_u32 s44, s44, s40")
            a("s_sub_u32 s46, s46, s40")
            a("s_sub_u32 s48, s48, s42")
            a("s_sub_u32 s52, s52, s40")
            a("v_mov_b32 v%d, s44" % regs)
            a("v_mov_b32 v%d, s46" % (regs + 1))
            a("v_mov_b32 v%d, s48" % (regs + 2))
            a("v_mov_b32 v%d, s52" % (regs + 3))
            a("s_lshl_b32 s50, s2, 4")
            a("s_add_u32 s50, s50, s%d" % S_W)
            a("s_lshl_b32 s50, s50, 4")
            a("s_add_u32 s50, s50, 0x%x" % WS_DIAG)
            a("v_mov_b32 v%d, 0" % base)
            a("buffer_store_dwordx4 %s, v%d, %s, s50 offen" % (vr(regs, 4), base, sr(S_Q, 4)))

    SC = " sc1" if FUSE else ""
    if FUSE:
        a("L2_entry:")
        a("s_mov_b32 s4, s42")
        a("s_mov_b32 s5, s43")
        a("s_mov_b32 s%d, s20" % S_W)
        a("s_setprio 3")
        if RT:
            a("s_memrealtime s[94:95]")
    else:
        kernel_begin(a, name)
        a("s_cmp_ge_u32 s2, 256")
        a("s_cbranch_scc1 L2_end")
        a("s_load_dwordx2 s[4:5], s[0:1], %d" % KA_WS)
        if DIAG:
            a("s_memtime s[40:41]")
            a("s_memrealtime s[42:43]")
        a("s_setprio 3")
        a("v_lshrrev_b32 v%d, 6, v0" % T0)
        a("v_and_b32 v0, 63, v0")
    a("s_and_b32 s%d, s2, 7" % S_H)
    a("s_lshl_b32 s%d, s%d, 2" % (S_H, S_H))
    a("s_bfe_u32 s%d, s2, 0x20003" % S_TMP)
    a("s_add_u32 s%d, s%d, s%d" % (S_H, S_H, S_TMP))
    if not FUSE:
        a("v_readfirstlane_b32 s%d, v%d" % (S_W, T0))
    a("s_mul_i32 s%d, s%d, 163840" % (S_TMP + 1, S_H))
    a("s_mov_b32 s%d, 163840" % (S_KV + 2))
    a("s_mov_b32 s%d, 0x20000" % (S_KV + 3))
    a("s_cmp_lt_u32 s%d, 4" % S_W)
    a("s_cbranch_scc1 L2_helper")
    a("s_lshr_b32 s%d, s2, 5" % S_QB)
    a("s_mov_b32 s%d, 0x000fffff" % S_VM)
    a("s_mov_b32 s%d, 0x000fffff" % (S_VM + 1))
    a("s_mov_b32 s%d, 0" % S_HI)
    a("s_mov_b32 s%d, -1" % (S_HI + 1))
    a("v_and_b32 v%d, 31, v%d" % (T0, LANE))
    a("v_lshrrev_b32 v%d, 5, v%d" % (T1, LANE))
    a("v_lshlrev_b32 v%d, 4, v%d" % (AKA, LANE))
    a("v_and_b32 v%d, 7, v%d" % (AKB, LANE))
    a("v_lshlrev_b32 v%d, 4, v%d" % (AKB, AKB))
    a("v_and_b32 v%d, 16, v%d" % (T2, LANE))
    a("v_lshl_add_u32 v%d, v%d, 3, v%d" % (AKB, T2, AKB))
    a("v_and_b32 v%d, 8, v%d" % (T2, LANE))
    a("v_add_u32 v%d, v%d, v%d" % (AKB, AKB, T2))
    a("v_lshl_add_u32 v%d, v%d, 2, v%d" % (AKB, T1, AKB))
    a("s_and_b32 s%d, s%d, 3" % (S_G, S_W))
    a("s_lshr_b32 s%d, s%d, 3" % (S_KS, S_W))
    a("s_lshl_b32 s%d, s%d, 3" % (S_T, S_QB))
    a("s_lshl_b32 s%d, s%d, 1" % (S_TMP, S_G))
    a("s_add_u32 s%d, s%d, s%d" % (S_T, S_T, S_TMP))
    a("s_mul_i32 s%d, s%d, 81920" % (S_TMP, S_H))
    a("s_mul_i32 s%d, s%d, 1280" % (S_TMP + 2, S_T))
    a("s_add_u32 s%d, s%d, s%d" % (S_TMP, S_TMP, S_TMP + 2))
    a("s_add_u32 s%d, s%d, 0x%x" % (S_TMP, S_TMP, WS_Q))
    a("s_mul_i32 s%d, s%d, %d" % (S_TMP + 3, S_KS, NT * 2560))
    a("s_waitcnt lgkmcnt(0)")
    srd(a, S_Q, 4, 5, WS_END)
    def qloads():
        for q in range(QBW):
            a("buffer_load_dwordx4 %s, v%d, %s, s%d offen offset:%d%s" % (vr(QA[q], 4), AKA, sr(S_Q, 4), S_TMP, 1280 * q, SC))
            a("buffer_load_dword v%d, v%d, %s, s%d offen offset:%d%s" % (QB[q], AKB, sr(S_Q, 4), S_TMP, 1280 * q + 1024, SC))
    if FUSE:
        a("s_sub_u32 s%d, s%d, s%d" % (S_TMP, S_TMP, S_TMP + 3))
    else:
        qloads()
    a("s_add_u32 s%d, s4, s%d" % (S_KV, S_TMP + 1))
    a("s_addc_u32 s%d, s5, 0" % (S_KV + 1))
    a("v_lshrrev_b32 v%d, 2, v%d" % (T2, T0))
    a("v_add_u32 v%d, v%d, v%d" % (AV, T2, T1))
    a("v_and_b32 v%d, 3, v%d" % (AV, AV))
    a("v_lshlrev_b32 v%d, 6, v%d" % (AV, AV))
    a("v_lshl_add_u32 v%d, v%d, 8, v%d" % (AV, T2, AV))
    a("v_and_b32 v%d, 3, v%d" % (T2, LANE))
    a("v_lshl_add_u32 v%d, v%d, 4, v%d" % (AV, T2, AV))
    a("v_add_u32 v%d, s%d, v%d" % (AKA, S_TMP + 3, AKA))
    a("v_add_u32 v%d, s%d, v%d" % (AKB, S_TMP + 3, AKB))
    a("v_add_u32 v%d, s%d, v%d" % (AV, S_TMP + 3, AV))
    a("v_xor_b32 v%d, 128, v%d" % (AV1, AV))
    a("v_mov_b32 v%d, 0x3f80" % (KB + 1))
    for q in range(QBW):
        a("v_mov_b32 v%d, 0" % (QB[q] + 1))
    for i in range(4):
        a("v_mov_b32 v%d, 0" % (P1 + i))
    for q in range(QBW):
        for i in range(16):
            a("v_mov_b32 v%d, 0" % (O[q] + i))
    a("v_mov_b32 v%d, 0x3f803f80" % T3)
    a("v_cmp_eq_u32 vcc, 20, v%d" % T0)
    a("v_cmp_eq_u32 s[%d:%d], 24, v%d" % (S_TMP + 4, S_TMP + 5, T0))
    a("s_or_b64 vcc, vcc, s[%d:%d]" % (S_TMP + 4, S_TMP + 5))
    a("s_mov_b32 s%d, 0" % S_IT)
    a("s_mov_b32 s%d, 0" % S_FB)
    a("v_cndmask_b32 v%d, 0, v%d, vcc" % (T3, T3))
    for i in range(8):
        a("v_mov_b32 v%d, v%d" % (V0 + i, T3))
    if FUSE:
        a("v_mov_b32 v1, 0")
        a("v_mov_b32 v2, 1")
        a("s_waitcnt vmcnt(0)")
        a("s_mov_b64 exec, 1")
        a("buffer_store_dword v2, v1, %s, s%d offen sc1" % (sr(S_Q, 4), S_PFL))
        a("s_mov_b64 exec, -1")
        if RT:
            a("s_memrealtime s[96:97]")
        a("s_barrier")
        a("s_barrier")
        qloads()
    a("s_barrier")
    if RT:
        a("s_memrealtime s[98:99]")
    if DIAG:
        a("s_memtime s[52:53]")
    rka(0); rkb(0)
    mon(); rv0(0); moff()
    a("s_waitcnt vmcnt(0) lgkmcnt(%d)" % (0 if (DIAG or RT) else 1))
    def rowmax(dst, S, first):
        a("v_max3_f32 v%d, v%d, v%d, v%d" % (T0, S, S + 1, S + 2))
        a("v_max3_f32 v%d, v%d, v%d, v%d" % (T1, S + 3, S + 4, S + 5))
        a("v_max3_f32 v%d, v%d, v%d, v%d" % (T0, T0, S + 6, S + 7))
        a("v_max3_f32 v%d, v%d, v%d, v%d" % (T1, T1, S + 8, S + 9))
        a("v_max3_f32 v%d, v%d, v%d, v%d" % (T0, T0, S + 10, S + 11))
        a("v_max3_f32 v%d, v%d, v%d, v%d" % (T1, T1, S + 12, S + 13))
        a("v_max3_f32 v%d, v%d, v%d, v%d" % (T0, T0, S + 14, S + 15))
        if first:
            a("v_max_f32 v%d, v%d, v%d" % (dst, T0, T1))
        else:
            a("v_max3_f32 v%d, v%d, v%d, v%d" % (dst, T0, T1, dst))
    def xhalf_max(rr):
        a("v_mov_b32 v%d, v%d" % (T1, rr))
        a("s_nop 1")
        a("v_permlane32_swap_b32 v%d, v%d" % (rr, T1))
        a("s_nop 1")
        a("v_max_f32 v%d, v%d, v%d" % (rr, rr, T1))
    SS = [SA, SB]
    for q in range(QBW):
        qk1(SS[q], q); qk2(SS[q], q)
    a("s_nop 9")
    for q in range(QBW):
        rowmax(M[q], SS[q], True)
        xhalf_max(M[q])
        a("v_and_b32 v%d, 0xffff0000, v%d" % (T0, M[q]))
        a("v_sub_f32 v%d, v%d, v%d" % (T1, M[q], T0))
        a("v_and_b32 v%d, 0xffff0000, v%d" % (T1, T1))
        a("v_add_f32 v%d, v%d, v%d" % (M[q], T0, T1))
        a("v_cndmask_b32 v%d, v%d, v%d, %s" % (T0, T0, T1, sr(S_HI, 2)))
        a("v_xor_b32 v%d, 0x80000000, v%d" % (T0, T0))
        a("v_lshrrev_b32 v%d, 16, v%d" % (QB[q] + 1, T0))
        if q == 0:
            qk1(SA, 0)
            a("s_nop 0")
            qk2(SA, 0)
    if DIAG:
        a("s_memtime s[44:45]")
        a("s_waitcnt lgkmcnt(0)")
    a(".p2align 6")
    a("L2_loop:")
    def adv():
        a("v_add_u32 v%d, %d, v%d" % (AKA, UN * 2560, AKA))
        a("v_add_u32 v%d, %d, v%d" % (AKB, UN * 2560, AKB))
        a("v_add_u32 v%d, %d, v%d" % (AV, UN * 2560, AV))
        a("v_add_u32 v%d, %d, v%d" % (AV1, UN * 2560, AV1))
    for n in range(UN):
        for ph in range(2):
            Sc, Sn = (SA, SB) if ph == 0 else (SB, SA)
            ex = lambda i: a("v_exp_f32 v%d, v%d" % (Sc + i, Sc + i))
            cv = lambda i: a("v_cvt_pk_bf16_f32 v%d, v%d, v%d" % (P0 + i, Sc + 2 * i, Sc + 2 * i + 1))
            if ph == 0:
                qk1(Sn, 1); rka(n + 1); ex(0); ex(1); ex(2); ex(3); cv(0); cv(1)
                pv1(1); mon(); rv1(n); moff(); ex(4); ex(5); ex(6); ex(7); cv(2); cv(3)
                qk2(Sn, 1); rkb(n + 1); ex(8); ex(9); ex(10); ex(11); cv(4); cv(5); wl(2)
                pv0(0); ex(12); ex(13); ex(14); ex(15); cv(6); cv(7)
            else:
                qk1(Sn, 0); ex(0); ex(1); ex(2); ex(3); cv(0); cv(1); wl(0)
                pv1(0); ex(4); ex(5); ex(6); ex(7); cv(2); cv(3)
                qk2(Sn, 0); ex(8); ex(9); ex(10); ex(11); cv(4); cv(5)
                pv0(1); mon(); rv0(n + 1); moff(); ex(12); ex(13); ex(14); ex(15)
                if n == UN - 1:
                    adv()
                cv(6); cv(7)
    if DIAG == "2":
        a("s_sub_u32 s54, s54, s40")
        a("s_mov_b32 m0, s%d" % S_IT)
        a("s_nop 0")
        a("v_writelane_b32 v2, s54, m0")
        a("s_memtime s[54:55]")
    a("s_add_u32 s%d, s%d, 1" % (S_IT, S_IT))
    pr = [int(x) for x in K2_PRIO.split(",")]
    SYNC_IT = 4 // UN
    MARK_IT = [16 // UN, 24 // UN]
    special = sorted(set([SYNC_IT] + MARK_IT + [p for p in pr if p < NIT] + [NIT]))
    mask = sum(1 << s for s in special)
    a("s_bitcmp1_b32 0x%x, s%d" % (mask, S_IT))
    a("s_cbranch_scc0 L2_loop")
    for s in special:
        if s == NIT:
            continue
        a("s_cmp_lg_u32 s%d, %d" % (S_IT, s))
        a("s_cbranch_scc1 L2_sp%d" % s)
        if s in pr:
            a("s_setprio %d" % (2 - pr.index(s)))
        if s == SYNC_IT:
            a("s_barrier")
        if s in MARK_IT:
            a("s_lshl_b32 s%d, s%d, 2" % (S_TMP, S_W))
            a("s_add_u32 s%d, s%d, %d" % (S_TMP, S_TMP, L_MARK - 16 + 32 * MARK_IT.index(s)))
            a("v_mov_b32 v%d, s%d" % (T0, S_TMP))
            a("v_mov_b32 v%d, 0x%x" % (T1, MARK))
            a("ds_write_b32 v%d, v%d" % (T0, T1))
            wl(0)
        a("s_branch L2_loop")
        a("L2_sp%d:" % s)
    wl(0)
    pv1(QBW - 1)
    a("L2_epi:")
    if RT:
        a("s_memrealtime s[44:45]")
    if DIAG == "2":
        a("s_lshl_b32 s50, s2, 4")
        a("s_add_u32 s50, s50, s%d" % S_W)
        a("s_lshl_b32 s50, s50, 8")
        a("s_add_u32 s50, s50, 0x%x" % (WS_DIAG - 0x100000))
        a("v_lshlrev_b32 v3, 2, v%d" % LANE)
        a("buffer_store_dword v2, v3, %s, s50 offen" % sr(S_Q, 4))
    diag(P0, T0)
    a("s_nop 15")
    a("v_mov_b32 v%d, 0x%x" % (T2, (127 - 30) << 23))
    a("v_mov_b32 v%d, 0x%x" % (T3, (127 + 30) << 23))
    a("s_mov_b64 vcc, 0")
    for q in range(QBW):
        Oq = O[q]
        a("v_cndmask_b32 v%d, v%d, v%d, %s" % (Oq + 12, Oq + 12, Oq + 8, sr(S_HI, 2)))
        a("v_mov_b32 v%d, v%d" % (Oq + 13, M[q]))
        a("v_cmp_nge_f32 s[%d:%d], v%d, v%d" % (S_TMP + 4, S_TMP + 5, Oq + 12, T2))
        a("v_cmp_nle_f32 s[%d:%d], v%d, v%d" % (S_TMP + 6, S_TMP + 7, Oq + 12, T3))
        a("s_or_b64 vcc, vcc, s[%d:%d]" % (S_TMP + 4, S_TMP + 5))
        a("s_or_b64 vcc, vcc, s[%d:%d]" % (S_TMP + 6, S_TMP + 7))
    a("s_cselect_b32 s%d, 1, 0" % S_TMP)
    a("s_andn2_b32 s%d, s%d, s%d" % (S_TMP, S_TMP, S_FB))
    a("s_cbranch_scc1 L2_fallback")
    S_RB, S_CB, S_ROT, S_TT = 20, 21, 24, 25
    ACC, OF, WF = 4, 24, 64
    VB = 3
    S_O, S_WA = 32, 64
    def tile_ids():
        a("s_and_b32 s%d, s2, 7" % S_RB)
        a("s_lshl_b32 s%d, s%d, 2" % (S_RB, S_RB))
        a("s_lshr_b32 s%d, s2, 6" % S_TMP)
        a("s_add_u32 s%d, s%d, s%d" % (S_RB, S_RB, S_TMP))
        a("s_bfe_u32 s%d, s2, 0x30003" % S_CB)
    tile_ids()
    a("s_lshl_b32 s%d, s%d, 2" % (S_TT, S_RB))
    a("s_add_u32 s%d, s%d, s%d" % (S_TT, S_TT, S_G))
    a("s_lshl_b32 s%d, s%d, 14" % (S_O, S_TT))
    a("s_lshl_b32 s%d, s%d, 13" % (S_TMP + 2, S_KS))
    a("s_add_u32 s%d, s%d, s%d" % (S_O, S_O, S_TMP + 2))
    a("s_add_u32 s%d, s%d, 0x%x" % (S_O, S_O, WS_O))
    a("s_lshr_b32 s36, s%d, 1" % S_TT)
    a("s_lshl_b32 s36, s36, 13")
    a("s_and_b32 s%d, s%d, 1" % (S_TMP, S_TT))
    a("s_lshl_b32 s%d, s%d, 7" % (S_TMP, S_TMP))
    a("s_add_u32 s36, s36, s%d" % S_TMP)
    a("s_lshl_b32 s%d, s%d, 12" % (S_TMP + 2, S_KS))
    a("s_add_u32 s36, s36, s%d" % (S_TMP + 2))
    a("s_add_u32 s36, s36, 0x%x" % WS_OB)
    waddr = lambda ks: L_W0 + 5120 * ks if ks < 10 else L_W1 + 5120 * (ks - 10)
    first_ks = lambda i, sp: 8 * sp + 2 * i if i < 4 else 16 + 2 * sp + (i - 4)
    a("s_cmp_eq_u32 s%d, 0" % S_KS)
    for i in (4, 5):
        a("s_mov_b32 s%d, %d" % (S_WA + i, waddr(first_ks(i, 1))))
        a("s_cselect_b32 s%d, %d, s%d" % (S_WA + i, waddr(first_ks(i, 0)), S_WA + i))
    a("s_lshl_b32 s%d, s%d, 2" % (S_TMP + 3, S_KS))
    for i in (3, 2, 1, 0):
        a("s_add_u32 s%d, s%d, %d" % (S_TMP, S_CB, i) if ROT else "s_mov_b32 s%d, %d" % (S_TMP, i))
        a("s_and_b32 s%d, s%d, 3" % (S_TMP, S_TMP))
        a("s_lshl_b32 s%d, s%d, 11" % (S_TMP + 1, S_TMP))
        a("s_add_u32 s%d, s%d, s%d" % (S_O + i, S_O, S_TMP + 1))
        a("s_add_u32 s%d, s%d, s%d" % (S_TMP, S_TMP, S_TMP + 3))
        a("s_mul_i32 s%d, s%d, 10240" % (S_TMP + 1, S_TMP))
        a("s_cmp_ge_u32 s%d, 5" % S_TMP)
        a("s_cselect_b32 s%d, %d, 0" % (S_TMP, L_W1 - 51200 - L_W0))
        a("s_add_u32 s%d, s%d, s%d" % (S_TMP, S_TMP, S_TMP + 1))
        a("s_add_u32 s%d, s%d, %d" % (S_WA + i, S_TMP, L_W0))
    a("v_lshlrev_b32 v1, 4, v0")
    a("v_and_b32 v2, 15, v0")
    a("v_lshrrev_b32 v%d, 4, v0" % VB)
    a("v_lshlrev_b32 v%d, 9, v%d" % (VB, VB))
    a("v_lshl_add_u32 v%d, v2, 3, v%d" % (VB, VB))
    for i in range(20):
        a("v_mov_b32 v%d, 0" % (ACC + i))
    a("v_bfe_u32 v%d, v%d, 4, 1" % (T1, LANE))
    a("v_and_b32 v%d, 7, v%d" % (T2, LANE))
    a("v_lshl_add_u32 v%d, v%d, 3, v%d" % (T1, T1, T2))
    a("v_bfe_u32 v%d, v%d, 3, 1" % (T2, LANE))
    a("v_lshlrev_b32 v%d, 14, v%d" % (A, T2))
    a("v_lshl_add_u32 v%d, v%d, 4, v%d" % (A, T1, A))
    a("v_lshlrev_b32 v%d, 7, v%d" % (B, T2))
    a("v_lshl_add_u32 v%d, v%d, 3, v%d" % (B, T1, B))
    a("v_lshrrev_b32 v%d, 5, v%d" % (T1, LANE))
    a("v_lshl_add_u32 v%d, v%d, 8, v%d" % (A, T1, A))
    a("s_add_u32 s%d, s%d, s%d" % (S_T, S_T, S_KS))
    a("s_lshl_b32 s38, s%d, 15" % S_T)
    a("s_lshl_b32 s%d, s%d, 9" % (S_TMP + 1, S_H))
    a("s_add_u32 s38, s38, s%d" % (S_TMP + 1))
    a("s_lshl_b32 s39, s%d, 13" % S_T)
    a("s_lshl_b32 s%d, s%d, 8" % (S_TMP + 2, S_H))
    a("s_add_u32 s39, s39, s%d" % (S_TMP + 2))
    a("s_add_u32 s38, s38, 0x%x" % WS_O)
    a("s_add_u32 s39, s39, 0x%x" % WS_OB)
    a("s_mul_i32 s%d, s%d, 7168" % (S_TMP, S_G))
    a("s_add_u32 s%d, s%d, %d" % (S_TMP, S_TMP, L_EX))
    a("v_lshl_add_u32 v%d, v%d, 4, s%d" % (T0, LANE, S_TMP))
    a("v_lshl_add_u32 v%d, v%d, 3, s%d" % (T3, LANE, S_TMP))
    a("s_setprio 3")
    a("s_cmp_eq_u32 s%d, 0" % S_KS)
    a("s_barrier")
    a("s_cbranch_scc1 L2_c0")
    for c in range(3):
        a("ds_write_b128 v%d, %s offset:%d" % (T0, vr(O[0] + 4 * c, 4), 1024 * c))
    a("ds_write_b64 v%d, %s offset:%d" % (T3, vr(O[0] + 12, 2), 3072))
    for i in range(14):
        a("v_mov_b32 v%d, v%d" % (O[0] + i, O[1] + i))
    a("v_add_u32 v%d, 3584, v%d" % (T0, T0))
    a("v_add_u32 v%d, 3584, v%d" % (T3, T3))
    a("s_branch L2_c1")
    a("L2_c0:")
    for c in range(3):
        a("ds_write_b128 v%d, %s offset:%d" % (T0, vr(O[1] + 4 * c, 4), 3584 + 1024 * c))
    a("ds_write_b64 v%d, %s offset:%d" % (T3, vr(O[1] + 12, 2), 3584 + 3072))
    a("L2_c1:")
    def bloads(i):
        if i < 4:
            return ["buffer_load_dwordx4 %s, v1, %s, s%d offen offset:%d sc1" % (vr(OF + 8 * i + 4 * q, 4), sr(S_Q, 4), S_O + i, 1024 * q) for q in range(2)]
        return ["buffer_load_dwordx2 %s, v%d, %s, s36 offen offset:%d sc1" % (vr(OF + 32 + 4 * (i - 4) + 2 * h, 2), VB, sr(S_Q, 4), 2048 * (i - 4) + 256 * h) for h in range(2)]
    SPEC = os.environ.get("K2_SPEC", "1") == "1"
    EARLY = os.environ.get("K2_EARLY", "1") == "1" and not SPEC
    if EARLY:
        for l in bloads(4) + bloads(5):
            a(l)
    wl(0)
    a("s_barrier")
    Oq = O[0]
    a("ds_read_b64 %s, v%d offset:%d" % (vr(MS + 12, 2), T3, 3072))
    for c in range(3):
        a("ds_read_b128 %s, v%d offset:%d" % (vr(MS + 4 * c, 4), T0, 1024 * c))
    wl(3)
    a("v_max_f32 v%d, v%d, v%d" % (T1, Oq + 13, MS + 13))
    a("v_sub_f32 v%d, v%d, v%d" % (T2, Oq + 13, T1))
    a("v_sub_f32 v%d, v%d, v%d" % (T3, MS + 13, T1))
    a("v_exp_f32 v%d, v%d" % (T2, T2))
    a("v_exp_f32 v%d, v%d" % (T3, T3))
    a("v_mul_f32 v%d, v%d, v%d" % (PK, Oq + 12, T2))
    a("v_fmac_f32 v%d, v%d, v%d" % (PK, MS + 12, T3))
    a("v_rcp_f32 v%d, v%d" % (PK + 1, PK))
    a("s_nop 0")
    a("v_mul_f32 v%d, v%d, v%d" % (T2, T2, PK + 1))
    a("v_mul_f32 v%d, v%d, v%d" % (T3, T3, PK + 1))
    for i in range(12):
        a("v_mul_f32 v%d, v%d, v%d" % (Oq + i, Oq + i, T2))
    wl(0)
    for i in range(12):
        a("v_fmac_f32 v%d, v%d, v%d" % (Oq + i, MS + i, T3))
    for i in range(6):
        a("v_cvt_pk_bf16_f32 v%d, v%d, v%d" % (PK + i, Oq + 2 * i, Oq + 2 * i + 1))
    for i in range(6):
        a("v_min_u32 v%d, -2, v%d" % (PK + i, PK + i))
    a("buffer_store_dwordx4 %s, v%d, %s, s38 offen sc1" % (vr(PK, 4), A, sr(S_Q, 4)))
    a("s_mov_b32 exec_hi, 0")
    a("buffer_store_dwordx2 %s, v%d, %s, s39 offen sc1" % (vr(PK + 4, 2), B, sr(S_Q, 4)))
    a("s_mov_b64 exec, -1")
    if RT:
        a("s_memrealtime s[52:53]")
        a("s_mov_b32 s91, 0")
    a("s_barrier")
    if RT == "2":
        a("s_waitcnt vmcnt(0)")
        a("s_memrealtime s[44:45]")
    if os.environ.get("K2_DLY"):
        a("s_sleep %s" % os.environ.get("K2_DLY"))
    if not EARLY and not SPEC:
        for l in bloads(4) + bloads(5):
            a(l)
    S_PEND = S_TMP + 2
    if SPEC:
        order = [int(c) for c in os.environ.get('K2_ORD', '041523')]
        for i in order:
            for l in bloads(i):
                a(l)
        a("s_mov_b32 s%d, 63" % S_PEND)
        a("s_mov_b32 s%d, %d" % (S_TMP + 1, SPIN))
        a("L2_pass:")
        for pos, i in enumerate(order):
            nk = 2 if i < 4 else 1
            b0 = OF + 8 * i if i < 4 else OF + 32 + 4 * (i - 4)
            a("s_bitcmp1_b32 s%d, %d" % (S_PEND, i))
            a("s_cbranch_scc0 L2_pn%d" % i)
            a("v_add_u32 v2, s%d, v1" % (S_WA + i))
            for n in range(5 * nk):
                a("ds_read_b128 %s, v2 offset:%d" % (vr(WF + 4 * n, 4), 1024 * n))
            a("s_waitcnt vmcnt(%d)" % (2 * (5 - pos)))
            a("v_max3_u32 v%d, v%d, v%d, v%d" % (T0, b0, b0 + 1, b0 + 2))
            if nk == 2:
                a("v_max3_u32 v%d, v%d, v%d, v%d" % (T1, b0 + 3, b0 + 4, b0 + 5))
                a("v_max3_u32 v%d, v%d, v%d, v%d" % (T0, T0, b0 + 6, b0 + 7))
                a("v_max_u32 v%d, v%d, v%d" % (T0, T0, T1))
            else:
                a("v_max_u32 v%d, v%d, v%d" % (T0, T0, b0 + 3))
            a("v_cmp_eq_u32 vcc, -1, v%d" % T0)
            a("s_cbranch_vccnz L2_ps%d" % i)
            a("s_bitset0_b32 s%d, %d" % (S_PEND, i))
            for n in range(5 * nk):
                if n % 2 == 0 or n == 5 * nk - 1:
                    a("s_waitcnt lgkmcnt(%d)" % (0 if RT else max(0, 5 * nk - n - 2)))
                c = vr(ACC + 4 * (n % 5), 4)
                a("v_mfma_f32_16x16x32_bf16 %s, %s, %s, %s" % (c, vr(WF + 4 * n, 4), vr(b0 + 4 * (n // 5), 4), c))
            a("L2_ps%d:" % i)
            wl(0)
            a("L2_pn%d:" % i)
        if RT:
            a("s_cmp_lg_u32 s%d, %d" % (S_TMP + 1, SPIN))
            a("s_cbranch_scc1 L2_rt1")
            a("s_memrealtime s[54:55]")
            a("s_memrealtime s[90:91]")
            a("s_bcnt1_i32_b32 s88, s%d" % S_PEND)
            a("L2_rt1:")
        for i in order:
            a("s_bitcmp1_b32 s%d, %d" % (S_PEND, i))
            a("s_cbranch_scc0 L2_pl%d" % i)
            for l in bloads(i):
                a(l)
            a("L2_pl%d:" % i)
    else:
        S_PEND, S_NREQ, S_GO = S_TMP + 2, S_TMP + 3, 37
        a("s_mov_b32 s%d, 63" % S_PEND)
        a("s_mov_b32 s%d, 15" % S_NREQ)
        a("s_mov_b32 s%d, %d" % (S_TMP + 1, SPIN))
        a("s_waitcnt vmcnt(%d)" % (2 if EARLY else 0))
        a("L2_pass:")
        a("s_andn2_b32 s%d, s%d, s%d" % (S_GO, S_PEND, S_NREQ))
        for j in range(2):
            b0 = OF + 32 + 4 * j
            a("s_bitcmp1_b32 s%d, %d" % (S_PEND, 4 + j))
            a("s_cbranch_scc0 L2_q%d" % j)
            a("v_max3_u32 v%d, v%d, v%d, v%d" % (T0, b0, b0 + 1, b0 + 2))
            a("v_max_u32 v%d, v%d, v%d" % (T0, T0, b0 + 3))
            a("v_cmp_eq_u32 vcc, -1, v%d" % T0)
            for m in range(2):
                i = 2 * j + m
                a("s_bitcmp1_b32 s%d, %d" % (S_NREQ, i))
                a("s_cbranch_scc0 L2_r%d" % i)
                a("s_cmp_lg_u32 %s, 0" % ("vcc_lo", "vcc_hi")[m])
                a("s_cbranch_scc1 L2_r%d" % i)
                for l in bloads(i):
                    a(l)
                a("s_bitset0_b32 s%d, %d" % (S_NREQ, i))
                a("L2_r%d:" % i)
            a("s_cbranch_vccz L2_q%d" % j)
            a("s_bitset0_b32 s%d, %d" % (S_GO, 4 + j))
            for l in bloads(4 + j):
                a(l)
            a("L2_q%d:" % j)
        if RT:
            a("s_cmp_lg_u32 s%d, %d" % (S_TMP + 1, SPIN))
            a("s_cbranch_scc1 L2_rt1")
            a("s_memrealtime s[54:55]")
            a("s_bcnt1_i32_b32 s88, s%d" % S_NREQ)
            a("L2_rt1:")
            a("s_cmp_lg_u32 s%d, 0" % S_NREQ)
            a("s_cbranch_scc1 L2_rt2")
            a("s_cmp_lg_u32 s91, 0")
            a("s_cbranch_scc1 L2_rt2")
            a("s_memrealtime s[90:91]")
            a("s_waitcnt lgkmcnt(0)")
            a("s_mov_b32 s91, 1")
            a("L2_rt2:")
        for i in (4, 5, 0, 1, 2, 3):
            nk = 2 if i < 4 else 1
            b0 = OF + 8 * i if i < 4 else OF + 32 + 4 * (i - 4)
            a("s_bitcmp1_b32 s%d, %d" % (S_GO, i))
            a("s_cbranch_scc0 L2_pn%d" % i)
            a("v_add_u32 v2, s%d, v1" % (S_WA + i))
            for n in range(5 * nk):
                a("ds_read_b128 %s, v2 offset:%d" % (vr(WF + 4 * n, 4), 1024 * n))
            if nk == 2:
                a("v_max3_u32 v%d, v%d, v%d, v%d" % (T0, b0, b0 + 1, b0 + 2))
                a("v_max3_u32 v%d, v%d, v%d, v%d" % (T1, b0 + 3, b0 + 4, b0 + 5))
                a("v_max3_u32 v%d, v%d, v%d, v%d" % (T0, T0, b0 + 6, b0 + 7))
                a("v_max_u32 v%d, v%d, v%d" % (T0, T0, T1))
                a("v_cmp_eq_u32 vcc, -1, v%d" % T0)
                a("s_cbranch_vccnz L2_pr%d" % i)
            a("s_bitset0_b32 s%d, %d" % (S_PEND, i))
            for n in range(5 * nk):
                if n % 2 == 0 or n == 5 * nk - 1:
                    a("s_waitcnt lgkmcnt(%d)" % (0 if RT else max(0, 5 * nk - n - 2)))
                c = vr(ACC + 4 * (n % 5), 4)
                a("v_mfma_f32_16x16x32_bf16 %s, %s, %s, %s" % (c, vr(WF + 4 * n, 4), vr(b0 + 4 * (n // 5), 4), c))
            a("L2_pn%d:" % i)
    a("s_cmp_eq_u32 s%d, 0" % S_PEND)
    a("s_cbranch_scc1 L2_fin")
    a("s_waitcnt vmcnt(0)")
    a("s_sub_u32 s%d, s%d, 1" % (S_TMP + 1, S_TMP + 1))
    a("s_cbranch_scc0 L2_pass")
    a("L2_fin:")
    if RT:
        a("s_sub_u32 s92, %d, s%d" % (SPIN, S_TMP + 1))
    a("s_mul_i32 s%d, s%d, 5120" % (S_TMP, S_G))
    a("s_add_u32 s%d, s%d, %d" % (S_TMP, S_TMP, L_GX))
    a("s_mul_i32 s%d, s%d, 7168" % (S_TMP + 3, S_G))
    a("s_add_u32 s%d, s%d, %d" % (S_TMP + 3, S_TMP + 3, L_EX + 3584))
    a("s_lshl_b32 s%d, s%d, 11" % (S_TMP + 1, S_G))
    a("s_add_u32 s%d, s%d, %d" % (S_TMP + 1, S_TMP + 1, L_P2))
    a("s_add_u32 s%d, s%d, 3072" % (S_TMP + 2, S_TMP))
    a("s_cmp_eq_u32 s%d, 0" % S_KS)
    a("s_cselect_b32 s%d, s%d, s%d" % (S_TMP, S_TMP, S_TMP + 3))
    a("s_cselect_b32 s%d, s%d, s%d" % (S_TMP + 1, S_TMP + 2, S_TMP + 1))
    a("v_add_u32 v2, s%d, v1" % S_TMP)
    a("v_add_u32 v3, s%d, v1" % (S_TMP + 1))
    for t in range(5):
        a("ds_write_b128 v%d, %s offset:%d" % (2 if t < 3 else 3, vr(ACC + 4 * t, 4), 1024 * (t % 3)))
    wl(0)
    a("s_barrier")
    if RT:
        a("s_memrealtime s[46:47]")
        a("s_waitcnt lgkmcnt(0)")
        for i, r_ in enumerate((44, 52, 54, 46)):
            a("v_mov_b32 v%d, s%d" % (4 + i, r_))
        a("s_lshl_b32 s50, s2, 4")
        a("s_add_u32 s50, s50, s%d" % S_W)
        a("s_lshl_b32 s50, s50, 5")
        a("s_add_u32 s50, s50, 0x%x" % (WS_DIAG + 0x20000))
        a("v_mov_b32 v8, 0")
        a("buffer_store_dwordx4 v[4:7], v8, %s, s50 offen" % sr(S_Q, 4))
        for i, r_ in enumerate((94, 96, 98, 100) if FUSE else (90, 91, 92, 88)):
            a("v_mov_b32 v%d, s%d" % (12 + i, r_))
        a("buffer_store_dwordx4 v[12:15], v8, %s, s50 offen offset:16" % sr(S_Q, 4))
    a("L2_end:")
    a("s_endpgm")
    for i in range(0 if SPEC else 4):
        a("L2_pr%d:" % i)
        for l in bloads(i):
            a(l)
        wl(0)
        a("s_branch L2_pn%d" % i)
    a("L2_fallback:")
    gka = lambda: a("buffer_load_dwordx4 %s, v%d, %s, 0 offen sc1" % (vr(KA, 4), AKA, sr(S_KV, 4)))
    gkb = lambda: a("buffer_load_dword v%d, v%d, %s, 0 offen offset:1024 sc1" % (KB, AKB, sr(S_KV, 4)))
    def back(regs):
        for x in regs:
            a("v_subrev_u32 v%d, %d, v%d" % (x, NT * 2560, x))
    back([AKA, AKB, AV, AV1])
    for q in range(QBW):
        a("v_mov_b32 v%d, 0" % (QB[q] + 1))
        a("v_mov_b32 v%d, 0xff800000" % M[q])
    a("s_mov_b32 s%d, 0" % S_IT)
    wl(0)
    a("L2_fb1:")
    gka(); gkb()
    a("s_waitcnt vmcnt(0)")
    for q in range(QBW):
        qk1(SS[q], q); qk2(SS[q], q)
    a("v_add_u32 v%d, 2560, v%d" % (AKA, AKA))
    a("v_add_u32 v%d, 2560, v%d" % (AKB, AKB))
    a("s_nop 15")
    for q in range(QBW):
        rowmax(M[q], SS[q], False)
    a("s_add_u32 s%d, s%d, 1" % (S_IT, S_IT))
    a("s_cmp_lt_u32 s%d, %d" % (S_IT, NT))
    a("s_cbranch_scc1 L2_fb1")
    for q in range(QBW):
        xhalf_max(M[q])
        for i in range(16):
            a("v_mov_b32 v%d, 0" % (O[q] + i))
    back([AKA, AKB])
    a("s_mov_b32 s%d, 0" % S_IT)
    a("L2_fb2:")
    gka(); gkb(); mon()
    a("buffer_load_dwordx4 %s, v%d, %s, 0 offen offset:1280 sc1" % (vr(V0, 4), AV, sr(S_KV, 4)))
    a("buffer_load_dwordx4 %s, v%d, %s, 0 offen offset:1280 sc1" % (vr(V1, 4), AV1, sr(S_KV, 4)))
    moff()
    a("s_waitcnt vmcnt(0)")
    for q in range(QBW):
        qk1(SA, q); qk2(SA, q)
        a("s_nop 15")
        for i in range(16):
            a("v_sub_f32 v%d, v%d, v%d" % (SA + i, SA + i, M[q]))
        for i in range(16):
            a("v_exp_f32 v%d, v%d" % (SA + i, SA + i))
        a("s_nop 0")
        for i in range(8):
            a("v_cvt_pk_bf16_f32 v%d, v%d, v%d" % (P0 + i, SA + 2 * i, SA + 2 * i + 1))
        a("s_nop 1")
        pv0(q); pv1(q)
    a("v_add_u32 v%d, 2560, v%d" % (AKA, AKA))
    a("v_add_u32 v%d, 2560, v%d" % (AKB, AKB))
    a("v_add_u32 v%d, 2560, v%d" % (AV, AV))
    a("v_add_u32 v%d, 2560, v%d" % (AV1, AV1))
    a("s_add_u32 s%d, s%d, 1" % (S_IT, S_IT))
    a("s_cmp_lt_u32 s%d, %d" % (S_IT, NT))
    a("s_cbranch_scc1 L2_fb2")
    a("s_mov_b32 s%d, 1" % S_FB)
    a("s_branch L2_epi")

    a("L2_helper:")
    VL = 1
    a("s_load_dwordx4 s[56:59], s[0:1], %d" % KA_WG)
    a("s_load_dwordx2 s[76:77], s[0:1], %d" % KA_WD)
    a("s_load_dwordx2 s[62:63], s[0:1], %d" % KA_X)
    a("s_load_dwordx2 s[60:61], s[0:1], %d" % KA_OUT)
    XS, AF, D, U, H = 4, 84, 104, 108, 112
    TA, TB, TC, TR, TR2, TG = 2, 3, 114, 115, 110, 111
    S_GT, S_UP, S_DN = 64, 68, 72
    a("v_lshlrev_b32 v%d, 4, v%d" % (VL, LANE))
    a("v_and_b32 v%d, 7, v%d" % (TA, LANE))
    a("v_lshlrev_b32 v%d, 2, v%d" % (TA, TA))
    a("s_lshr_b32 s%d, s%d, 1" % (S_TMP + 2, S_W))
    a("s_mul_i32 s%d, s%d, 81920" % (S_TMP + 2, S_TMP + 2))
    a("s_and_b32 s%d, s%d, 1" % (S_TMP + 3, S_W))
    a("s_lshl_b32 s%d, s%d, 12" % (S_TMP + 3, S_TMP + 3))
    a("s_add_u32 s%d, s%d, s%d" % (S_TMP + 2, S_TMP + 2, S_TMP + 3))
    a("s_mov_b32 m0, s%d" % (S_TMP + 2))
    a("s_mov_b32 s%d, 0" % S_IT)
    a("s_waitcnt lgkmcnt(0)")
    a("s_add_u32 s%d, s4, s%d" % (S_KV, S_TMP + 1))
    a("s_addc_u32 s%d, s5, 0" % (S_KV + 1))
    srd(a, S_Q, 4, 5, WS_END)
    def selload():
        a("s_mov_b32 s%d, 0x%x" % (S_TMP, WS_SEL))
        a("buffer_load_dword v%d, v%d, %s, s%d offen%s" % (TA, TA, sr(S_Q, 4), S_TMP, SC))
    def kvwait(lo, hi, tag):
        a("s_mov_b32 s37, %d" % SPIN)
        a("L2_kw%s:" % tag)
        a("buffer_load_dwordx2 v[6:7], v5, %s, s36 offen sc1" % sr(S_Q, 4))
        a("s_sub_u32 s37, s37, 1")
        a("s_cbranch_scc1 L2_kg%s" % tag)
        a("s_waitcnt vmcnt(0)")
        a("v_min_u32 v6, v6, v7")
        a("v_cmp_eq_u32 vcc, 0, v6")
        a("s_and_b32 s38, vcc_lo, %s" % lo)
        a("s_and_b32 s39, vcc_hi, %s" % hi)
        a("s_or_b32 s38, s38, s39")
        a("s_cbranch_scc0 L2_kg%s" % tag)
        a("s_sleep %s" % os.environ.get("K2_PS", "4"))
        a("s_branch L2_kw%s" % tag)
        a("L2_kg%s:" % tag)
    if FUSE:
        a("v_and_b32 v5, 15, v0")
        a("v_bfe_u32 v6, v0, 4, 1")
        a("v_lshl_add_u32 v5, v6, 6, v5")
        a("v_add_u32 v5, 64, v5")
        a("s_lshr_b32 s37, s2, 5")
        a("s_lshl_b32 s37, s37, 1")
        a("v_and_b32 v6, 1, v0")
        a("v_add_u32 v6, s37, v6")
        a("v_cmp_gt_u32 vcc, 32, v0")
        a("s_lshr_b32 s36, s%d, 3" % S_H)
        a("s_lshl_b32 s36, s36, 11")
        a("v_cndmask_b32 v5, v6, v5, vcc")
        a("v_lshlrev_b32 v5, 7, v5")
        a("s_bfe_u32 s37, s%d, 0x10002" % S_H)
        a("s_lshl_b32 s37, s37, 3")
        a("s_add_u32 s36, s36, s37")
        a("s_add_u32 s36, s36, 0x%x" % FLG_G)
    else:
        selload()
    def group():
        for j in range(4):
            a("buffer_load_dwordx4 v%d, %s, s%d offen offset:%d%s lds" % (VL, sr(S_KV, 4), S_TMP + 2, 1024 * j, SC))
        a("s_add_u32 s%d, s%d, 8192" % (S_TMP + 2, S_TMP + 2))
        a("s_mov_b32 m0, s%d" % (S_TMP + 2))
        a("s_add_u32 s%d, s%d, 1" % (S_IT, S_IT))
    if FUSE:
        a("v_mul_u32_u24 v%d, 3072, v%d" % (TG, LANE))
        a("v_lshrrev_b32 v%d, 4, v%d" % (TC, LANE))
        a("v_bfe_u32 v%d, v%d, 2, 2" % (TB, LANE))
        a("v_lshl_add_u32 v%d, v%d, 3, v%d" % (TR, TC, TB))
        a("v_lshlrev_b32 v%d, 4, v%d" % (TR, TR))
        a("v_bfe_u32 v4, v%d, 1, 1" % LANE)
        a("v_lshl_add_u32 v%d, v4, 3, v%d" % (TR, TR))
        a("v_and_b32 v4, 1, v%d" % LANE)
        a("v_mul_u32_u24 v4, 81920, v4")
        a("v_add_u32 v%d, v%d, v4" % (TR, TR))
        a("v_lshrrev_b32 v4, 5, v%d" % LANE)
        a("v_lshl_add_u32 v%d, v4, 2, v%d" % (TR2, TB))
        a("v_mul_u32_u24 v%d, 1280, v%d" % (TR2, TR2))
        a("v_mul_u32_u24 v%d, 10240, v4" % TB)
        a("v_and_b32 v4, 31, v%d" % LANE)
        a("v_lshl_add_u32 v%d, v4, 2, v%d" % (TB, TB))
        a("v_and_b32 v4, 16, v%d" % LANE)
        a("v_lshl_add_u32 v%d, v4, 1, v%d" % (TR2, TR2))
        a("v_and_b32 v4, 3, v%d" % LANE)
        a("v_lshl_add_u32 v%d, v4, 3, v%d" % (TR2, TR2))
        a("s_barrier")
        a("s_cmp_lg_u32 s%d, 0" % S_W)
        a("s_cbranch_scc1 L2_kga")
        kvwait("0x03030303" if K2_K0 == 2 else "0x07070707", "3", "a")
        a("s_barrier")
    for _ in range(K2_K0):
        group()
    if not FUSE:
        a("v_mul_u32_u24 v%d, 3072, v%d" % (TG, LANE))
        a("v_lshrrev_b32 v%d, 4, v%d" % (TC, LANE))
        a("v_bfe_u32 v%d, v%d, 2, 2" % (TB, LANE))
        a("v_lshl_add_u32 v%d, v%d, 3, v%d" % (TR, TC, TB))
        a("v_lshlrev_b32 v%d, 4, v%d" % (TR, TR))
        a("v_bfe_u32 v4, v%d, 1, 1" % LANE)
        a("v_lshl_add_u32 v%d, v4, 3, v%d" % (TR, TR))
        a("v_and_b32 v4, 1, v%d" % LANE)
        a("v_mul_u32_u24 v4, 81920, v4")
        a("v_add_u32 v%d, v%d, v4" % (TR, TR))
        a("v_lshrrev_b32 v4, 5, v%d" % LANE)
        a("v_lshl_add_u32 v%d, v4, 2, v%d" % (TR2, TB))
        a("v_mul_u32_u24 v%d, 1280, v%d" % (TR2, TR2))
        a("v_mul_u32_u24 v%d, 10240, v4" % TB)
        a("v_and_b32 v4, 31, v%d" % LANE)
        a("v_lshl_add_u32 v%d, v4, 2, v%d" % (TB, TB))
        a("v_and_b32 v4, 16, v%d" % LANE)
        a("v_lshl_add_u32 v%d, v4, 1, v%d" % (TR2, TR2))
        a("v_and_b32 v4, 3, v%d" % LANE)
        a("v_lshl_add_u32 v%d, v4, 3, v%d" % (TR2, TR2))
    a("s_waitcnt vmcnt(%d)" % (4 * (K2_K0 - 2)))
    def seladdr():
        a("v_mul_u32_u24 v%d, 1280, v%d" % (TA, TA))
        a("v_lshl_add_u32 v%d, v%d, 4, v%d" % (TA, TC, TA))
    if not FUSE:
        seladdr()
    a("s_barrier")
    if FUSE:
        a("s_lshr_b32 s%d, s%d, 1" % (S_TMP, S_W))
        a("s_lshl_b32 s%d, s%d, 3" % (S_TMP, S_TMP))
        a("s_lshl_b32 s%d, 0x00ff00ff, s%d" % (S_TMP, S_TMP))
        kvwait("s%d" % S_TMP, "0", "b")
    a("L2_hld:")
    group()
    a("s_cmp_lt_u32 s%d, 10" % S_IT)
    a("s_cbranch_scc1 L2_hld")
    a("s_lshr_b32 s%d, s2, 3" % S_G)
    a("s_and_b32 s%d, s2, 7" % S_KS)
    a("s_mul_i32 s%d, s%d, 24" % (S_FB, S_KS))
    a("s_add_u32 s%d, s%d, s%d" % (S_FB, S_FB, S_G))
    srd(a, S_GT, 56, 57, 1966080)
    srd(a, S_UP, 58, 59, 1966080)
    srd(a, S_DN, 76, 77, 1966080)
    if DIAG:
        a("s_memtime s[52:53]")
    a("s_waitcnt vmcnt(0)")
    if DIAG:
        a("s_memtime s[44:45]")
    a("s_barrier")
    if FUSE:
        a("v_lshlrev_b32 v5, 7, v0")
        a("v_mov_b32 v4, 0")
        a("s_mov_b32 s36, 0x%x" % FLG_S)
        a("s_mov_b32 s38, 0x%x" % WS_SEL)
        a("s_mov_b32 s37, %d" % SPIN)
        a("L2_sw:")
        a("buffer_load_dword v6, v5, %s, s36 offen sc1" % sr(S_Q, 4))
        a("buffer_load_dword v7, v4, %s, s38 offen offset:64 sc1" % sr(S_Q, 4))
        a("s_sub_u32 s37, s37, 1")
        a("s_cbranch_scc1 L2_sg")
        a("s_waitcnt vmcnt(0)")
        a("v_min_u32 v6, v6, v7")
        a("v_cmp_eq_u32 vcc, 0, v6")
        a("s_cbranch_vccz L2_sg")
        a("s_sleep 8")
        a("s_branch L2_sw")
        a("L2_sg:")
    a("s_setprio %s" % os.environ.get("K2_HPRIO", "3"))
    a("s_and_b32 s%d, s%d, 3" % (S_TMP, S_G))
    a("s_cmp_lg_u32 s%d, s%d" % (S_TMP, S_W))
    a("s_cbranch_scc1 L2_hwarm")
    a("s_cmp_ge_u32 s2, %s" % os.environ.get("K2_MOE", "192"))
    a("s_cbranch_scc1 L2_hend")
    if FUSE:
        selload()
    a("s_lshl_b32 s%d, s%d, 4" % (S_TMP + 1, S_FB))
    a("s_and_b32 s%d, s%d, 7" % (S_TMP + 2, S_G))
    a("s_mov_b32 s%d, 10" % S_IT)
    a("L2_hgu:")
    a("s_mul_i32 s%d, s%d, %d" % (S_TMP + 3, S_TMP + 2, 64 * 3072))
    a("s_add_u32 s%d, s%d, s%d" % (S_TMP + 3, S_TMP + 3, S_TMP + 1))
    a("s_lshl_b32 s%d, s%d, 10" % (S_TMP + 4, S_TMP + 2))
    a("s_mov_b32 m0, s%d" % (S_TMP + 4))
    a("s_add_u32 s%d, s%d, 81920" % (S_TMP + 4, S_TMP + 4))
    a("buffer_load_dwordx4 v%d, %s, s%d offen lds" % (TG, sr(S_GT, 4), S_TMP + 3))
    a("s_mov_b32 m0, s%d" % (S_TMP + 4))
    a("s_add_u32 s%d, s%d, 1" % (S_TMP + 2, S_TMP + 2))
    a("buffer_load_dwordx4 v%d, %s, s%d offen lds" % (TG, sr(S_UP, 4), S_TMP + 3))
    a("s_cmp_eq_u32 s%d, 10" % (S_TMP + 2))
    a("s_cselect_b32 s%d, 0, s%d" % (S_TMP + 2, S_TMP + 2))
    a("s_sub_u32 s%d, s%d, 1" % (S_IT, S_IT))
    a("s_cmp_lg_u32 s%d, 0" % S_IT)
    a("s_cbranch_scc1 L2_hgu")
    if FUSE:
        a("s_waitcnt vmcnt(20)")
        seladdr()
    a("s_mov_b32 s%d, 0x%x" % (S_TMP, WS_XN))
    for j in range(20):
        a("buffer_load_dwordx4 %s, v%d, %s, s%d offen offset:%d" % (vr(XS + 4 * j, 4), TA, sr(S_Q, 4), S_TMP, 64 * j))
    a("s_waitcnt vmcnt(0)")
    for j in range(20):
        for h in range(2):
            a("ds_read_b64_tr_b16 %s, v%d offset:%d" % (vr(AF + 4 * (j & 1) + 2 * h, 2), TR, 512 * j + 64 * h))
        wl(0)
        a("v_mfma_f32_16x16x32_bf16 %s, %s, %s, %s" % (vr(D, 4), vr(AF + 4 * (j & 1), 4), vr(XS + 4 * j, 4), "0" if j == 0 else vr(D, 4)))
    a("s_mul_i32 s%d, s%d, 10240" % (S_TMP + 3, S_FB))
    for j in range(10):
        if j % 4 == 0:
            a("s_mov_b32 m0, %d" % (1024 * j))
            if j:
                a("s_add_u32 s%d, s%d, 4096" % (S_TMP + 3, S_TMP + 3))
            else:
                a("s_nop 0")
        a("buffer_load_dwordx4 v%d, %s, s%d offen offset:%d lds" % (VL, sr(S_DN, 4), S_TMP + 3, 1024 * (j % 4)))
    a("v_cvt_pk_bf16_f32 v%d, v%d, v%d" % (H, D, D + 1))
    a("v_cvt_pk_bf16_f32 v%d, v%d, v%d" % (H + 1, D + 2, D + 3))
    a("v_mov_b32 v%d, v%d" % (U, H))
    a("v_mov_b32 v%d, v%d" % (U + 1, H + 1))
    a("s_nop 0")
    a("v_permlane16_swap_b32 v%d, v%d" % (H, U))
    a("v_permlane16_swap_b32 v%d, v%d" % (H + 1, U + 1))
    E = XS
    for e in range(2):
        a("v_lshlrev_b32 v%d, 16, v%d" % (D + 2 * e, H + e))
        a("v_and_b32 v%d, 0xffff0000, v%d" % (D + 2 * e + 1, H + e))
    for e in range(4):
        a("v_mul_f32 v%d, 0xbfb8aa3b, v%d" % (E + e, D + e))
    for e in range(4):
        a("v_exp_f32 v%d, v%d" % (E + e, E + e))
    for e in range(4):
        a("v_add_f32 v%d, 1.0, v%d" % (E + e, E + e))
    for e in range(4):
        a("v_rcp_f32 v%d, v%d" % (E + e, E + e))
    for e in range(4):
        a("v_mul_f32 v%d, v%d, v%d" % (D + e, D + e, E + e))
    a("v_cvt_pk_bf16_f32 v%d, v%d, v%d" % (H, D, D + 1))
    a("v_cvt_pk_bf16_f32 v%d, v%d, v%d" % (H + 1, D + 2, D + 3))
    for e in range(2):
        a("v_lshlrev_b32 v%d, 16, v%d" % (D + 2 * e, H + e))
        a("v_and_b32 v%d, 0xffff0000, v%d" % (D + 2 * e + 1, H + e))
        a("v_lshlrev_b32 v%d, 16, v%d" % (E + 2 * e, U + e))
        a("v_and_b32 v%d, 0xffff0000, v%d" % (E + 2 * e + 1, U + e))
    for e in range(4):
        a("v_mul_f32 v%d, v%d, v%d" % (D + e, D + e, E + e))
    a("v_cvt_pk_bf16_f32 v%d, v%d, v%d" % (H, D, D + 1))
    a("v_cvt_pk_bf16_f32 v%d, v%d, v%d" % (H + 1, D + 2, D + 3))
    a("s_mul_i32 s%d, s%d, 20480" % (S_IT, S_KS))
    for e in range(4):
        a("s_add_u32 s%d, s%d, 0x%x" % (S_TMP + e, S_IT, WS_UPD + 2560 * e))
    a("s_waitcnt vmcnt(0)")
    Y = 4
    for j in range(22):
        if j < 20:
            a("ds_read_b64_tr_b16 %s, v%d offset:%d" % (vr(AF + 2 * (j & 1), 2), TR2, 64 * j))
            wl(0)
            a("v_mfma_f32_32x32x8_bf16 %s, %s, %s, 0" % (vr(Y + 16 * (j % 3), 16), vr(H, 2), vr(AF + 2 * (j & 1), 2)))
        else:
            a("s_nop 3")
        if j == 1:
            a("s_nop 7")
        if j >= 2:
            a("s_nop 1")
            for e in range(4):
                a("buffer_atomic_add_f32 v%d, v%d, %s, s%d offen offset:%d" % (Y + 16 * ((j - 2) % 3) + e, TB, sr(S_Q, 4), S_TMP + e, 128 * (j - 2)))
    a("s_lshl_b32 s%d, s2, 7" % S_TMP)
    a("s_add_u32 s%d, s%d, 0x%x" % (S_TMP, S_TMP, WS_FLG + 32768))
    a("v_mov_b32 v2, 0")
    a("v_mov_b32 v3, 1")
    a("s_waitcnt vmcnt(0)")
    a("s_mov_b64 exec, 1")
    a("buffer_store_dword v3, v2, %s, s%d offen sc1" % (sr(S_Q, 4), S_TMP))
    a("s_mov_b64 exec, -1")
    a("s_branch L2_hend")
    a("L2_hwarm:")
    a("s_sub_u32 s%d, s%d, s%d" % (S_FB, S_W, S_TMP))
    a("s_sub_u32 s%d, s%d, 1" % (S_FB, S_FB))
    a("s_and_b32 s%d, s%d, 3" % (S_FB, S_FB))
    a("s_cmp_lg_u32 s%d, 1" % S_FB)
    a("s_cbranch_scc1 L2_hnofill")
    for i in range(4):
        a("v_mov_b32 v%d, -1" % (4 + i))
    a("v_lshrrev_b32 v2, 5, v0")
    a("v_lshlrev_b32 v2, 14, v2")
    a("v_and_b32 v3, 31, v0")
    a("v_lshl_add_u32 v2, v3, 4, v2")
    a("v_lshrrev_b32 v3, 4, v0")
    a("v_lshlrev_b32 v3, 13, v3")
    a("v_and_b32 v8, 15, v0")
    a("v_lshl_add_u32 v3, v8, 4, v3")
    a("s_lshr_b32 s%d, s2, 5" % S_TMP)
    a("s_lshl_b32 s%d, s%d, 18" % (S_TMP + 1, S_TMP))
    a("s_lshl_b32 s%d, s%d, 9" % (S_TMP + 2, S_H))
    a("s_add_u32 s%d, s%d, s%d" % (S_TMP + 1, S_TMP + 1, S_TMP + 2))
    a("s_add_u32 s%d, s%d, 0x%x" % (S_TMP + 1, S_TMP + 1, WS_O))
    for j in range(8):
        a("buffer_store_dwordx4 v[4:7], v2, %s, s%d offen sc1" % (sr(S_Q, 4), S_TMP + 1))
        if j < 7:
            a("s_add_u32 s%d, s%d, 32768" % (S_TMP + 1, S_TMP + 1))
    a("s_lshl_b32 s%d, s%d, 16" % (S_TMP + 1, S_TMP))
    a("s_lshl_b32 s%d, s%d, 8" % (S_TMP + 2, S_H))
    a("s_add_u32 s%d, s%d, s%d" % (S_TMP + 1, S_TMP + 1, S_TMP + 2))
    a("s_add_u32 s%d, s%d, 0x%x" % (S_TMP + 1, S_TMP + 1, WS_OB))
    a("s_add_u32 s%d, s%d, 32768" % (S_TMP + 2, S_TMP + 1))
    a("buffer_store_dwordx4 v[4:7], v3, %s, s%d offen sc1" % (sr(S_Q, 4), S_TMP + 1))
    a("buffer_store_dwordx4 v[4:7], v3, %s, s%d offen sc1" % (sr(S_Q, 4), S_TMP + 2))
    a("s_lshl_b32 s%d, s2, 7" % S_TMP)
    a("s_add_u32 s%d, s%d, 0x%x" % (S_TMP, S_TMP, WS_FLG))
    a("v_mov_b32 v2, 0")
    a("s_waitcnt vmcnt(0)")
    a("s_mov_b64 exec, 1")
    a("buffer_store_dword v4, v2, %s, s%d offen sc1" % (sr(S_Q, 4), S_TMP))
    a("s_mov_b64 exec, -1")
    a("L2_hnofill:")
    tile_ids()
    a("s_add_u32 s36, s4, 0x%x" % WS_SEL)
    a("s_addc_u32 s37, s5, 0")
    a("s_load_dwordx8 s[64:71], s[36:37], 0")
    a("s_mul_i32 s38, s%d, 102400" % S_CB)
    a("s_add_u32 s38, s38, 0x%x" % WS_WOT)
    a("v_lshlrev_b32 v2, 7, v0")
    a("s_lshr_b32 s%d, s2, 6" % S_TMP)
    a("s_mul_i32 s%d, s%d, 25600" % (S_TMP, S_TMP))
    a("s_mul_i32 s%d, s%d, 12800" % (S_TMP + 1, S_FB))
    a("s_add_u32 s%d, s%d, s%d" % (S_TMP, S_TMP, S_TMP + 1))
    a("s_add_u32 s%d, s%d, s38" % (S_TMP, S_TMP))
    a("s_add_u32 s%d, s%d, 4608" % (S_TMP + 1, S_TMP))
    a("s_cmp_eq_u32 s%d, 2" % S_FB)
    a("s_cbranch_scc1 L2_hx")
    a("buffer_load_dword v4, v2, %s, s%d offen" % (sr(S_Q, 4), S_TMP))
    a("buffer_load_dword v4, v2, %s, s%d offen" % (sr(S_Q, 4), S_TMP + 1))
    a("s_branch L2_hx1")
    a("L2_hx:")
    a("v_and_b32 v2, 31, v0")
    a("v_lshlrev_b32 v2, 7, v2")
    a("s_lshr_b32 s%d, s%d, 2" % (S_TMP, S_RB))
    a("s_lshl_b32 s%d, s%d, 12" % (S_TMP, S_TMP))
    a("s_add_u32 s%d, s%d, 0x%x" % (S_TMP, S_TMP, WS_FLG))
    a("s_mov_b32 s%d, %d" % (S_TMP + 1, SPIN))
    a("L2_hp2:")
    a("s_sleep 32")
    a("buffer_load_dword v4, v2, %s, s%d offen sc1" % (sr(S_Q, 4), S_TMP))
    a("s_sub_u32 s%d, s%d, 1" % (S_TMP + 1, S_TMP + 1))
    a("s_cbranch_scc1 L2_hp2d")
    a("s_waitcnt vmcnt(0)")
    a("v_cmp_eq_u32 vcc, 0, v4")
    a("s_cbranch_vccnz L2_hp2")
    a("L2_hp2d:")
    a("L2_hx1:")
    a("v_and_b32 v2, 3, v0")
    a("v_lshlrev_b32 v2, 2, v2")
    a("s_mov_b32 s%d, 0" % S_G)
    a("L2_hph:")
    a("s_lshl_b32 s%d, s%d, 3" % (S_TMP + 1, S_G))
    a("s_lshr_b32 s%d, 0x%x, s%d" % (S_TMP, 0 | 50 << 8 | 30 << 16 | 81 << 24, S_TMP + 1))
    a("s_and_b32 s%d, s%d, 255" % (S_TMP, S_TMP))
    a("s_lshr_b32 s%d, 0x%x, s%d" % (S_KS, 30 | 81 << 8 | 50 << 16 | 100 << 24, S_TMP + 1))
    a("s_and_b32 s%d, s%d, 255" % (S_KS, S_KS))
    a("s_add_u32 s%d, s%d, s%d" % (S_TMP, S_TMP, S_FB))
    a("s_mov_b32 s%d, %d" % (S_TMP + 1, SPIN))
    a("L2_hwait:")
    a("ds_read_b32 v3, v2 offset:%d" % L_MARK)
    a("s_sub_u32 s%d, s%d, 1" % (S_TMP + 1, S_TMP + 1))
    a("s_cbranch_scc1 L2_hw")
    wl(0)
    a("v_cmp_ne_u32 vcc, 0x%x, v3" % MARK)
    a("s_cbranch_vccz L2_hw")
    a("s_sleep 8")
    a("s_branch L2_hwait")
    a("L2_hw:")
    a("s_lshl_b32 s%d, s%d, 10" % (S_TMP + 1, S_TMP))
    a("s_add_u32 s%d, s%d, s38" % (S_TMP + 1, S_TMP + 1))
    a("s_cmp_ge_u32 s%d, 50" % S_TMP)
    a("s_cselect_b32 s%d, %d, 0" % (S_TMP + 2, L_W1 - 51200 - L_W0))
    a("s_lshl_b32 s%d, s%d, 10" % (S_TMP + 3, S_TMP))
    a("s_add_u32 s%d, s%d, s%d" % (S_TMP + 2, S_TMP + 2, S_TMP + 3))
    a("s_add_u32 m0, s%d, %d" % (S_TMP + 2, L_W0))
    a("s_add_u32 s%d, s%d, 3" % (S_TMP, S_TMP))
    a("buffer_load_dwordx4 v%d, %s, s%d offen lds" % (VL, sr(S_Q, 4), S_TMP + 1))
    a("s_cmp_lt_u32 s%d, s%d" % (S_TMP, S_KS))
    a("s_cbranch_scc1 L2_hw")
    a("v_add_u32 v2, 16, v2")
    a("s_add_u32 s%d, s%d, 1" % (S_G, S_G))
    a("s_cmp_lt_u32 s%d, 4" % S_G)
    a("s_cbranch_scc1 L2_hph")
    a("s_cmp_lg_u32 s%d, 0" % S_FB)
    a("s_cbranch_scc1 L2_hdone")
    a("s_mov_b32 s%d, 0" % S_TMP)
    for sl in range(8):
        a("s_lshr_b32 s%d, s%d, 6" % (S_TMP + 1, 64 + sl))
        a("s_cmp_eq_u32 s%d, s%d" % (S_TMP + 1, S_RB))
        a("s_cselect_b32 s%d, 1, s%d" % (S_TMP, S_TMP))
    a("s_cmp_eq_u32 s%d, 0" % S_TMP)
    a("s_cbranch_scc1 L2_hdone")
    a("v_lshlrev_b32 v2, 7, v0")
    for j in range(3):
        a("s_mov_b32 s%d, 0x%x" % (S_TMP + 2 + j, WS_FLG + 32768 + 8192 * j))
    a("s_mov_b32 s%d, %d" % (S_TMP + 1, SPIN))
    a("L2_hpoll:")
    for j in range(3):
        a("buffer_load_dword v%d, v2, %s, s%d offen sc1" % (4 + j, sr(S_Q, 4), S_TMP + 2 + j))
    a("s_sub_u32 s%d, s%d, 1" % (S_TMP + 1, S_TMP + 1))
    a("s_cbranch_scc1 L2_hpolled")
    a("s_waitcnt vmcnt(0)")
    a("v_min3_u32 v4, v4, v5, v6")
    a("v_cmp_eq_u32 vcc, 0, v4")
    a("s_cbranch_vccz L2_hpolled")
    a("s_sleep 8")
    a("s_branch L2_hpoll")
    a("L2_hpolled:")
    a("v_lshrrev_b32 v2, 3, v0")
    a("v_and_b32 v3, 7, v0")
    a("v_lshlrev_b32 v3, 4, v3")
    a("v_mul_u32_u24 v100, 2560, v2")
    a("v_add_u32 v100, v100, v3")
    a("v_mul_u32_u24 v101, 320, v2")
    a("v_add_u32 v101, v101, v3")
    a("s_mul_i32 s%d, s%d, 320" % (S_TMP, S_CB))
    a("s_add_u32 s%d, s%d, 0x%x" % (S_TMP, S_TMP, WS_UPD))
    for rp in range(8):
        for j in range(3):
            a("buffer_load_dwordx4 %s, v100, %s, s%d offen offset:%d sc1" % (vr(4 + 12 * rp + 4 * j, 4), sr(S_Q, 4), S_TMP, 128 * j))
        if rp < 7:
            a("s_add_u32 s%d, s%d, 20480" % (S_TMP, S_TMP))
    a("v_cmp_gt_u32 vcc, 64, v3")
    a("s_waitcnt vmcnt(0)")
    for rp in range(1, 8):
        for j in range(6):
            a("v_pk_add_f32 %s, %s, %s" % (vr(4 + 2 * j, 2), vr(4 + 2 * j, 2), vr(4 + 12 * rp + 2 * j, 2)))
    a("ds_write_b128 v101, v[4:7] offset:%d" % L_Y)
    a("ds_write_b128 v101, v[8:11] offset:%d" % (L_Y + 128))
    a("s_mov_b64 exec, vcc")
    a("ds_write_b128 v101, v[12:15] offset:%d" % (L_Y + 256))
    a("s_mov_b64 exec, -1")
    a("L2_hdone:")
    a("s_waitcnt vmcnt(0) lgkmcnt(0)")
    a("L2_hend:")
    diag(4, 8)
    tile_ids()
    X, G, R, U, XF, MRS, ROW, CO, SG, VX, P1_, P2_ = 4, 14, 24, 44, 64, 84, 86, 87, 88, 89, 90, 91
    S_X, S_OUT = 8, 56
    a("s_add_u32 s36, s4, 0x%x" % WS_SEL)
    a("s_addc_u32 s37, s5, 0")
    srd(a, S_X, 62, 63, 2621440)
    srd(a, S_OUT, 60, 61, 2621440)
    a("s_load_dwordx16 s[64:79], s[36:37], 0")
    a("s_lshl_b32 s%d, s%d, 2" % (S_TT, S_RB))
    a("s_add_u32 s%d, s%d, s%d" % (S_TT, S_TT, S_W))
    a("v_and_b32 v%d, 15, v0" % ROW)
    a("v_lshrrev_b32 v%d, 4, v0" % CO)
    a("s_lshl_b32 s%d, s%d, 4" % (S_TMP, S_TT))
    a("v_add_u32 v%d, s%d, v%d" % (ROW, S_TMP, ROW))
    a("v_mul_u32_u24 v%d, 1280, v%d" % (VX, ROW))
    a("v_mul_u32_u24 v%d, 40, v%d" % (CO, CO))
    a("s_mul_i32 s%d, s%d, 160" % (S_TMP, S_CB))
    a("v_add3_u32 v%d, v%d, v%d, s%d" % (VX, VX, CO, S_TMP))
    a("v_lshlrev_b32 v2, 2, v%d" % ROW)
    a("s_mov_b32 s%d, 0x%x" % (S_TMP, WS_STAT))
    a("s_mov_b32 s%d, 0x%x" % (S_TMP + 1, WS_STAT + 8192))
    a("buffer_load_dwordx4 %s, v%d, %s, 0 offen" % (vr(X, 4), VX, sr(S_X, 4)))
    a("buffer_load_dwordx4 %s, v%d, %s, 0 offen offset:16" % (vr(X + 4, 4), VX, sr(S_X, 4)))
    a("buffer_load_dwordx2 %s, v%d, %s, 0 offen offset:32" % (vr(X + 8, 2), VX, sr(S_X, 4)))
    a("buffer_load_dword v%d, v2, %s, s%d offen sc1" % (MRS, sr(S_Q, 4), S_TMP))
    a("buffer_load_dword v%d, v2, %s, s%d offen sc1" % (MRS + 1, sr(S_Q, 4), S_TMP + 1))
    a("s_setprio 0")
    a("s_waitcnt lgkmcnt(0)")
    a("s_barrier")
    a("s_barrier")
    a("s_barrier")
    for i in range(20):
        a("v_mov_b32 v%d, 0" % (U + i))
    a("s_mov_b64 s[38:39], 0")
    for sl in range(8):
        a("v_cmp_eq_u32 vcc, s%d, v%d" % (64 + sl, ROW))
        a("v_mov_b32 v%d, %d" % (R, L_Y + 320 * sl))
        a("v_mov_b32 v%d, s%d" % (R + 1, 72 + sl))
        a("s_or_b64 s[38:39], s[38:39], vcc")
        a("v_cndmask_b32 v2, v2, v%d, vcc" % R)
        a("v_cndmask_b32 v%d, v%d, v%d, vcc" % (SG, SG, R + 1))
    a("s_cbranch_scc0 L2_noupd")
    a("v_lshl_add_u32 v2, v%d, 1, v2" % CO)
    a("s_mov_b64 exec, s[38:39]")
    for c in range(5):
        a("ds_read_b128 %s, v2 offset:%d" % (vr(U + 4 * c, 4), 16 * c))
    wl(0)
    for i in range(20):
        bf16_round(a, U + i, U + i)
    for i in range(20):
        a("v_mul_f32 v%d, v%d, v%d" % (U + i, U + i, SG))
    for i in range(20):
        bf16_round(a, U + i, U + i)
    a("s_mov_b64 exec, -1")
    a("L2_noupd:")
    a("s_waitcnt vmcnt(0)")
    def unpack(dst, src):
        for i in range(10):
            a("v_lshlrev_b32 v%d, 16, v%d" % (dst + 2 * i, src + i))
            a("v_and_b32 v%d, 0xffff0000, v%d" % (dst + 2 * i + 1, src + i))
    def pack(dst, src):
        for i in range(10):
            a("v_cvt_pk_bf16_f32 v%d, v%d, v%d" % (dst + i, src + 2 * i, src + 2 * i + 1))
    unpack(XF, X)
    for i in range(20):
        a("v_sub_f32 v%d, v%d, v%d" % (R + i, XF + i, MRS))
    pack(G, R)
    unpack(R, G)
    for i in range(20):
        a("v_mul_f32 v%d, v%d, v%d" % (R + i, R + i, MRS + 1))
    pack(G, R)
    unpack(R, G)
    for i in range(20):
        a("v_add_f32 v%d, v%d, v%d" % (U + i, U + i, R + i))
    for i in range(20):
        a("v_mul_f32 v%d, 0xbfb8aa3b, v%d" % (R + i, U + i))
    for i in range(20):
        a("v_exp_f32 v%d, v%d" % (R + i, R + i))
    for i in range(20):
        a("v_add_f32 v%d, 1.0, v%d" % (R + i, R + i))
    for i in range(20):
        a("v_rcp_f32 v%d, v%d" % (R + i, R + i))
    for i in range(20):
        a("v_mul_f32 v%d, v%d, v%d" % (U + i, U + i, R + i))
    a("s_mul_i32 s%d, s%d, 5120" % (S_TMP, S_W))
    a("s_add_u32 s%d, s%d, %d" % (S_TMP, S_TMP, L_GX))
    a("v_add_u32 v%d, s%d, v1" % (P1_, S_TMP))
    a("s_mul_i32 s%d, s%d, 7168" % (S_TMP, S_W))
    a("s_add_u32 s%d, s%d, %d" % (S_TMP, S_TMP, L_EX + 3584))
    a("v_add_u32 v%d, s%d, v1" % (P2_, S_TMP))
    a("s_lshl_b32 s%d, s%d, 11" % (S_TMP, S_W))
    a("s_add_u32 s%d, s%d, %d" % (S_TMP, S_TMP, L_P2))
    a("v_add_u32 v3, s%d, v1" % S_TMP)
    a("s_barrier")
    S0, S1 = 24, 104
    for t in range(5):
        a("ds_read_b128 %s, v%d offset:%d" % (vr(S0 + 4 * t, 4), P1_, 1024 * t))
        a("ds_read_b128 %s, v%d offset:%d" % (vr(S1 + 4 * t, 4), P2_ if t < 3 else 3, 1024 * (t % 3)))
    for i in range(20):
        if i % 4 == 0:
            wl(8 - i // 2)
        a("v_add_f32 v%d, v%d, v%d" % (S0 + i, S0 + i, S1 + i))
        a("v_fmac_f32 v%d, v%d, v%d" % (XF + i, S0 + i, U + i))
        if i & 1:
            a("v_cvt_pk_bf16_f32 v%d, v%d, v%d" % (X + i // 2, XF + i - 1, XF + i))
        if i == 7:
            a("buffer_store_dwordx4 %s, v%d, %s, 0 offen" % (vr(X, 4), VX, sr(S_OUT, 4)))
        if i == 15:
            a("buffer_store_dwordx4 %s, v%d, %s, 0 offen offset:16" % (vr(X + 4, 4), VX, sr(S_OUT, 4)))
    a("buffer_store_dwordx2 %s, v%d, %s, 0 offen offset:32" % (vr(X + 8, 2), VX, sr(S_OUT, 4)))
    a("s_endpgm")
    a("L2_code_end:")
    return kernel_desc(name, 168, 102 if RT else 80)
```

```python
import sys
from common import *
from k2 import gen_k2, K2_NW

HEADER = open("cdna_kernels/%s.s.ref" % NAME).read().split("; Override launch")[0]

def build(which):
    a = Asm()
    launches = []
    descs = []
    if which == "F":
        from k1 import gen_k1
        import os
        kn = NAME + "_kernel"
        launches.append("; @launch %sgrid=(256,1,1) block=(768,1,1) lds=163840" % ("kernel=%s " % kn if os.environ.get("LIST") else ""))
        gen_k1(a, kn)
        if os.environ.get("RT"):
            i = a.lines.index(kn + ":")
            a.lines.insert(i + 1, "    s_memrealtime s[100:101]")
        descs.append(gen_k2(a, kn))
    if "1" in which:
        from k1 import gen_k1, K1_LDS
        launches.append("; @launch kernel=qkv_kernel grid=(256,1,1) block=(512,1,1) lds=%d" % K1_LDS)
        descs.append(gen_k1(a))
    if "2" in which:
        launches.append("; @launch kernel=attn_kernel grid=(256,1,1) block=(%d,1,1) lds=163840" % (64 * K2_NW))
        descs.append(gen_k2(a))
    if "3" in which:
        from k3 import gen_k3, K3_LDS, K3_NW
        launches.append("; @launch kernel=oproj_kernel grid=(256,1,1) block=(%d,1,1) lds=%d" % (64 * K3_NW, K3_LDS))
        descs.append(gen_k3(a))
    a("L_code_end:")
    a("s_endpgm")
    out = HEADER + "\n".join(launches) + "\n" + '.amdgcn_target "amdgcn-amd-amdhsa--gfx950"\n' + a.text() + "".join(descs)
    import os, re
    if os.environ.get("TL"):
        lines = []
        kidx = -1
        for l in out.split("\n"):
            m = re.match(r"(\w+_kernel):$", l)
            if m:
                kidx += 1
                lines.append(l)
                lines.append("    s_memrealtime s[96:97]")
                lines.append("    s_load_dwordx2 s[92:93], s[0:1], 80")
                lines.append("    v_readfirstlane_b32 s98, v0")
                lines.append("    s_mov_b32 s99, s2")
                continue
            if l.strip() == "s_endpgm" and kidx >= 0:
                lines += ["    s_branch LTL_%d" % kidx]
                continue
            lines.append(l)
        i = max(j for j, l in enumerate(lines) if l.startswith("L_code_end:"))
        tail = []
        for k in range(3):
            tail += ["LTL_%d:" % k, "    s_memrealtime s[90:91]", "    s_waitcnt vmcnt(0) lgkmcnt(0)", "    s_memrealtime s[100:101]", "    s_waitcnt lgkmcnt(0)",
                     "    s_mov_b32 s94, 0x%x" % WS_END, "    s_mov_b32 s95, 0x20000", "    s_mov_b64 exec, 1",
                     "    s_lshr_b32 s98, s98, 6", "    s_lshl_b32 s99, s99, 4", "    s_add_u32 s99, s99, s98", "    s_lshl_b32 s99, s99, 4",
                     "    s_add_u32 s99, s99, 0x%x" % (WS_DIAG + 0x80000 + k * 0x20000),
                     "    v_mov_b32 v0, s96", "    v_mov_b32 v1, s90", "    v_mov_b32 v2, s100", "    v_mov_b32 v3, 0",
                     "    buffer_store_dwordx4 v[0:3], v3, s[92:95], s99 offen", "    s_endpgm"]
        lines[i + 1:i + 2] = ["    s_endpgm"] + tail
        out = "\n".join(lines)
        out = re.sub(r"amdhsa_next_free_sgpr \d+", "amdhsa_next_free_sgpr 102", out)
    if os.environ.get("TL") == "2":
        body = """
.globl rep_kernel
.p2align 8
.type rep_kernel,@function
rep_kernel:
    s_cmp_ge_u32 s2, 1
    s_cbranch_scc1 LR_end
    s_memrealtime s[20:21]
    s_load_dwordx4 s[4:7], s[0:1], 72
    s_waitcnt lgkmcnt(0)
    s_mov_b32 s8, s6
    s_mov_b32 s9, s7
    s_mov_b32 s10, 0x%x
    s_mov_b32 s11, 0x20000
    s_mov_b32 s12, s4
    s_mov_b32 s13, s5
    s_mov_b32 s14, 256
    s_mov_b32 s15, 0x20000
    v_lshlrev_b32 v1, 8, v0
    v_mov_b32 v20, 0
""" % WS_END
        for k, nw in ((0, 8), (1, 12)):
            body += "    s_mov_b32 s16, 0x%x\n" % (WS_DIAG + 0x80000 + k * 0x20000)
            for w in range(nw):
                body += "    buffer_load_dwordx4 v[4:7], v1, s[8:11], s16 offen offset:%d\n    s_waitcnt vmcnt(0)\n" % (16 * w)
                body += "    v_sub_u32 v4, s20, v4\n    v_sub_u32 v5, s20, v5\n    v_sub_u32 v6, s20, v6\n    v_sub_u32 v8, 0, v4\n    v_sub_u32 v9, 0, v5\n    v_sub_u32 v10, 0, v6\n"
                body += "    buffer_atomic_umax v4, v20, s[12:15], 0 offen offset:%d\n" % (16 * k)
                body += "    buffer_atomic_umax v8, v20, s[12:15], 0 offen offset:%d\n" % (16 * k + 4)
                body += "    buffer_atomic_umax v9, v20, s[12:15], 0 offen offset:%d\n" % (16 * k + 8)
                body += "    buffer_atomic_umax v10, v20, s[12:15], 0 offen offset:%d\n    s_waitcnt vmcnt(0)\n" % (16 * k + 12)
        body += "LR_end:\n    s_endpgm\n"
        i = out.index('.section .rodata')
        out = out[:i] + body + out[i:] + kernel_desc("rep_kernel", 32, 32)
        out = out.replace('.amdgcn_target', '; @launch kernel=rep_kernel grid=(1,1,1) block=(256,1,1) lds=0\n.amdgcn_target', 1)
    if os.environ.get("ENC"):
        fld, lo = [int(x) for x in os.environ["ENC"].split(",")]
        body = """
.globl rep_kernel
.p2align 8
.type rep_kernel,@function
rep_kernel:
    s_cmp_ge_u32 s2, 1
    s_cbranch_scc1 LR_end
    s_memrealtime s[20:21]
    s_load_dwordx4 s[4:7], s[0:1], 72
    v_mov_b32 v20, 0
    v_mov_b32 v22, 0
    v_mov_b32 v23, -1
    ds_write_b64 v20, v[22:23]
    s_waitcnt lgkmcnt(0)
    s_barrier
    s_mov_b32 s8, s6
    s_mov_b32 s9, s7
    s_mov_b32 s10, 0x%x
    s_mov_b32 s11, 0x20000
    v_max_u32 v1, %d, v0
    v_lshlrev_b32 v1, 9, v1
    s_mov_b32 s16, 0x%x
""" % (WS_END, lo, WS_DIAG + 0x20000)
        for w in range(4, 8):
            body += "    buffer_load_dword v%d, v1, s[8:11], s16 offen offset:%d\n" % (w, 32 * w + 4 * max(fld, 0))
            body += "    buffer_load_dword v%d, v1, s[8:11], s16 offen offset:%d\n" % (w + 8, 32 * w + 28)
        body += "    s_waitcnt vmcnt(0)\n"
        for w in range(4, 8):
            body += "    v_sub_u32 v%d, s20, v%d\n    v_sub_u32 v%d, s20, v%d\n" % (w, w, w + 8, w + 8)
            body += "    ds_min_u32 v20, v%d offset:4\n    ds_max_u32 v20, v%d\n" % (w, w + 8)
        body += """    s_waitcnt lgkmcnt(0)
    s_barrier
    ds_read_b64 v[22:23], v20
    s_waitcnt lgkmcnt(0)
    v_sub_u32 v22, v22, v23
    s_nop 0
    v_readfirstlane_b32 s24, v22
    s_min_u32 s24, s24, 10000
    s_mul_i32 s24, s24, %d
    s_memrealtime s[20:21]
    s_waitcnt lgkmcnt(0)
LR_sp:
    s_memrealtime s[22:23]
    s_waitcnt lgkmcnt(0)
    s_sub_u32 s22, s22, s20
    s_cmp_lt_u32 s22, s24
    s_cbranch_scc1 LR_sp
LR_end:
    s_endpgm
""" % (8 if fld >= 0 else 0)
        i = out.index('.section .rodata')
        out = out[:i] + body + out[i:] + kernel_desc("rep_kernel", 32, 32)
        out = out.replace('.amdgcn_target', '; @launch kernel=rep_kernel grid=(1,1,1) block=(256,1,1) lds=64\n.amdgcn_target', 1)
    wsb = int(os.environ.get("WSB", "0"), 0)
    if wsb:
        out = re.sub(r"s_mov_b32 (s\d+), s42\n\s+s_mov_b32 (s\d+), s43", lambda m: "s_add_u32 %s, s42, 0x%x\n    s_addc_u32 %s, s43, 0" % (m.group(1), wsb, m.group(2)), out)
        k2 = out.index("attn_kernel:")
        head, tail = out[:k2], out[k2:]
        tail = re.sub(r"s_mov_b32 (s\d+), s4\n\s+s_mov_b32 (s\d+), s5", lambda m: "s_add_u32 %s, s4, 0x%x\n    s_addc_u32 %s, s5, 0" % (m.group(1), wsb, m.group(2)), tail)
        tail = re.sub(r"s_add_u32 (s22|s36), s4, 0x([0-9a-f]+)", lambda m: "s_add_u32 %s, s4, 0x%x" % (m.group(1), int(m.group(2), 16) + wsb), tail)
        tail = tail.replace("s_mul_i32 s29, s16, 163840\n", "s_mul_i32 s29, s16, 163840\n    s_add_u32 s29, s29, 0x%x\n" % wsb)
        out = head + tail
    mod = os.environ.get("STMOD", "")
    if mod:
        lines = []
        for l in out.split("\n"):
            if re.match(r"\s*buffer_store_dwordx[24] ", l) and " sc" not in l and " nt" not in l:
                l = l + " " + mod
            lines.append(l)
        out = "\n".join(lines)
    return out

if __name__ == "__main__":
    which = sys.argv[1] if len(sys.argv) > 1 else "123"
    path = sys.argv[2] if len(sys.argv) > 2 else "cdna_kernels/%s.s" % NAME
    open(path, "w").write(build(which))
    print("wrote", path)
```

```python
from common import *
import os
DIAG = os.environ.get("DIAG")
RT = os.environ.get("RT")
ROT = os.environ.get("K2_SPEC", "1") == "1"
K2_PRIO = os.environ.get("K2_PRIO", "5,7,99")
K2_K0 = int(os.environ.get("K2_K0", "2" if FUSE else "3"))
K2_NW = 12
L_MARK = 10240
L_W0, L_W1 = 11264, 92160
L_EX = 62464
L_GX = 143360
L_P2 = 2560
L_Y = 0
MARK = 0xffff7fff
SPIN = 1 << 18

def gen_k2(a, name="attn_kernel"):
    QBW, NG, KS, NT, UN = 2, 4, 2, 32, int(os.environ.get('K2_UN', '4'))
    NIT = NT // UN
    r = [4]
    def alloc(n):
        b = r[0]; r[0] += (n + 1) // 2 * 2; return b
    QA = [alloc(4) for _ in range(QBW)]
    QB = [alloc(2) for _ in range(QBW)]
    KA, KB = alloc(4), alloc(2)
    V0, V1 = alloc(4), alloc(4)
    P0, P1 = alloc(4), alloc(4)
    SA, SB = alloc(16), alloc(16)
    AKA, AKB, AV, AV1 = alloc(1), r[0] - 1, alloc(1), r[0] - 1
    assert r[0] <= 104
    O = [104, 120]
    MS, PK, A, B = 136, 150, 156, 157
    M = [162, 163]
    T0, T1, T2, T3 = 164, 165, 166, 167
    LANE = 0
    S_KV, S_Q = 8, 12
    S_H, S_QB, S_W, S_T = 16, 17, 18, 19
    S_VM, S_HI = 20, 22
    S_IT, S_FB, S_KS, S_G = 24, 25, 26, 27
    S_TMP = 28
    qk1 = lambda S, q: a("v_mfma_f32_32x32x16_bf16 %s, %s, %s, 0" % (vr(S, 16), vr(KA, 4), vr(QA[q], 4)))
    qk2 = lambda S, q: a("v_mfma_f32_32x32x8_bf16 %s, %s, %s, %s" % (vr(S, 16), vr(KB, 2), vr(QB[q], 2), vr(S, 16)))
    pv0 = lambda q: a("v_mfma_f32_32x32x16_bf16 %s, %s, %s, %s" % (vr(O[q], 16), vr(V0, 4), vr(P0, 4), vr(O[q], 16)))
    pv1 = lambda q: a("v_mfma_f32_32x32x16_bf16 %s, %s, %s, %s" % (vr(O[q], 16), vr(V1, 4), vr(P1, 4), vr(O[q], 16)))
    rka = lambda t: a("ds_read_b128 %s, v%d offset:%d" % (vr(KA, 4), AKA, t * 2560))
    rkb = lambda t: a("ds_read_b32 v%d, v%d offset:%d" % (KB, AKB, t * 2560 + 1024))
    rv0 = lambda t: a("ds_read_b128 %s, v%d offset:%d" % (vr(V0, 4), AV, t * 2560 + 1280))
    rv1 = lambda t: a("ds_read_b128 %s, v%d offset:%d" % (vr(V1, 4), AV1, t * 2560 + 1280))
    mon = lambda: a("s_mov_b64 exec, %s" % sr(S_VM, 2))
    moff = lambda: a("s_mov_b64 exec, -1")
    wl = lambda k: a("s_waitcnt lgkmcnt(%d)" % k)
    def diag(regs, base):
        if DIAG:
            a("s_memtime s[46:47]")
            a("s_memrealtime s[48:49]")
            a("s_waitcnt lgkmcnt(0)")
            a("s_sub_u32 s44, s44, s40")
            a("s_sub_u32 s46, s46, s40")
            a("s_sub_u32 s48, s48, s42")
            a("s_sub_u32 s52, s52, s40")
            a("v_mov_b32 v%d, s44" % regs)
            a("v_mov_b32 v%d, s46" % (regs + 1))
            a("v_mov_b32 v%d, s48" % (regs + 2))
            a("v_mov_b32 v%d, s52" % (regs + 3))
            a("s_lshl_b32 s50, s2, 4")
            a("s_add_u32 s50, s50, s%d" % S_W)
            a("s_lshl_b32 s50, s50, 4")
            a("s_add_u32 s50, s50, 0x%x" % WS_DIAG)
            a("v_mov_b32 v%d, 0" % base)
            a("buffer_store_dwordx4 %s, v%d, %s, s50 offen" % (vr(regs, 4), base, sr(S_Q, 4)))

    SC = " sc1" if FUSE else ""
    if FUSE:
        a("L2_entry:")
        a("s_mov_b32 s4, s42")
        a("s_mov_b32 s5, s43")
        a("s_mov_b32 s%d, s20" % S_W)
        a("s_setprio 3")
        if RT:
            a("s_memrealtime s[94:95]")
    else:
        kernel_begin(a, name)
        a("s_cmp_ge_u32 s2, 256")
        a("s_cbranch_scc1 L2_end")
        a("s_load_dwordx2 s[4:5], s[0:1], %d" % KA_WS)
        if DIAG:
            a("s_memtime s[40:41]")
            a("s_memrealtime s[42:43]")
        a("s_setprio 3")
        a("v_lshrrev_b32 v%d, 6, v0" % T0)
        a("v_and_b32 v0, 63, v0")
    a("s_and_b32 s%d, s2, 7" % S_H)
    a("s_lshl_b32 s%d, s%d, 2" % (S_H, S_H))
    a("s_bfe_u32 s%d, s2, 0x20003" % S_TMP)
    a("s_add_u32 s%d, s%d, s%d" % (S_H, S_H, S_TMP))
    if not FUSE:
        a("v_readfirstlane_b32 s%d, v%d" % (S_W, T0))
    a("s_mul_i32 s%d, s%d, 163840" % (S_TMP + 1, S_H))
    a("s_mov_b32 s%d, 163840" % (S_KV + 2))
    a("s_mov_b32 s%d, 0x20000" % (S_KV + 3))
    a("s_cmp_lt_u32 s%d, 4" % S_W)
    a("s_cbranch_scc1 L2_helper")
    a("s_lshr_b32 s%d, s2, 5" % S_QB)
    a("s_mov_b32 s%d, 0x000fffff" % S_VM)
    a("s_mov_b32 s%d, 0x000fffff" % (S_VM + 1))
    a("s_mov_b32 s%d, 0" % S_HI)
    a("s_mov_b32 s%d, -1" % (S_HI + 1))
    a("v_and_b32 v%d, 31, v%d" % (T0, LANE))
    a("v_lshrrev_b32 v%d, 5, v%d" % (T1, LANE))
    a("v_lshlrev_b32 v%d, 4, v%d" % (AKA, LANE))
    a("v_and_b32 v%d, 7, v%d" % (AKB, LANE))
    a("v_lshlrev_b32 v%d, 4, v%d" % (AKB, AKB))
    a("v_and_b32 v%d, 16, v%d" % (T2, LANE))
    a("v_lshl_add_u32 v%d, v%d, 3, v%d" % (AKB, T2, AKB))
    a("v_and_b32 v%d, 8, v%d" % (T2, LANE))
    a("v_add_u32 v%d, v%d, v%d" % (AKB, AKB, T2))
    a("v_lshl_add_u32 v%d, v%d, 2, v%d" % (AKB, T1, AKB))
    a("s_and_b32 s%d, s%d, 3" % (S_G, S_W))
    a("s_lshr_b32 s%d, s%d, 3" % (S_KS, S_W))
    a("s_lshl_b32 s%d, s%d, 3" % (S_T, S_QB))
    a("s_lshl_b32 s%d, s%d, 1" % (S_TMP, S_G))
    a("s_add_u32 s%d, s%d, s%d" % (S_T, S_T, S_TMP))
    a("s_mul_i32 s%d, s%d, 81920" % (S_TMP, S_H))
    a("s_mul_i32 s%d, s%d, 1280" % (S_TMP + 2, S_T))
    a("s_add_u32 s%d, s%d, s%d" % (S_TMP, S_TMP, S_TMP + 2))
    a("s_add_u32 s%d, s%d, 0x%x" % (S_TMP, S_TMP, WS_Q))
    a("s_mul_i32 s%d, s%d, %d" % (S_TMP + 3, S_KS, NT * 2560))
    a("s_waitcnt lgkmcnt(0)")
    srd(a, S_Q, 4, 5, WS_END)
    def qloads():
        for q in range(QBW):
            a("buffer_load_dwordx4 %s, v%d, %s, s%d offen offset:%d%s" % (vr(QA[q], 4), AKA, sr(S_Q, 4), S_TMP, 1280 * q, SC))
            a("buffer_load_dword v%d, v%d, %s, s%d offen offset:%d%s" % (QB[q], AKB, sr(S_Q, 4), S_TMP, 1280 * q + 1024, SC))
    if FUSE:
        a("s_sub_u32 s%d, s%d, s%d" % (S_TMP, S_TMP, S_TMP + 3))
    else:
        qloads()
    a("s_add_u32 s%d, s4, s%d" % (S_KV, S_TMP + 1))
    a("s_addc_u32 s%d, s5, 0" % (S_KV + 1))
    a("v_lshrrev_b32 v%d, 2, v%d" % (T2, T0))
    a("v_add_u32 v%d, v%d, v%d" % (AV, T2, T1))
    a("v_and_b32 v%d, 3, v%d" % (AV, AV))
    a("v_lshlrev_b32 v%d, 6, v%d" % (AV, AV))
    a("v_lshl_add_u32 v%d, v%d, 8, v%d" % (AV, T2, AV))
    a("v_and_b32 v%d, 3, v%d" % (T2, LANE))
    a("v_lshl_add_u32 v%d, v%d, 4, v%d" % (AV, T2, AV))
    a("v_add_u32 v%d, s%d, v%d" % (AKA, S_TMP + 3, AKA))
    a("v_add_u32 v%d, s%d, v%d" % (AKB, S_TMP + 3, AKB))
    a("v_add_u32 v%d, s%d, v%d" % (AV, S_TMP + 3, AV))
    a("v_xor_b32 v%d, 128, v%d" % (AV1, AV))
    a("v_mov_b32 v%d, 0x3f80" % (KB + 1))
    for q in range(QBW):
        a("v_mov_b32 v%d, 0" % (QB[q] + 1))
    for i in range(4):
        a("v_mov_b32 v%d, 0" % (P1 + i))
    for q in range(QBW):
        for i in range(16):
            a("v_mov_b32 v%d, 0" % (O[q] + i))
    a("v_mov_b32 v%d, 0x3f803f80" % T3)
    a("v_cmp_eq_u32 vcc, 20, v%d" % T0)
    a("v_cmp_eq_u32 s[%d:%d], 24, v%d" % (S_TMP + 4, S_TMP + 5, T0))
    a("s_or_b64 vcc, vcc, s[%d:%d]" % (S_TMP + 4, S_TMP + 5))
    a("s_mov_b32 s%d, 0" % S_IT)
    a("s_mov_b32 s%d, 0" % S_FB)
    a("v_cndmask_b32 v%d, 0, v%d, vcc" % (T3, T3))
    for i in range(8):
        a("v_mov_b32 v%d, v%d" % (V0 + i, T3))
    if FUSE:
        a("v_mov_b32 v1, 0")
        a("v_mov_b32 v2, 1")
        a("s_waitcnt vmcnt(0)")
        a("s_mov_b64 exec, 1")
        a("buffer_store_dword v2, v1, %s, s%d offen sc1" % (sr(S_Q, 4), S_PFL))
        a("s_mov_b64 exec, -1")
        if RT:
            a("s_memrealtime s[96:97]")
        a("s_barrier")
        a("s_barrier")
        qloads()
    a("s_barrier")
    if RT:
        a("s_memrealtime s[98:99]")
    if DIAG:
        a("s_memtime s[52:53]")
    rka(0); rkb(0)
    mon(); rv0(0); moff()
    a("s_waitcnt vmcnt(0) lgkmcnt(%d)" % (0 if (DIAG or RT) else 1))
    def rowmax(dst, S, first):
        a("v_max3_f32 v%d, v%d, v%d, v%d" % (T0, S, S + 1, S + 2))
        a("v_max3_f32 v%d, v%d, v%d, v%d" % (T1, S + 3, S + 4, S + 5))
        a("v_max3_f32 v%d, v%d, v%d, v%d" % (T0, T0, S + 6, S + 7))
        a("v_max3_f32 v%d, v%d, v%d, v%d" % (T1, T1, S + 8, S + 9))
        a("v_max3_f32 v%d, v%d, v%d, v%d" % (T0, T0, S + 10, S + 11))
        a("v_max3_f32 v%d, v%d, v%d, v%d" % (T1, T1, S + 12, S + 13))
        a("v_max3_f32 v%d, v%d, v%d, v%d" % (T0, T0, S + 14, S + 15))
        if first:
            a("v_max_f32 v%d, v%d, v%d" % (dst, T0, T1))
        else:
            a("v_max3_f32 v%d, v%d, v%d, v%d" % (dst, T0, T1, dst))
    def xhalf_max(rr):
        a("v_mov_b32 v%d, v%d" % (T1, rr))
        a("s_nop 1")
        a("v_permlane32_swap_b32 v%d, v%d" % (rr, T1))
        a("s_nop 1")
        a("v_max_f32 v%d, v%d, v%d" % (rr, rr, T1))
    SS = [SA, SB]
    for q in range(QBW):
        qk1(SS[q], q); qk2(SS[q], q)
    a("s_nop 9")
    for q in range(QBW):
        rowmax(M[q], SS[q], True)
        xhalf_max(M[q])
        a("v_and_b32 v%d, 0xffff0000, v%d" % (T0, M[q]))
        a("v_sub_f32 v%d, v%d, v%d" % (T1, M[q], T0))
        a("v_and_b32 v%d, 0xffff0000, v%d" % (T1, T1))
        a("v_add_f32 v%d, v%d, v%d" % (M[q], T0, T1))
        a("v_cndmask_b32 v%d, v%d, v%d, %s" % (T0, T0, T1, sr(S_HI, 2)))
        a("v_xor_b32 v%d, 0x80000000, v%d" % (T0, T0))
        a("v_lshrrev_b32 v%d, 16, v%d" % (QB[q] + 1, T0))
        if q == 0:
            qk1(SA, 0)
            a("s_nop 0")
            qk2(SA, 0)
    if DIAG:
        a("s_memtime s[44:45]")
        a("s_waitcnt lgkmcnt(0)")
    a(".p2align 6")
    a("L2_loop:")
    def adv():
        a("v_add_u32 v%d, %d, v%d" % (AKA, UN * 2560, AKA))
        a("v_add_u32 v%d, %d, v%d" % (AKB, UN * 2560, AKB))
        a("v_add_u32 v%d, %d, v%d" % (AV, UN * 2560, AV))
        a("v_add_u32 v%d, %d, v%d" % (AV1, UN * 2560, AV1))
    for n in range(UN):
        for ph in range(2):
            Sc, Sn = (SA, SB) if ph == 0 else (SB, SA)
            ex = lambda i: a("v_exp_f32 v%d, v%d" % (Sc + i, Sc + i))
            cv = lambda i: a("v_cvt_pk_bf16_f32 v%d, v%d, v%d" % (P0 + i, Sc + 2 * i, Sc + 2 * i + 1))
            if ph == 0:
                qk1(Sn, 1); rka(n + 1); ex(0); ex(1); ex(2); ex(3); cv(0); cv(1)
                pv1(1); mon(); rv1(n); moff(); ex(4); ex(5); ex(6); ex(7); cv(2); cv(3)
                qk2(Sn, 1); rkb(n + 1); ex(8); ex(9); ex(10); ex(11); cv(4); cv(5); wl(2)
                pv0(0); ex(12); ex(13); ex(14); ex(15); cv(6); cv(7)
            else:
                qk1(Sn, 0); ex(0); ex(1); ex(2); ex(3); cv(0); cv(1); wl(0)
                pv1(0); ex(4); ex(5); ex(6); ex(7); cv(2); cv(3)
                qk2(Sn, 0); ex(8); ex(9); ex(10); ex(11); cv(4); cv(5)
                pv0(1); mon(); rv0(n + 1); moff(); ex(12); ex(13); ex(14); ex(15)
                if n == UN - 1:
                    adv()
                cv(6); cv(7)
    if DIAG == "2":
        a("s_sub_u32 s54, s54, s40")
        a("s_mov_b32 m0, s%d" % S_IT)
        a("s_nop 0")
        a("v_writelane_b32 v2, s54, m0")
        a("s_memtime s[54:55]")
    a("s_add_u32 s%d, s%d, 1" % (S_IT, S_IT))
    pr = [int(x) for x in K2_PRIO.split(",")]
    SYNC_IT = 4 // UN
    MARK_IT = [16 // UN, 24 // UN]
    special = sorted(set([SYNC_IT] + MARK_IT + [p for p in pr if p < NIT] + [NIT]))
    mask = sum(1 << s for s in special)
    a("s_bitcmp1_b32 0x%x, s%d" % (mask, S_IT))
    a("s_cbranch_scc0 L2_loop")
    for s in special:
        if s == NIT:
            continue
        a("s_cmp_lg_u32 s%d, %d" % (S_IT, s))
        a("s_cbranch_scc1 L2_sp%d" % s)
        if s in pr:
            a("s_setprio %d" % (2 - pr.index(s)))
        if s == SYNC_IT:
            a("s_barrier")
        if s in MARK_IT:
            a("s_lshl_b32 s%d, s%d, 2" % (S_TMP, S_W))
            a("s_add_u32 s%d, s%d, %d" % (S_TMP, S_TMP, L_MARK - 16 + 32 * MARK_IT.index(s)))
            a("v_mov_b32 v%d, s%d" % (T0, S_TMP))
            a("v_mov_b32 v%d, 0x%x" % (T1, MARK))
            a("ds_write_b32 v%d, v%d" % (T0, T1))
            wl(0)
        a("s_branch L2_loop")
        a("L2_sp%d:" % s)
    wl(0)
    pv1(QBW - 1)
    a("L2_epi:")
    if RT:
        a("s_memrealtime s[44:45]")
    if DIAG == "2":
        a("s_lshl_b32 s50, s2, 4")
        a("s_add_u32 s50, s50, s%d" % S_W)
        a("s_lshl_b32 s50, s50, 8")
        a("s_add_u32 s50, s50, 0x%x" % (WS_DIAG - 0x100000))
        a("v_lshlrev_b32 v3, 2, v%d" % LANE)
        a("buffer_store_dword v2, v3, %s, s50 offen" % sr(S_Q, 4))
    diag(P0, T0)
    a("s_nop 15")
    a("v_mov_b32 v%d, 0x%x" % (T2, (127 - 30) << 23))
    a("v_mov_b32 v%d, 0x%x" % (T3, (127 + 30) << 23))
    a("s_mov_b64 vcc, 0")
    for q in range(QBW):
        Oq = O[q]
        a("v_cndmask_b32 v%d, v%d, v%d, %s" % (Oq + 12, Oq + 12, Oq + 8, sr(S_HI, 2)))
        a("v_mov_b32 v%d, v%d" % (Oq + 13, M[q]))
        a("v_cmp_nge_f32 s[%d:%d], v%d, v%d" % (S_TMP + 4, S_TMP + 5, Oq + 12, T2))
        a("v_cmp_nle_f32 s[%d:%d], v%d, v%d" % (S_TMP + 6, S_TMP + 7, Oq + 12, T3))
        a("s_or_b64 vcc, vcc, s[%d:%d]" % (S_TMP + 4, S_TMP + 5))
        a("s_or_b64 vcc, vcc, s[%d:%d]" % (S_TMP + 6, S_TMP + 7))
    a("s_cselect_b32 s%d, 1, 0" % S_TMP)
    a("s_andn2_b32 s%d, s%d, s%d" % (S_TMP, S_TMP, S_FB))
    a("s_cbranch_scc1 L2_fallback")
    S_RB, S_CB, S_ROT, S_TT = 20, 21, 24, 25
    ACC, OF, WF = 4, 24, 64
    VB = 3
    S_O, S_WA = 32, 64
    def tile_ids():
        a("s_and_b32 s%d, s2, 7" % S_RB)
        a("s_lshl_b32 s%d, s%d, 2" % (S_RB, S_RB))
        a("s_lshr_b32 s%d, s2, 6" % S_TMP)
        a("s_add_u32 s%d, s%d, s%d" % (S_RB, S_RB, S_TMP))
        a("s_bfe_u32 s%d, s2, 0x30003" % S_CB)
    tile_ids()
    a("s_lshl_b32 s%d, s%d, 2" % (S_TT, S_RB))
    a("s_add_u32 s%d, s%d, s%d" % (S_TT, S_TT, S_G))
    a("s_lshl_b32 s%d, s%d, 14" % (S_O, S_TT))
    a("s_lshl_b32 s%d, s%d, 13" % (S_TMP + 2, S_KS))
    a("s_add_u32 s%d, s%d, s%d" % (S_O, S_O, S_TMP + 2))
    a("s_add_u32 s%d, s%d, 0x%x" % (S_O, S_O, WS_O))
    a("s_lshr_b32 s36, s%d, 1" % S_TT)
    a("s_lshl_b32 s36, s36, 13")
    a("s_and_b32 s%d, s%d, 1" % (S_TMP, S_TT))
    a("s_lshl_b32 s%d, s%d, 7" % (S_TMP, S_TMP))
    a("s_add_u32 s36, s36, s%d" % S_TMP)
    a("s_lshl_b32 s%d, s%d, 12" % (S_TMP + 2, S_KS))
    a("s_add_u32 s36, s36, s%d" % (S_TMP + 2))
    a("s_add_u32 s36, s36, 0x%x" % WS_OB)
    waddr = lambda ks: L_W0 + 5120 * ks if ks < 10 else L_W1 + 5120 * (ks - 10)
    first_ks = lambda i, sp: 8 * sp + 2 * i if i < 4 else 16 + 2 * sp + (i - 4)
    a("s_cmp_eq_u32 s%d, 0" % S_KS)
    for i in (4, 5):
        a("s_mov_b32 s%d, %d" % (S_WA + i, waddr(first_ks(i, 1))))
        a("s_cselect_b32 s%d, %d, s%d" % (S_WA + i, waddr(first_ks(i, 0)), S_WA + i))
    a("s_lshl_b32 s%d, s%d, 2" % (S_TMP + 3, S_KS))
    for i in (3, 2, 1, 0):
        a("s_add_u32 s%d, s%d, %d" % (S_TMP, S_CB, i) if ROT else "s_mov_b32 s%d, %d" % (S_TMP, i))
        a("s_and_b32 s%d, s%d, 3" % (S_TMP, S_TMP))
        a("s_lshl_b32 s%d, s%d, 11" % (S_TMP + 1, S_TMP))
        a("s_add_u32 s%d, s%d, s%d" % (S_O + i, S_O, S_TMP + 1))
        a("s_add_u32 s%d, s%d, s%d" % (S_TMP, S_TMP, S_TMP + 3))
        a("s_mul_i32 s%d, s%d, 10240" % (S_TMP + 1, S_TMP))
        a("s_cmp_ge_u32 s%d, 5" % S_TMP)
        a("s_cselect_b32 s%d, %d, 0" % (S_TMP, L_W1 - 51200 - L_W0))
        a("s_add_u32 s%d, s%d, s%d" % (S_TMP, S_TMP, S_TMP + 1))
        a("s_add_u32 s%d, s%d, %d" % (S_WA + i, S_TMP, L_W0))
    a("v_lshlrev_b32 v1, 4, v0")
    a("v_and_b32 v2, 15, v0")
    a("v_lshrrev_b32 v%d, 4, v0" % VB)
    a("v_lshlrev_b32 v%d, 9, v%d" % (VB, VB))
    a("v_lshl_add_u32 v%d, v2, 3, v%d" % (VB, VB))
    for i in range(20):
        a("v_mov_b32 v%d, 0" % (ACC + i))
    a("v_bfe_u32 v%d, v%d, 4, 1" % (T1, LANE))
    a("v_and_b32 v%d, 7, v%d" % (T2, LANE))
    a("v_lshl_add_u32 v%d, v%d, 3, v%d" % (T1, T1, T2))
    a("v_bfe_u32 v%d, v%d, 3, 1" % (T2, LANE))
    a("v_lshlrev_b32 v%d, 14, v%d" % (A, T2))
    a("v_lshl_add_u32 v%d, v%d, 4, v%d" % (A, T1, A))
    a("v_lshlrev_b32 v%d, 7, v%d" % (B, T2))
    a("v_lshl_add_u32 v%d, v%d, 3, v%d" % (B, T1, B))
    a("v_lshrrev_b32 v%d, 5, v%d" % (T1, LANE))
    a("v_lshl_add_u32 v%d, v%d, 8, v%d" % (A, T1, A))
    a("s_add_u32 s%d, s%d, s%d" % (S_T, S_T, S_KS))
    a("s_lshl_b32 s38, s%d, 15" % S_T)
    a("s_lshl_b32 s%d, s%d, 9" % (S_TMP + 1, S_H))
    a("s_add_u32 s38, s38, s%d" % (S_TMP + 1))
    a("s_lshl_b32 s39, s%d, 13" % S_T)
    a("s_lshl_b32 s%d, s%d, 8" % (S_TMP + 2, S_H))
    a("s_add_u32 s39, s39, s%d" % (S_TMP + 2))
    a("s_add_u32 s38, s38, 0x%x" % WS_O)
    a("s_add_u32 s39, s39, 0x%x" % WS_OB)
    a("s_mul_i32 s%d, s%d, 7168" % (S_TMP, S_G))
    a("s_add_u32 s%d, s%d, %d" % (S_TMP, S_TMP, L_EX))
    a("v_lshl_add_u32 v%d, v%d, 4, s%d" % (T0, LANE, S_TMP))
    a("v_lshl_add_u32 v%d, v%d, 3, s%d" % (T3, LANE, S_TMP))
    a("s_setprio 3")
    a("s_cmp_eq_u32 s%d, 0" % S_KS)
    a("s_barrier")
    a("s_cbranch_scc1 L2_c0")
    for c in range(3):
        a("ds_write_b128 v%d, %s offset:%d" % (T0, vr(O[0] + 4 * c, 4), 1024 * c))
    a("ds_write_b64 v%d, %s offset:%d" % (T3, vr(O[0] + 12, 2), 3072))
    for i in range(14):
        a("v_mov_b32 v%d, v%d" % (O[0] + i, O[1] + i))
    a("v_add_u32 v%d, 3584, v%d" % (T0, T0))
    a("v_add_u32 v%d, 3584, v%d" % (T3, T3))
    a("s_branch L2_c1")
    a("L2_c0:")
    for c in range(3):
        a("ds_write_b128 v%d, %s offset:%d" % (T0, vr(O[1] + 4 * c, 4), 3584 + 1024 * c))
    a("ds_write_b64 v%d, %s offset:%d" % (T3, vr(O[1] + 12, 2), 3584 + 3072))
    a("L2_c1:")
    def bloads(i):
        if i < 4:
            return ["buffer_load_dwordx4 %s, v1, %s, s%d offen offset:%d sc1" % (vr(OF + 8 * i + 4 * q, 4), sr(S_Q, 4), S_O + i, 1024 * q) for q in range(2)]
        return ["buffer_load_dwordx2 %s, v%d, %s, s36 offen offset:%d sc1" % (vr(OF + 32 + 4 * (i - 4) + 2 * h, 2), VB, sr(S_Q, 4), 2048 * (i - 4) + 256 * h) for h in range(2)]
    SPEC = os.environ.get("K2_SPEC", "1") == "1"
    EARLY = os.environ.get("K2_EARLY", "1") == "1" and not SPEC
    if EARLY:
        for l in bloads(4) + bloads(5):
            a(l)
    wl(0)
    a("s_barrier")
    Oq = O[0]
    a("ds_read_b64 %s, v%d offset:%d" % (vr(MS + 12, 2), T3, 3072))
    for c in range(3):
        a("ds_read_b128 %s, v%d offset:%d" % (vr(MS + 4 * c, 4), T0, 1024 * c))
    wl(3)
    a("v_max_f32 v%d, v%d, v%d" % (T1, Oq + 13, MS + 13))
    a("v_sub_f32 v%d, v%d, v%d" % (T2, Oq + 13, T1))
    a("v_sub_f32 v%d, v%d, v%d" % (T3, MS + 13, T1))
    a("v_exp_f32 v%d, v%d" % (T2, T2))
    a("v_exp_f32 v%d, v%d" % (T3, T3))
    a("v_mul_f32 v%d, v%d, v%d" % (PK, Oq + 12, T2))
    a("v_fmac_f32 v%d, v%d, v%d" % (PK, MS + 12, T3))
    a("v_rcp_f32 v%d, v%d" % (PK + 1, PK))
    a("s_nop 0")
    a("v_mul_f32 v%d, v%d, v%d" % (T2, T2, PK + 1))
    a("v_mul_f32 v%d, v%d, v%d" % (T3, T3, PK + 1))
    for i in range(12):
        a("v_mul_f32 v%d, v%d, v%d" % (Oq + i, Oq + i, T2))
    wl(0)
    for i in range(12):
        a("v_fmac_f32 v%d, v%d, v%d" % (Oq + i, MS + i, T3))
    for i in range(6):
        a("v_cvt_pk_bf16_f32 v%d, v%d, v%d" % (PK + i, Oq + 2 * i, Oq + 2 * i + 1))
    for i in range(6):
        a("v_min_u32 v%d, -2, v%d" % (PK + i, PK + i))
    a("buffer_store_dwordx4 %s, v%d, %s, s38 offen sc1" % (vr(PK, 4), A, sr(S_Q, 4)))
    a("s_mov_b32 exec_hi, 0")
    a("buffer_store_dwordx2 %s, v%d, %s, s39 offen sc1" % (vr(PK + 4, 2), B, sr(S_Q, 4)))
    a("s_mov_b64 exec, -1")
    if RT:
        a("s_memrealtime s[52:53]")
        a("s_mov_b32 s91, 0")
    a("s_barrier")
    if RT == "2":
        a("s_waitcnt vmcnt(0)")
        a("s_memrealtime s[44:45]")
    if os.environ.get("K2_DLY"):
        a("s_sleep %s" % os.environ.get("K2_DLY"))
    if not EARLY and not SPEC:
        for l in bloads(4) + bloads(5):
            a(l)
    S_PEND = S_TMP + 2
    if SPEC:
        order = [int(c) for c in os.environ.get('K2_ORD', '041523')]
        for i in order:
            for l in bloads(i):
                a(l)
        a("s_mov_b32 s%d, 63" % S_PEND)
        a("s_mov_b32 s%d, %d" % (S_TMP + 1, SPIN))
        a("L2_pass:")
        for pos, i in enumerate(order):
            nk = 2 if i < 4 else 1
            b0 = OF + 8 * i if i < 4 else OF + 32 + 4 * (i - 4)
            a("s_bitcmp1_b32 s%d, %d" % (S_PEND, i))
            a("s_cbranch_scc0 L2_pn%d" % i)
            a("v_add_u32 v2, s%d, v1" % (S_WA + i))
            for n in range(5 * nk):
                a("ds_read_b128 %s, v2 offset:%d" % (vr(WF + 4 * n, 4), 1024 * n))
            a("s_waitcnt vmcnt(%d)" % (2 * (5 - pos)))
            a("v_max3_u32 v%d, v%d, v%d, v%d" % (T0, b0, b0 + 1, b0 + 2))
            if nk == 2:
                a("v_max3_u32 v%d, v%d, v%d, v%d" % (T1, b0 + 3, b0 + 4, b0 + 5))
                a("v_max3_u32 v%d, v%d, v%d, v%d" % (T0, T0, b0 + 6, b0 + 7))
                a("v_max_u32 v%d, v%d, v%d" % (T0, T0, T1))
            else:
                a("v_max_u32 v%d, v%d, v%d" % (T0, T0, b0 + 3))
            a("v_cmp_eq_u32 vcc, -1, v%d" % T0)
            a("s_cbranch_vccnz L2_ps%d" % i)
            a("s_bitset0_b32 s%d, %d" % (S_PEND, i))
            for n in range(5 * nk):
                if n % 2 == 0 or n == 5 * nk - 1:
                    a("s_waitcnt lgkmcnt(%d)" % (0 if RT else max(0, 5 * nk - n - 2)))
                c = vr(ACC + 4 * (n % 5), 4)
                a("v_mfma_f32_16x16x32_bf16 %s, %s, %s, %s" % (c, vr(WF + 4 * n, 4), vr(b0 + 4 * (n // 5), 4), c))
            a("L2_ps%d:" % i)
            wl(0)
            a("L2_pn%d:" % i)
        if RT:
            a("s_cmp_lg_u32 s%d, %d" % (S_TMP + 1, SPIN))
            a("s_cbranch_scc1 L2_rt1")
            a("s_memrealtime s[54:55]")
            a("s_memrealtime s[90:91]")
            a("s_bcnt1_i32_b32 s88, s%d" % S_PEND)
            a("L2_rt1:")
        for i in order:
            a("s_bitcmp1_b32 s%d, %d" % (S_PEND, i))
            a("s_cbranch_scc0 L2_pl%d" % i)
            for l in bloads(i):
                a(l)
            a("L2_pl%d:" % i)
    else:
        S_PEND, S_NREQ, S_GO = S_TMP + 2, S_TMP + 3, 37
        a("s_mov_b32 s%d, 63" % S_PEND)
        a("s_mov_b32 s%d, 15" % S_NREQ)
        a("s_mov_b32 s%d, %d" % (S_TMP + 1, SPIN))
        a("s_waitcnt vmcnt(%d)" % (2 if EARLY else 0))
        a("L2_pass:")
        a("s_andn2_b32 s%d, s%d, s%d" % (S_GO, S_PEND, S_NREQ))
        for j in range(2):
            b0 = OF + 32 + 4 * j
            a("s_bitcmp1_b32 s%d, %d" % (S_PEND, 4 + j))
            a("s_cbranch_scc0 L2_q%d" % j)
            a("v_max3_u32 v%d, v%d, v%d, v%d" % (T0, b0, b0 + 1, b0 + 2))
            a("v_max_u32 v%d, v%d, v%d" % (T0, T0, b0 + 3))
            a("v_cmp_eq_u32 vcc, -1, v%d" % T0)
            for m in range(2):
                i = 2 * j + m
                a("s_bitcmp1_b32 s%d, %d" % (S_NREQ, i))
                a("s_cbranch_scc0 L2_r%d" % i)
                a("s_cmp_lg_u32 %s, 0" % ("vcc_lo", "vcc_hi")[m])
                a("s_cbranch_scc1 L2_r%d" % i)
                for l in bloads(i):
                    a(l)
                a("s_bitset0_b32 s%d, %d" % (S_NREQ, i))
                a("L2_r%d:" % i)
            a("s_cbranch_vccz L2_q%d" % j)
            a("s_bitset0_b32 s%d, %d" % (S_GO, 4 + j))
            for l in bloads(4 + j):
                a(l)
            a("L2_q%d:" % j)
        if RT:
            a("s_cmp_lg_u32 s%d, %d" % (S_TMP + 1, SPIN))
            a("s_cbranch_scc1 L2_rt1")
            a("s_memrealtime s[54:55]")
            a("s_bcnt1_i32_b32 s88, s%d" % S_NREQ)
            a("L2_rt1:")
            a("s_cmp_lg_u32 s%d, 0" % S_NREQ)
            a("s_cbranch_scc1 L2_rt2")
            a("s_cmp_lg_u32 s91, 0")
            a("s_cbranch_scc1 L2_rt2")
            a("s_memrealtime s[90:91]")
            a("s_waitcnt lgkmcnt(0)")
            a("s_mov_b32 s91, 1")
            a("L2_rt2:")
        for i in (4, 5, 0, 1, 2, 3):
            nk = 2 if i < 4 else 1
            b0 = OF + 8 * i if i < 4 else OF + 32 + 4 * (i - 4)
            a("s_bitcmp1_b32 s%d, %d" % (S_GO, i))
            a("s_cbranch_scc0 L2_pn%d" % i)
            a("v_add_u32 v2, s%d, v1" % (S_WA + i))
            for n in range(5 * nk):
                a("ds_read_b128 %s, v2 offset:%d" % (vr(WF + 4 * n, 4), 1024 * n))
            if nk == 2:
                a("v_max3_u32 v%d, v%d, v%d, v%d" % (T0, b0, b0 + 1, b0 + 2))
                a("v_max3_u32 v%d, v%d, v%d, v%d" % (T1, b0 + 3, b0 + 4, b0 + 5))
                a("v_max3_u32 v%d, v%d, v%d, v%d" % (T0, T0, b0 + 6, b0 + 7))
                a("v_max_u32 v%d, v%d, v%d" % (T0, T0, T1))
                a("v_cmp_eq_u32 vcc, -1, v%d" % T0)
                a("s_cbranch_vccnz L2_pr%d" % i)
            a("s_bitset0_b32 s%d, %d" % (S_PEND, i))
            for n in range(5 * nk):
                if n % 2 == 0 or n == 5 * nk - 1:
                    a("s_waitcnt lgkmcnt(%d)" % (0 if RT else max(0, 5 * nk - n - 2)))
                c = vr(ACC + 4 * (n % 5), 4)
                a("v_mfma_f32_16x16x32_bf16 %s, %s, %s, %s" % (c, vr(WF + 4 * n, 4), vr(b0 + 4 * (n // 5), 4), c))
            a("L2_pn%d:" % i)
    a("s_cmp_eq_u32 s%d, 0" % S_PEND)
    a("s_cbranch_scc1 L2_fin")
    a("s_waitcnt vmcnt(0)")
    a("s_sub_u32 s%d, s%d, 1" % (S_TMP + 1, S_TMP + 1))
    a("s_cbranch_scc0 L2_pass")
    a("L2_fin:")
    if RT:
        a("s_sub_u32 s92, %d, s%d" % (SPIN, S_TMP + 1))
    a("s_mul_i32 s%d, s%d, 5120" % (S_TMP, S_G))
    a("s_add_u32 s%d, s%d, %d" % (S_TMP, S_TMP, L_GX))
    a("s_mul_i32 s%d, s%d, 7168" % (S_TMP + 3, S_G))
    a("s_add_u32 s%d, s%d, %d" % (S_TMP + 3, S_TMP + 3, L_EX + 3584))
    a("s_lshl_b32 s%d, s%d, 11" % (S_TMP + 1, S_G))
    a("s_add_u32 s%d, s%d, %d" % (S_TMP + 1, S_TMP + 1, L_P2))
    a("s_add_u32 s%d, s%d, 3072" % (S_TMP + 2, S_TMP))
    a("s_cmp_eq_u32 s%d, 0" % S_KS)
    a("s_cselect_b32 s%d, s%d, s%d" % (S_TMP, S_TMP, S_TMP + 3))
    a("s_cselect_b32 s%d, s%d, s%d" % (S_TMP + 1, S_TMP + 2, S_TMP + 1))
    a("v_add_u32 v2, s%d, v1" % S_TMP)
    a("v_add_u32 v3, s%d, v1" % (S_TMP + 1))
    for t in range(5):
        a("ds_write_b128 v%d, %s offset:%d" % (2 if t < 3 else 3, vr(ACC + 4 * t, 4), 1024 * (t % 3)))
    wl(0)
    a("s_barrier")
    if RT:
        a("s_memrealtime s[46:47]")
        a("s_waitcnt lgkmcnt(0)")
        for i, r_ in enumerate((44, 52, 54, 46)):
            a("v_mov_b32 v%d, s%d" % (4 + i, r_))
        a("s_lshl_b32 s50, s2, 4")
        a("s_add_u32 s50, s50, s%d" % S_W)
        a("s_lshl_b32 s50, s50, 5")
        a("s_add_u32 s50, s50, 0x%x" % (WS_DIAG + 0x20000))
        a("v_mov_b32 v8, 0")
        a("buffer_store_dwordx4 v[4:7], v8, %s, s50 offen" % sr(S_Q, 4))
        for i, r_ in enumerate((94, 96, 98, 100) if FUSE else (90, 91, 92, 88)):
            a("v_mov_b32 v%d, s%d" % (12 + i, r_))
        a("buffer_store_dwordx4 v[12:15], v8, %s, s50 offen offset:16" % sr(S_Q, 4))
    a("L2_end:")
    a("s_endpgm")
    for i in range(0 if SPEC else 4):
        a("L2_pr%d:" % i)
        for l in bloads(i):
            a(l)
        wl(0)
        a("s_branch L2_pn%d" % i)
    a("L2_fallback:")
    gka = lambda: a("buffer_load_dwordx4 %s, v%d, %s, 0 offen sc1" % (vr(KA, 4), AKA, sr(S_KV, 4)))
    gkb = lambda: a("buffer_load_dword v%d, v%d, %s, 0 offen offset:1024 sc1" % (KB, AKB, sr(S_KV, 4)))
    def back(regs):
        for x in regs:
            a("v_subrev_u32 v%d, %d, v%d" % (x, NT * 2560, x))
    back([AKA, AKB, AV, AV1])
    for q in range(QBW):
        a("v_mov_b32 v%d, 0" % (QB[q] + 1))
        a("v_mov_b32 v%d, 0xff800000" % M[q])
    a("s_mov_b32 s%d, 0" % S_IT)
    wl(0)
    a("L2_fb1:")
    gka(); gkb()
    a("s_waitcnt vmcnt(0)")
    for q in range(QBW):
        qk1(SS[q], q); qk2(SS[q], q)
    a("v_add_u32 v%d, 2560, v%d" % (AKA, AKA))
    a("v_add_u32 v%d, 2560, v%d" % (AKB, AKB))
    a("s_nop 15")
    for q in range(QBW):
        rowmax(M[q], SS[q], False)
    a("s_add_u32 s%d, s%d, 1" % (S_IT, S_IT))
    a("s_cmp_lt_u32 s%d, %d" % (S_IT, NT))
    a("s_cbranch_scc1 L2_fb1")
    for q in range(QBW):
        xhalf_max(M[q])
        for i in range(16):
            a("v_mov_b32 v%d, 0" % (O[q] + i))
    back([AKA, AKB])
    a("s_mov_b32 s%d, 0" % S_IT)
    a("L2_fb2:")
    gka(); gkb(); mon()
    a("buffer_load_dwordx4 %s, v%d, %s, 0 offen offset:1280 sc1" % (vr(V0, 4), AV, sr(S_KV, 4)))
    a("buffer_load_dwordx4 %s, v%d, %s, 0 offen offset:1280 sc1" % (vr(V1, 4), AV1, sr(S_KV, 4)))
    moff()
    a("s_waitcnt vmcnt(0)")
    for q in range(QBW):
        qk1(SA, q); qk2(SA, q)
        a("s_nop 15")
        for i in range(16):
            a("v_sub_f32 v%d, v%d, v%d" % (SA + i, SA + i, M[q]))
        for i in range(16):
            a("v_exp_f32 v%d, v%d" % (SA + i, SA + i))
        a("s_nop 0")
        for i in range(8):
            a("v_cvt_pk_bf16_f32 v%d, v%d, v%d" % (P0 + i, SA + 2 * i, SA + 2 * i + 1))
        a("s_nop 1")
        pv0(q); pv1(q)
    a("v_add_u32 v%d, 2560, v%d" % (AKA, AKA))
    a("v_add_u32 v%d, 2560, v%d" % (AKB, AKB))
    a("v_add_u32 v%d, 2560, v%d" % (AV, AV))
    a("v_add_u32 v%d, 2560, v%d" % (AV1, AV1))
    a("s_add_u32 s%d, s%d, 1" % (S_IT, S_IT))
    a("s_cmp_lt_u32 s%d, %d" % (S_IT, NT))
    a("s_cbranch_scc1 L2_fb2")
    a("s_mov_b32 s%d, 1" % S_FB)
    a("s_branch L2_epi")

    a("L2_helper:")
    VL = 1
    a("s_load_dwordx4 s[56:59], s[0:1], %d" % KA_WG)
    a("s_load_dwordx2 s[76:77], s[0:1], %d" % KA_WD)
    a("s_load_dwordx2 s[62:63], s[0:1], %d" % KA_X)
    a("s_load_dwordx2 s[60:61], s[0:1], %d" % KA_OUT)
    XS, AF, D, U, H = 4, 84, 104, 108, 112
    TA, TB, TC, TR, TR2, TG = 2, 3, 114, 115, 110, 111
    S_GT, S_UP, S_DN = 64, 68, 72
    a("v_lshlrev_b32 v%d, 4, v%d" % (VL, LANE))
    a("v_and_b32 v%d, 7, v%d" % (TA, LANE))
    a("v_lshlrev_b32 v%d, 2, v%d" % (TA, TA))
    a("s_lshr_b32 s%d, s%d, 1" % (S_TMP + 2, S_W))
    a("s_mul_i32 s%d, s%d, 81920" % (S_TMP + 2, S_TMP + 2))
    a("s_and_b32 s%d, s%d, 1" % (S_TMP + 3, S_W))
    a("s_lshl_b32 s%d, s%d, 12" % (S_TMP + 3, S_TMP + 3))
    a("s_add_u32 s%d, s%d, s%d" % (S_TMP + 2, S_TMP + 2, S_TMP + 3))
    a("s_mov_b32 m0, s%d" % (S_TMP + 2))
    S_SRC, S_LIM = 78, 79
    a("s_bfe_u32 s%d, s2, 0x20005" % S_QB)
    if os.environ.get("K2_KROT", "1") != "1":
        a("s_mov_b32 s%d, 0" % S_QB)
    a("s_mul_i32 s%d, s%d, 20480" % (S_SRC, S_QB))
    a("s_add_u32 s%d, s%d, s%d" % (S_SRC, S_SRC, S_TMP + 2))
    a("s_sub_u32 s%d, s%d, s%d" % (S_LIM, S_TMP + 2, S_TMP + 3))
    a("s_add_u32 s%d, s%d, 81920" % (S_LIM, S_LIM))
    a("s_mov_b32 s%d, 0" % S_IT)
    a("s_waitcnt lgkmcnt(0)")
    a("s_add_u32 s%d, s4, s%d" % (S_KV, S_TMP + 1))
    a("s_addc_u32 s%d, s5, 0" % (S_KV + 1))
    srd(a, S_Q, 4, 5, WS_END)
    def selload():
        a("s_mov_b32 s%d, 0x%x" % (S_TMP, WS_SEL))
        a("buffer_load_dword v%d, v%d, %s, s%d offen%s" % (TA, TA, sr(S_Q, 4), S_TMP, SC))
    def kvwait(lo, hi, tag, pre=False):
        a("s_mov_b32 s37, %d" % SPIN)
        if pre:
            a("s_branch L2_kc%s" % tag)
        a("L2_kw%s:" % tag)
        a("buffer_load_dwordx2 v[6:7], v5, %s, s36 offen sc1" % sr(S_Q, 4))
        a("L2_kc%s:" % tag)
        a("s_sub_u32 s37, s37, 1")
        a("s_cbranch_scc1 L2_kg%s" % tag)
        a("s_waitcnt vmcnt(0)")
        a("v_min_u32 v6, v6, v7")
        a("v_cmp_eq_u32 vcc, 0, v6")
        a("s_and_b32 s38, vcc_lo, %s" % lo)
        a("s_and_b32 s39, vcc_hi, %s" % hi)
        a("s_or_b32 s38, s38, s39")
        a("s_cbranch_scc0 L2_kg%s" % tag)
        a("s_sleep %s" % os.environ.get("K2_PS", "4"))
        a("s_branch L2_kw%s" % tag)
        a("L2_kg%s:" % tag)
    if FUSE:
        a("v_and_b32 v5, 15, v0")
        a("v_bfe_u32 v6, v0, 4, 1")
        a("v_lshl_add_u32 v5, v6, 6, v5")
        a("v_add_u32 v5, 64, v5")
        a("s_lshr_b32 s37, s2, 5")
        a("s_lshl_b32 s37, s37, 1")
        a("v_and_b32 v6, 1, v0")
        a("v_add_u32 v6, s37, v6")
        a("v_cmp_gt_u32 vcc, 32, v0")
        a("s_lshr_b32 s36, s%d, 3" % S_H)
        a("s_lshl_b32 s36, s36, 11")
        a("v_cndmask_b32 v5, v6, v5, vcc")
        a("v_lshlrev_b32 v5, 7, v5")
        a("s_bfe_u32 s37, s%d, 0x10002" % S_H)
        a("s_lshl_b32 s37, s37, 3")
        a("s_add_u32 s36, s36, s37")
        a("s_add_u32 s36, s36, 0x%x" % FLG_G)
    else:
        selload()
    def group():
        for j in range(4):
            a("buffer_load_dwordx4 v%d, %s, s%d offen offset:%d%s lds" % (VL, sr(S_KV, 4), S_SRC, 1024 * j, SC))
        a("s_add_u32 s%d, s%d, 8192" % (S_SRC, S_SRC))
        a("s_cmp_ge_u32 s%d, s%d" % (S_SRC, S_LIM))
        a("s_cselect_b32 s%d, 81920, 0" % (S_TMP + 3))
        a("s_sub_u32 s%d, s%d, s%d" % (S_SRC, S_SRC, S_TMP + 3))
        a("s_add_u32 s%d, s%d, 8192" % (S_TMP + 2, S_TMP + 2))
        a("s_mov_b32 m0, s%d" % (S_TMP + 2))
        a("s_add_u32 s%d, s%d, 1" % (S_IT, S_IT))
    if FUSE:
        a("v_mul_u32_u24 v%d, 3072, v%d" % (TG, LANE))
        a("v_lshrrev_b32 v%d, 4, v%d" % (TC, LANE))
        a("v_bfe_u32 v%d, v%d, 2, 2" % (TB, LANE))
        a("v_lshl_add_u32 v%d, v%d, 3, v%d" % (TR, TC, TB))
        a("v_lshlrev_b32 v%d, 4, v%d" % (TR, TR))
        a("v_bfe_u32 v4, v%d, 1, 1" % LANE)
        a("v_lshl_add_u32 v%d, v4, 3, v%d" % (TR, TR))
        a("v_and_b32 v4, 1, v%d" % LANE)
        a("v_mul_u32_u24 v4, 81920, v4")
        a("v_add_u32 v%d, v%d, v4" % (TR, TR))
        a("v_lshrrev_b32 v4, 5, v%d" % LANE)
        a("v_lshl_add_u32 v%d, v4, 2, v%d" % (TR2, TB))
        a("v_mul_u32_u24 v%d, 1280, v%d" % (TR2, TR2))
        a("v_mul_u32_u24 v%d, 10240, v4" % TB)
        a("v_and_b32 v4, 31, v%d" % LANE)
        a("v_lshl_add_u32 v%d, v4, 2, v%d" % (TB, TB))
        a("v_and_b32 v4, 16, v%d" % LANE)
        a("v_lshl_add_u32 v%d, v4, 1, v%d" % (TR2, TR2))
        a("v_and_b32 v4, 3, v%d" % LANE)
        a("v_lshl_add_u32 v%d, v4, 3, v%d" % (TR2, TR2))
        a("s_barrier")
        a("s_cmp_lg_u32 s%d, 0" % S_W)
        a("s_cbranch_scc1 L2_kga")
        assert K2_K0 == 2
        a("s_lshl_b32 s%d, s%d, 1" % (S_TMP, S_QB))
        a("s_lshl_b32 s%d, 0x03030303, s%d" % (S_TMP, S_TMP))
        kvwait("s%d" % S_TMP, "3", "a")
        a("s_barrier")
    for _ in range(K2_K0):
        group()
    if FUSE:
        a("buffer_load_dwordx2 v[6:7], v5, %s, s36 offen sc1" % sr(S_Q, 4))
    if not FUSE:
        a("v_mul_u32_u24 v%d, 3072, v%d" % (TG, LANE))
        a("v_lshrrev_b32 v%d, 4, v%d" % (TC, LANE))
        a("v_bfe_u32 v%d, v%d, 2, 2" % (TB, LANE))
        a("v_lshl_add_u32 v%d, v%d, 3, v%d" % (TR, TC, TB))
        a("v_lshlrev_b32 v%d, 4, v%d" % (TR, TR))
        a("v_bfe_u32 v4, v%d, 1, 1" % LANE)
        a("v_lshl_add_u32 v%d, v4, 3, v%d" % (TR, TR))
        a("v_and_b32 v4, 1, v%d" % LANE)
        a("v_mul_u32_u24 v4, 81920, v4")
        a("v_add_u32 v%d, v%d, v4" % (TR, TR))
        a("v_lshrrev_b32 v4, 5, v%d" % LANE)
        a("v_lshl_add_u32 v%d, v4, 2, v%d" % (TR2, TB))
        a("v_mul_u32_u24 v%d, 1280, v%d" % (TR2, TR2))
        a("v_mul_u32_u24 v%d, 10240, v4" % TB)
        a("v_and_b32 v4, 31, v%d" % LANE)
        a("v_lshl_add_u32 v%d, v4, 2, v%d" % (TB, TB))
        a("v_and_b32 v4, 16, v%d" % LANE)
        a("v_lshl_add_u32 v%d, v4, 1, v%d" % (TR2, TR2))
        a("v_and_b32 v4, 3, v%d" % LANE)
        a("v_lshl_add_u32 v%d, v4, 3, v%d" % (TR2, TR2))
    a("s_waitcnt vmcnt(%d)" % (1 if FUSE else 4 * (K2_K0 - 2)))
    def seladdr():
        a("v_mul_u32_u24 v%d, 1280, v%d" % (TA, TA))
        a("v_lshl_add_u32 v%d, v%d, 4, v%d" % (TA, TC, TA))
    if not FUSE:
        seladdr()
    a("s_barrier")
    if FUSE:
        a("s_lshr_b32 s%d, s%d, 1" % (S_TMP, S_W))
        a("s_lshl_b32 s%d, s%d, 3" % (S_TMP, S_TMP))
        a("s_lshl_b32 s%d, 0x00ff00ff, s%d" % (S_TMP, S_TMP))
        kvwait("s%d" % S_TMP, "0", "b", pre=True)
    a("L2_hld:")
    group()
    a("s_cmp_lt_u32 s%d, 10" % S_IT)
    a("s_cbranch_scc1 L2_hld")
    a("s_lshr_b32 s%d, s2, 3" % S_G)
    a("s_and_b32 s%d, s2, 7" % S_KS)
    a("s_mul_i32 s%d, s%d, 24" % (S_FB, S_KS))
    a("s_add_u32 s%d, s%d, s%d" % (S_FB, S_FB, S_G))
    srd(a, S_GT, 56, 57, 1966080)
    srd(a, S_UP, 58, 59, 1966080)
    srd(a, S_DN, 76, 77, 1966080)
    if DIAG:
        a("s_memtime s[52:53]")
    a("s_waitcnt vmcnt(0)")
    if DIAG:
        a("s_memtime s[44:45]")
    a("s_barrier")
    if FUSE:
        a("v_lshlrev_b32 v5, 7, v0")
        a("v_mov_b32 v4, 0")
        a("s_mov_b32 s36, 0x%x" % FLG_S)
        a("s_mov_b32 s38, 0x%x" % WS_SEL)
        a("s_mov_b32 s37, %d" % SPIN)
        a("L2_sw:")
        a("buffer_load_dword v6, v5, %s, s36 offen sc1" % sr(S_Q, 4))
        a("buffer_load_dword v7, v4, %s, s38 offen offset:64 sc1" % sr(S_Q, 4))
        a("s_sub_u32 s37, s37, 1")
        a("s_cbranch_scc1 L2_sg")
        a("s_waitcnt vmcnt(0)")
        a("v_min_u32 v6, v6, v7")
        a("v_cmp_eq_u32 vcc, 0, v6")
        a("s_cbranch_vccz L2_sg")
        a("s_sleep 8")
        a("s_branch L2_sw")
        a("L2_sg:")
    a("s_setprio %s" % os.environ.get("K2_HPRIO", "3"))
    a("s_and_b32 s%d, s%d, 3" % (S_TMP, S_G))
    a("s_cmp_lg_u32 s%d, s%d" % (S_TMP, S_W))
    a("s_cbranch_scc1 L2_hwarm")
    a("s_cmp_ge_u32 s2, %s" % os.environ.get("K2_MOE", "192"))
    a("s_cbranch_scc1 L2_hend")
    if FUSE:
        selload()
    a("s_lshl_b32 s%d, s%d, 4" % (S_TMP + 1, S_FB))
    a("s_and_b32 s%d, s%d, 7" % (S_TMP + 2, S_G))
    a("s_mov_b32 s%d, 10" % S_IT)
    a("L2_hgu:")
    a("s_mul_i32 s%d, s%d, %d" % (S_TMP + 3, S_TMP + 2, 64 * 3072))
    a("s_add_u32 s%d, s%d, s%d" % (S_TMP + 3, S_TMP + 3, S_TMP + 1))
    a("s_lshl_b32 s%d, s%d, 10" % (S_TMP + 4, S_TMP + 2))
    a("s_mov_b32 m0, s%d" % (S_TMP + 4))
    a("s_add_u32 s%d, s%d, 81920" % (S_TMP + 4, S_TMP + 4))
    a("buffer_load_dwordx4 v%d, %s, s%d offen lds" % (TG, sr(S_GT, 4), S_TMP + 3))
    a("s_mov_b32 m0, s%d" % (S_TMP + 4))
    a("s_add_u32 s%d, s%d, 1" % (S_TMP + 2, S_TMP + 2))
    a("buffer_load_dwordx4 v%d, %s, s%d offen lds" % (TG, sr(S_UP, 4), S_TMP + 3))
    a("s_cmp_eq_u32 s%d, 10" % (S_TMP + 2))
    a("s_cselect_b32 s%d, 0, s%d" % (S_TMP + 2, S_TMP + 2))
    a("s_sub_u32 s%d, s%d, 1" % (S_IT, S_IT))
    a("s_cmp_lg_u32 s%d, 0" % S_IT)
    a("s_cbranch_scc1 L2_hgu")
    if FUSE:
        a("s_waitcnt vmcnt(20)")
        seladdr()
    a("s_mov_b32 s%d, 0x%x" % (S_TMP, WS_XN))
    for j in range(20):
        a("buffer_load_dwordx4 %s, v%d, %s, s%d offen offset:%d" % (vr(XS + 4 * j, 4), TA, sr(S_Q, 4), S_TMP, 64 * j))
    a("s_waitcnt vmcnt(0)")
    for j in range(20):
        for h in range(2):
            a("ds_read_b64_tr_b16 %s, v%d offset:%d" % (vr(AF + 4 * (j & 1) + 2 * h, 2), TR, 512 * j + 64 * h))
        wl(0)
        a("v_mfma_f32_16x16x32_bf16 %s, %s, %s, %s" % (vr(D, 4), vr(AF + 4 * (j & 1), 4), vr(XS + 4 * j, 4), "0" if j == 0 else vr(D, 4)))
    a("s_mul_i32 s%d, s%d, 10240" % (S_TMP + 3, S_FB))
    for j in range(10):
        if j % 4 == 0:
            a("s_mov_b32 m0, %d" % (1024 * j))
            if j:
                a("s_add_u32 s%d, s%d, 4096" % (S_TMP + 3, S_TMP + 3))
            else:
                a("s_nop 0")
        a("buffer_load_dwordx4 v%d, %s, s%d offen offset:%d lds" % (VL, sr(S_DN, 4), S_TMP + 3, 1024 * (j % 4)))
    a("v_cvt_pk_bf16_f32 v%d, v%d, v%d" % (H, D, D + 1))
    a("v_cvt_pk_bf16_f32 v%d, v%d, v%d" % (H + 1, D + 2, D + 3))
    a("v_mov_b32 v%d, v%d" % (U, H))
    a("v_mov_b32 v%d, v%d" % (U + 1, H + 1))
    a("s_nop 0")
    a("v_permlane16_swap_b32 v%d, v%d" % (H, U))
    a("v_permlane16_swap_b32 v%d, v%d" % (H + 1, U + 1))
    E = XS
    for e in range(2):
        a("v_lshlrev_b32 v%d, 16, v%d" % (D + 2 * e, H + e))
        a("v_and_b32 v%d, 0xffff0000, v%d" % (D + 2 * e + 1, H + e))
    for e in range(4):
        a("v_mul_f32 v%d, 0xbfb8aa3b, v%d" % (E + e, D + e))
    for e in range(4):
        a("v_exp_f32 v%d, v%d" % (E + e, E + e))
    for e in range(4):
        a("v_add_f32 v%d, 1.0, v%d" % (E + e, E + e))
    for e in range(4):
        a("v_rcp_f32 v%d, v%d" % (E + e, E + e))
    for e in range(4):
        a("v_mul_f32 v%d, v%d, v%d" % (D + e, D + e, E + e))
    a("v_cvt_pk_bf16_f32 v%d, v%d, v%d" % (H, D, D + 1))
    a("v_cvt_pk_bf16_f32 v%d, v%d, v%d" % (H + 1, D + 2, D + 3))
    for e in range(2):
        a("v_lshlrev_b32 v%d, 16, v%d" % (D + 2 * e, H + e))
        a("v_and_b32 v%d, 0xffff0000, v%d" % (D + 2 * e + 1, H + e))
        a("v_lshlrev_b32 v%d, 16, v%d" % (E + 2 * e, U + e))
        a("v_and_b32 v%d, 0xffff0000, v%d" % (E + 2 * e + 1, U + e))
    for e in range(4):
        a("v_mul_f32 v%d, v%d, v%d" % (D + e, D + e, E + e))
    a("v_cvt_pk_bf16_f32 v%d, v%d, v%d" % (H, D, D + 1))
    a("v_cvt_pk_bf16_f32 v%d, v%d, v%d" % (H + 1, D + 2, D + 3))
    a("s_mul_i32 s%d, s%d, 20480" % (S_IT, S_KS))
    for e in range(4):
        a("s_add_u32 s%d, s%d, 0x%x" % (S_TMP + e, S_IT, WS_UPD + 2560 * e))
    a("s_waitcnt vmcnt(0)")
    Y = 4
    for j in range(22):
        if j < 20:
            a("ds_read_b64_tr_b16 %s, v%d offset:%d" % (vr(AF + 2 * (j & 1), 2), TR2, 64 * j))
            wl(0)
            a("v_mfma_f32_32x32x8_bf16 %s, %s, %s, 0" % (vr(Y + 16 * (j % 3), 16), vr(H, 2), vr(AF + 2 * (j & 1), 2)))
        else:
            a("s_nop 3")
        if j == 1:
            a("s_nop 7")
        if j >= 2:
            a("s_nop 1")
            for e in range(4):
                a("buffer_atomic_add_f32 v%d, v%d, %s, s%d offen offset:%d" % (Y + 16 * ((j - 2) % 3) + e, TB, sr(S_Q, 4), S_TMP + e, 128 * (j - 2)))
    a("s_lshl_b32 s%d, s2, 7" % S_TMP)
    a("s_add_u32 s%d, s%d, 0x%x" % (S_TMP, S_TMP, WS_FLG + 32768))
    a("v_mov_b32 v2, 0")
    a("v_mov_b32 v3, 1")
    a("s_waitcnt vmcnt(0)")
    a("s_mov_b64 exec, 1")
    a("buffer_store_dword v3, v2, %s, s%d offen sc1" % (sr(S_Q, 4), S_TMP))
    a("s_mov_b64 exec, -1")
    a("s_branch L2_hend")
    a("L2_hwarm:")
    a("s_sub_u32 s%d, s%d, s%d" % (S_FB, S_W, S_TMP))
    a("s_sub_u32 s%d, s%d, 1" % (S_FB, S_FB))
    a("s_and_b32 s%d, s%d, 3" % (S_FB, S_FB))
    a("s_cmp_lg_u32 s%d, 1" % S_FB)
    a("s_cbranch_scc1 L2_hnofill")
    for i in range(4):
        a("v_mov_b32 v%d, -1" % (4 + i))
    a("v_lshrrev_b32 v2, 5, v0")
    a("v_lshlrev_b32 v2, 14, v2")
    a("v_and_b32 v3, 31, v0")
    a("v_lshl_add_u32 v2, v3, 4, v2")
    a("v_lshrrev_b32 v3, 4, v0")
    a("v_lshlrev_b32 v3, 13, v3")
    a("v_and_b32 v8, 15, v0")
    a("v_lshl_add_u32 v3, v8, 4, v3")
    a("s_lshr_b32 s%d, s2, 5" % S_TMP)
    a("s_lshl_b32 s%d, s%d, 18" % (S_TMP + 1, S_TMP))
    a("s_lshl_b32 s%d, s%d, 9" % (S_TMP + 2, S_H))
    a("s_add_u32 s%d, s%d, s%d" % (S_TMP + 1, S_TMP + 1, S_TMP + 2))
    a("s_add_u32 s%d, s%d, 0x%x" % (S_TMP + 1, S_TMP + 1, WS_O))
    for j in range(8):
        a("buffer_store_dwordx4 v[4:7], v2, %s, s%d offen sc1" % (sr(S_Q, 4), S_TMP + 1))
        if j < 7:
            a("s_add_u32 s%d, s%d, 32768" % (S_TMP + 1, S_TMP + 1))
    a("s_lshl_b32 s%d, s%d, 16" % (S_TMP + 1, S_TMP))
    a("s_lshl_b32 s%d, s%d, 8" % (S_TMP + 2, S_H))
    a("s_add_u32 s%d, s%d, s%d" % (S_TMP + 1, S_TMP + 1, S_TMP + 2))
    a("s_add_u32 s%d, s%d, 0x%x" % (S_TMP + 1, S_TMP + 1, WS_OB))
    a("s_add_u32 s%d, s%d, 32768" % (S_TMP + 2, S_TMP + 1))
    a("buffer_store_dwordx4 v[4:7], v3, %s, s%d offen sc1" % (sr(S_Q, 4), S_TMP + 1))
    a("buffer_store_dwordx4 v[4:7], v3, %s, s%d offen sc1" % (sr(S_Q, 4), S_TMP + 2))
    a("s_lshl_b32 s%d, s2, 7" % S_TMP)
    a("s_add_u32 s%d, s%d, 0x%x" % (S_TMP, S_TMP, WS_FLG))
    a("v_mov_b32 v2, 0")
    a("s_waitcnt vmcnt(0)")
    a("s_mov_b64 exec, 1")
    a("buffer_store_dword v4, v2, %s, s%d offen sc1" % (sr(S_Q, 4), S_TMP))
    a("s_mov_b64 exec, -1")
    a("L2_hnofill:")
    tile_ids()
    a("s_add_u32 s36, s4, 0x%x" % WS_SEL)
    a("s_addc_u32 s37, s5, 0")
    a("s_load_dwordx8 s[64:71], s[36:37], 0")
    a("s_mul_i32 s38, s%d, 102400" % S_CB)
    a("s_add_u32 s38, s38, 0x%x" % WS_WOT)
    a("v_lshlrev_b32 v2, 7, v0")
    a("s_lshr_b32 s%d, s2, 6" % S_TMP)
    a("s_mul_i32 s%d, s%d, 25600" % (S_TMP, S_TMP))
    a("s_mul_i32 s%d, s%d, 12800" % (S_TMP + 1, S_FB))
    a("s_add_u32 s%d, s%d, s%d" % (S_TMP, S_TMP, S_TMP + 1))
    a("s_add_u32 s%d, s%d, s38" % (S_TMP, S_TMP))
    a("s_add_u32 s%d, s%d, 4608" % (S_TMP + 1, S_TMP))
    a("s_cmp_eq_u32 s%d, 2" % S_FB)
    a("s_cbranch_scc1 L2_hx")
    a("buffer_load_dword v4, v2, %s, s%d offen" % (sr(S_Q, 4), S_TMP))
    a("buffer_load_dword v4, v2, %s, s%d offen" % (sr(S_Q, 4), S_TMP + 1))
    a("s_branch L2_hx1")
    a("L2_hx:")
    a("v_and_b32 v2, 31, v0")
    a("v_lshlrev_b32 v2, 7, v2")
    a("s_lshr_b32 s%d, s%d, 2" % (S_TMP, S_RB))
    a("s_lshl_b32 s%d, s%d, 12" % (S_TMP, S_TMP))
    a("s_add_u32 s%d, s%d, 0x%x" % (S_TMP, S_TMP, WS_FLG))
    a("s_mov_b32 s%d, %d" % (S_TMP + 1, SPIN))
    a("L2_hp2:")
    a("s_sleep 32")
    a("buffer_load_dword v4, v2, %s, s%d offen sc1" % (sr(S_Q, 4), S_TMP))
    a("s_sub_u32 s%d, s%d, 1" % (S_TMP + 1, S_TMP + 1))
    a("s_cbranch_scc1 L2_hp2d")
    a("s_waitcnt vmcnt(0)")
    a("v_cmp_eq_u32 vcc, 0, v4")
    a("s_cbranch_vccnz L2_hp2")
    a("L2_hp2d:")
    a("L2_hx1:")
    a("v_and_b32 v2, 3, v0")
    a("v_lshlrev_b32 v2, 2, v2")
    a("s_mov_b32 s%d, 0" % S_G)
    a("L2_hph:")
    a("s_lshl_b32 s%d, s%d, 3" % (S_TMP + 1, S_G))
    a("s_lshr_b32 s%d, 0x%x, s%d" % (S_TMP, 0 | 50 << 8 | 30 << 16 | 81 << 24, S_TMP + 1))
    a("s_and_b32 s%d, s%d, 255" % (S_TMP, S_TMP))
    a("s_lshr_b32 s%d, 0x%x, s%d" % (S_KS, 30 | 81 << 8 | 50 << 16 | 100 << 24, S_TMP + 1))
    a("s_and_b32 s%d, s%d, 255" % (S_KS, S_KS))
    a("s_add_u32 s%d, s%d, s%d" % (S_TMP, S_TMP, S_FB))
    a("s_mov_b32 s%d, %d" % (S_TMP + 1, SPIN))
    a("L2_hwait:")
    a("ds_read_b32 v3, v2 offset:%d" % L_MARK)
    a("s_sub_u32 s%d, s%d, 1" % (S_TMP + 1, S_TMP + 1))
    a("s_cbranch_scc1 L2_hw")
    wl(0)
    a("v_cmp_ne_u32 vcc, 0x%x, v3" % MARK)
    a("s_cbranch_vccz L2_hw")
    a("s_sleep 8")
    a("s_branch L2_hwait")
    a("L2_hw:")
    a("s_lshl_b32 s%d, s%d, 10" % (S_TMP + 1, S_TMP))
    a("s_add_u32 s%d, s%d, s38" % (S_TMP + 1, S_TMP + 1))
    a("s_cmp_ge_u32 s%d, 50" % S_TMP)
    a("s_cselect_b32 s%d, %d, 0" % (S_TMP + 2, L_W1 - 51200 - L_W0))
    a("s_lshl_b32 s%d, s%d, 10" % (S_TMP + 3, S_TMP))
    a("s_add_u32 s%d, s%d, s%d" % (S_TMP + 2, S_TMP + 2, S_TMP + 3))
    a("s_add_u32 m0, s%d, %d" % (S_TMP + 2, L_W0))
    a("s_add_u32 s%d, s%d, 3" % (S_TMP, S_TMP))
    a("buffer_load_dwordx4 v%d, %s, s%d offen lds" % (VL, sr(S_Q, 4), S_TMP + 1))
    a("s_cmp_lt_u32 s%d, s%d" % (S_TMP, S_KS))
    a("s_cbranch_scc1 L2_hw")
    a("v_add_u32 v2, 16, v2")
    a("s_add_u32 s%d, s%d, 1" % (S_G, S_G))
    a("s_cmp_lt_u32 s%d, 4" % S_G)
    a("s_cbranch_scc1 L2_hph")
    a("s_cmp_lg_u32 s%d, 0" % S_FB)
    a("s_cbranch_scc1 L2_hdone")
    a("s_mov_b32 s%d, 0" % S_TMP)
    for sl in range(8):
        a("s_lshr_b32 s%d, s%d, 6" % (S_TMP + 1, 64 + sl))
        a("s_cmp_eq_u32 s%d, s%d" % (S_TMP + 1, S_RB))
        a("s_cselect_b32 s%d, 1, s%d" % (S_TMP, S_TMP))
    a("s_cmp_eq_u32 s%d, 0" % S_TMP)
    a("s_cbranch_scc1 L2_hdone")
    a("v_lshlrev_b32 v2, 7, v0")
    for j in range(3):
        a("s_mov_b32 s%d, 0x%x" % (S_TMP + 2 + j, WS_FLG + 32768 + 8192 * j))
    a("s_mov_b32 s%d, %d" % (S_TMP + 1, SPIN))
    a("L2_hpoll:")
    for j in range(3):
        a("buffer_load_dword v%d, v2, %s, s%d offen sc1" % (4 + j, sr(S_Q, 4), S_TMP + 2 + j))
    a("s_sub_u32 s%d, s%d, 1" % (S_TMP + 1, S_TMP + 1))
    a("s_cbranch_scc1 L2_hpolled")
    a("s_waitcnt vmcnt(0)")
    a("v_min3_u32 v4, v4, v5, v6")
    a("v_cmp_eq_u32 vcc, 0, v4")
    a("s_cbranch_vccz L2_hpolled")
    a("s_sleep 8")
    a("s_branch L2_hpoll")
    a("L2_hpolled:")
    a("v_lshrrev_b32 v2, 3, v0")
    a("v_and_b32 v3, 7, v0")
    a("v_lshlrev_b32 v3, 4, v3")
    a("v_mul_u32_u24 v100, 2560, v2")
    a("v_add_u32 v100, v100, v3")
    a("v_mul_u32_u24 v101, 320, v2")
    a("v_add_u32 v101, v101, v3")
    a("s_mul_i32 s%d, s%d, 320" % (S_TMP, S_CB))
    a("s_add_u32 s%d, s%d, 0x%x" % (S_TMP, S_TMP, WS_UPD))
    for rp in range(8):
        for j in range(3):
            a("buffer_load_dwordx4 %s, v100, %s, s%d offen offset:%d sc1" % (vr(4 + 12 * rp + 4 * j, 4), sr(S_Q, 4), S_TMP, 128 * j))
        if rp < 7:
            a("s_add_u32 s%d, s%d, 20480" % (S_TMP, S_TMP))
    a("v_cmp_gt_u32 vcc, 64, v3")
    a("s_waitcnt vmcnt(0)")
    for rp in range(1, 8):
        for j in range(6):
            a("v_pk_add_f32 %s, %s, %s" % (vr(4 + 2 * j, 2), vr(4 + 2 * j, 2), vr(4 + 12 * rp + 2 * j, 2)))
    a("ds_write_b128 v101, v[4:7] offset:%d" % L_Y)
    a("ds_write_b128 v101, v[8:11] offset:%d" % (L_Y + 128))
    a("s_mov_b64 exec, vcc")
    a("ds_write_b128 v101, v[12:15] offset:%d" % (L_Y + 256))
    a("s_mov_b64 exec, -1")
    a("L2_hdone:")
    a("s_waitcnt vmcnt(0) lgkmcnt(0)")
    a("L2_hend:")
    diag(4, 8)
    tile_ids()
    X, G, R, U, XF, MRS, ROW, CO, SG, VX, P1_, P2_ = 4, 14, 24, 44, 64, 84, 86, 87, 88, 89, 90, 91
    S_X, S_OUT = 8, 56
    a("s_add_u32 s36, s4, 0x%x" % WS_SEL)
    a("s_addc_u32 s37, s5, 0")
    srd(a, S_X, 62, 63, 2621440)
    srd(a, S_OUT, 60, 61, 2621440)
    a("s_load_dwordx16 s[64:79], s[36:37], 0")
    a("s_lshl_b32 s%d, s%d, 2" % (S_TT, S_RB))
    a("s_add_u32 s%d, s%d, s%d" % (S_TT, S_TT, S_W))
    a("v_and_b32 v%d, 15, v0" % ROW)
    a("v_lshrrev_b32 v%d, 4, v0" % CO)
    a("s_lshl_b32 s%d, s%d, 4" % (S_TMP, S_TT))
    a("v_add_u32 v%d, s%d, v%d" % (ROW, S_TMP, ROW))
    a("v_mul_u32_u24 v%d, 1280, v%d" % (VX, ROW))
    a("v_mul_u32_u24 v%d, 40, v%d" % (CO, CO))
    a("s_mul_i32 s%d, s%d, 160" % (S_TMP, S_CB))
    a("v_add3_u32 v%d, v%d, v%d, s%d" % (VX, VX, CO, S_TMP))
    a("v_lshlrev_b32 v2, 2, v%d" % ROW)
    a("s_mov_b32 s%d, 0x%x" % (S_TMP, WS_STAT))
    a("s_mov_b32 s%d, 0x%x" % (S_TMP + 1, WS_STAT + 8192))
    a("buffer_load_dwordx4 %s, v%d, %s, 0 offen" % (vr(X, 4), VX, sr(S_X, 4)))
    a("buffer_load_dwordx4 %s, v%d, %s, 0 offen offset:16" % (vr(X + 4, 4), VX, sr(S_X, 4)))
    a("buffer_load_dwordx2 %s, v%d, %s, 0 offen offset:32" % (vr(X + 8, 2), VX, sr(S_X, 4)))
    a("buffer_load_dword v%d, v2, %s, s%d offen sc1" % (MRS, sr(S_Q, 4), S_TMP))
    a("buffer_load_dword v%d, v2, %s, s%d offen sc1" % (MRS + 1, sr(S_Q, 4), S_TMP + 1))
    a("s_setprio 0")
    a("s_waitcnt lgkmcnt(0)")
    a("s_barrier")
    a("s_barrier")
    a("s_barrier")
    for i in range(20):
        a("v_mov_b32 v%d, 0" % (U + i))
    a("s_mov_b64 s[38:39], 0")
    for sl in range(8):
        a("v_cmp_eq_u32 vcc, s%d, v%d" % (64 + sl, ROW))
        a("v_mov_b32 v%d, %d" % (R, L_Y + 320 * sl))
        a("v_mov_b32 v%d, s%d" % (R + 1, 72 + sl))
        a("s_or_b64 s[38:39], s[38:39], vcc")
        a("v_cndmask_b32 v2, v2, v%d, vcc" % R)
        a("v_cndmask_b32 v%d, v%d, v%d, vcc" % (SG, SG, R + 1))
    a("s_cbranch_scc0 L2_noupd")
    a("v_lshl_add_u32 v2, v%d, 1, v2" % CO)
    a("s_mov_b64 exec, s[38:39]")
    for c in range(5):
        a("ds_read_b128 %s, v2 offset:%d" % (vr(U + 4 * c, 4), 16 * c))
    wl(0)
    for i in range(20):
        bf16_round(a, U + i, U + i)
    for i in range(20):
        a("v_mul_f32 v%d, v%d, v%d" % (U + i, U + i, SG))
    for i in range(20):
        bf16_round(a, U + i, U + i)
    a("s_mov_b64 exec, -1")
    a("L2_noupd:")
    a("s_waitcnt vmcnt(0)")
    def unpack(dst, src):
        for i in range(10):
            a("v_lshlrev_b32 v%d, 16, v%d" % (dst + 2 * i, src + i))
            a("v_and_b32 v%d, 0xffff0000, v%d" % (dst + 2 * i + 1, src + i))
    def pack(dst, src):
        for i in range(10):
            a("v_cvt_pk_bf16_f32 v%d, v%d, v%d" % (dst + i, src + 2 * i, src + 2 * i + 1))
    unpack(XF, X)
    for i in range(20):
        a("v_sub_f32 v%d, v%d, v%d" % (R + i, XF + i, MRS))
    pack(G, R)
    unpack(R, G)
    for i in range(20):
        a("v_mul_f32 v%d, v%d, v%d" % (R + i, R + i, MRS + 1))
    pack(G, R)
    unpack(R, G)
    for i in range(20):
        a("v_add_f32 v%d, v%d, v%d" % (U + i, U + i, R + i))
    for i in range(20):
        a("v_mul_f32 v%d, 0xbfb8aa3b, v%d" % (R + i, U + i))
    for i in range(20):
        a("v_exp_f32 v%d, v%d" % (R + i, R + i))
    for i in range(20):
        a("v_add_f32 v%d, 1.0, v%d" % (R + i, R + i))
    for i in range(20):
        a("v_rcp_f32 v%d, v%d" % (R + i, R + i))
    for i in range(20):
        a("v_mul_f32 v%d, v%d, v%d" % (U + i, U + i, R + i))
    a("s_mul_i32 s%d, s%d, 5120" % (S_TMP, S_W))
    a("s_add_u32 s%d, s%d, %d" % (S_TMP, S_TMP, L_GX))
    a("v_add_u32 v%d, s%d, v1" % (P1_, S_TMP))
    a("s_mul_i32 s%d, s%d, 7168" % (S_TMP, S_W))
    a("s_add_u32 s%d, s%d, %d" % (S_TMP, S_TMP, L_EX + 3584))
    a("v_add_u32 v%d, s%d, v1" % (P2_, S_TMP))
    a("s_lshl_b32 s%d, s%d, 11" % (S_TMP, S_W))
    a("s_add_u32 s%d, s%d, %d" % (S_TMP, S_TMP, L_P2))
    a("v_add_u32 v3, s%d, v1" % S_TMP)
    a("s_barrier")
    S0, S1 = 24, 104
    for t in range(5):
        a("ds_read_b128 %s, v%d offset:%d" % (vr(S0 + 4 * t, 4), P1_, 1024 * t))
        a("ds_read_b128 %s, v%d offset:%d" % (vr(S1 + 4 * t, 4), P2_ if t < 3 else 3, 1024 * (t % 3)))
    for i in range(20):
        if i % 4 == 0:
            wl(8 - i // 2)
        a("v_add_f32 v%d, v%d, v%d" % (S0 + i, S0 + i, S1 + i))
        a("v_fmac_f32 v%d, v%d, v%d" % (XF + i, S0 + i, U + i))
        if i & 1:
            a("v_cvt_pk_bf16_f32 v%d, v%d, v%d" % (X + i // 2, XF + i - 1, XF + i))
        if i == 7:
            a("buffer_store_dwordx4 %s, v%d, %s, 0 offen" % (vr(X, 4), VX, sr(S_OUT, 4)))
        if i == 15:
            a("buffer_store_dwordx4 %s, v%d, %s, 0 offen offset:16" % (vr(X + 4, 4), VX, sr(S_OUT, 4)))
    a("buffer_store_dwordx2 %s, v%d, %s, 0 offen offset:32" % (vr(X + 8, 2), VX, sr(S_OUT, 4)))
    a("s_endpgm")
    a("L2_code_end:")
    return kernel_desc(name, 168, 102 if RT else 80)
```

```python
import sys
from common import *
from k2 import gen_k2, K2_NW

HEADER = open("cdna_kernels/%s.s.ref" % NAME).read().split("; Override launch")[0]

def build(which):
    a = Asm()
    launches = []
    descs = []
    if which == "F":
        from k1 import gen_k1
        import os
        kn = NAME + "_kernel"
        launches.append("; @launch %sgrid=(256,1,1) block=(768,1,1) lds=163840" % ("kernel=%s " % kn if os.environ.get("LIST") else ""))
        gen_k1(a, kn)
        if os.environ.get("RT"):
            i = a.lines.index(kn + ":")
            a.lines.insert(i + 1, "    s_memrealtime s[100:101]")
        descs.append(gen_k2(a, kn))
    if "1" in which:
        from k1 import gen_k1, K1_LDS
        launches.append("; @launch kernel=qkv_kernel grid=(256,1,1) block=(512,1,1) lds=%d" % K1_LDS)
        descs.append(gen_k1(a))
    if "2" in which:
        launches.append("; @launch kernel=attn_kernel grid=(256,1,1) block=(%d,1,1) lds=163840" % (64 * K2_NW))
        descs.append(gen_k2(a))
    if "3" in which:
        from k3 import gen_k3, K3_LDS, K3_NW
        launches.append("; @launch kernel=oproj_kernel grid=(256,1,1) block=(%d,1,1) lds=%d" % (64 * K3_NW, K3_LDS))
        descs.append(gen_k3(a))
    a("L_code_end:")
    a("s_endpgm")
    out = HEADER + "\n".join(launches) + "\n" + '.amdgcn_target "amdgcn-amd-amdhsa--gfx950"\n' + a.text() + "".join(descs)
    import os, re
    if os.environ.get("TL"):
        lines = []
        kidx = -1
        for l in out.split("\n"):
            m = re.match(r"(\w+_kernel):$", l)
            if m:
                kidx += 1
                lines.append(l)
                lines.append("    s_memrealtime s[96:97]")
                lines.append("    s_load_dwordx2 s[92:93], s[0:1], 80")
                lines.append("    v_readfirstlane_b32 s98, v0")
                lines.append("    s_mov_b32 s99, s2")
                continue
            if l.strip() == "s_endpgm" and kidx >= 0:
                lines += ["    s_branch LTL_%d" % kidx]
                continue
            lines.append(l)
        i = max(j for j, l in enumerate(lines) if l.startswith("L_code_end:"))
        tail = []
        for k in range(3):
            tail += ["LTL_%d:" % k, "    s_memrealtime s[90:91]", "    s_waitcnt vmcnt(0) lgkmcnt(0)", "    s_memrealtime s[100:101]", "    s_waitcnt lgkmcnt(0)",
                     "    s_mov_b32 s94, 0x%x" % WS_END, "    s_mov_b32 s95, 0x20000", "    s_mov_b64 exec, 1",
                     "    s_lshr_b32 s98, s98, 6", "    s_lshl_b32 s99, s99, 4", "    s_add_u32 s99, s99, s98", "    s_lshl_b32 s99, s99, 4",
                     "    s_add_u32 s99, s99, 0x%x" % (WS_DIAG + 0x80000 + k * 0x20000),
                     "    v_mov_b32 v0, s96", "    v_mov_b32 v1, s90", "    v_mov_b32 v2, s100", "    v_mov_b32 v3, 0",
                     "    buffer_store_dwordx4 v[0:3], v3, s[92:95], s99 offen", "    s_endpgm"]
        lines[i + 1:i + 2] = ["    s_endpgm"] + tail
        out = "\n".join(lines)
        out = re.sub(r"amdhsa_next_free_sgpr \d+", "amdhsa_next_free_sgpr 102", out)
    if os.environ.get("TL") == "2":
        body = """
.globl rep_kernel
.p2align 8
.type rep_kernel,@function
rep_kernel:
    s_cmp_ge_u32 s2, 1
    s_cbranch_scc1 LR_end
    s_memrealtime s[20:21]
    s_load_dwordx4 s[4:7], s[0:1], 72
    s_waitcnt lgkmcnt(0)
    s_mov_b32 s8, s6
    s_mov_b32 s9, s7
    s_mov_b32 s10, 0x%x
    s_mov_b32 s11, 0x20000
    s_mov_b32 s12, s4
    s_mov_b32 s13, s5
    s_mov_b32 s14, 256
    s_mov_b32 s15, 0x20000
    v_lshlrev_b32 v1, 8, v0
    v_mov_b32 v20, 0
""" % WS_END
        for k, nw in ((0, 8), (1, 12)):
            body += "    s_mov_b32 s16, 0x%x\n" % (WS_DIAG + 0x80000 + k * 0x20000)
            for w in range(nw):
                body += "    buffer_load_dwordx4 v[4:7], v1, s[8:11], s16 offen offset:%d\n    s_waitcnt vmcnt(0)\n" % (16 * w)
                body += "    v_sub_u32 v4, s20, v4\n    v_sub_u32 v5, s20, v5\n    v_sub_u32 v6, s20, v6\n    v_sub_u32 v8, 0, v4\n    v_sub_u32 v9, 0, v5\n    v_sub_u32 v10, 0, v6\n"
                body += "    buffer_atomic_umax v4, v20, s[12:15], 0 offen offset:%d\n" % (16 * k)
                body += "    buffer_atomic_umax v8, v20, s[12:15], 0 offen offset:%d\n" % (16 * k + 4)
                body += "    buffer_atomic_umax v9, v20, s[12:15], 0 offen offset:%d\n" % (16 * k + 8)
                body += "    buffer_atomic_umax v10, v20, s[12:15], 0 offen offset:%d\n    s_waitcnt vmcnt(0)\n" % (16 * k + 12)
        body += "LR_end:\n    s_endpgm\n"
        i = out.index('.section .rodata')
        out = out[:i] + body + out[i:] + kernel_desc("rep_kernel", 32, 32)
        out = out.replace('.amdgcn_target', '; @launch kernel=rep_kernel grid=(1,1,1) block=(256,1,1) lds=0\n.amdgcn_target', 1)
    if os.environ.get("ENC"):
        fld, lo = [int(x) for x in os.environ["ENC"].split(",")]
        tlk = int(os.environ.get("ENCK", "-1"))
        body = """
.globl rep_kernel
.p2align 8
.type rep_kernel,@function
rep_kernel:
    s_cmp_ge_u32 s2, 1
    s_cbranch_scc1 LR_end
    s_memrealtime s[20:21]
    s_load_dwordx4 s[4:7], s[0:1], 72
    v_mov_b32 v20, 0
    v_mov_b32 v22, 0
    v_mov_b32 v23, -1
    ds_write_b64 v20, v[22:23]
    s_waitcnt lgkmcnt(0)
    s_barrier
    s_mov_b32 s8, s6
    s_mov_b32 s9, s7
    s_mov_b32 s10, 0x%x
    s_mov_b32 s11, 0x20000
    v_max_u32 v1, %d, v0
    v_lshlrev_b32 v1, 9, v1
    s_mov_b32 s16, 0x%x
""" % (WS_END, lo, WS_DIAG + 0x20000)
        if tlk >= 0:
            body += "    v_lshlrev_b32 v1, 8, v0\n    s_mov_b32 s16, 0x%x\n    s_mov_b32 s17, 0x%x\n" % (WS_DIAG + 0x80000 + tlk * 0x20000, WS_DIAG + 0x80000)
        for w in range(4, 8):
            if tlk >= 0:
                body += "    buffer_load_dword v%d, v1, s[8:11], s16 offen offset:%d\n" % (w, 16 * (w - 4 + lo) + 4 * max(fld, 0))
                body += "    buffer_load_dword v%d, v1, s[8:11], s17 offen offset:%d\n" % (w + 8, 16 * (w - 4))
                continue
            body += "    buffer_load_dword v%d, v1, s[8:11], s16 offen offset:%d\n" % (w, 32 * w + 4 * max(fld, 0))
            body += "    buffer_load_dword v%d, v1, s[8:11], s16 offen offset:%d\n" % (w + 8, 32 * w + 28)
        body += "    s_waitcnt vmcnt(0)\n"
        for w in range(4, 8):
            body += "    v_sub_u32 v%d, s20, v%d\n    v_sub_u32 v%d, s20, v%d\n" % (w, w, w + 8, w + 8)
            body += "    ds_min_u32 v20, v%d offset:4\n    ds_max_u32 v20, v%d\n" % (w, w + 8)
        body += """    s_waitcnt lgkmcnt(0)
    s_barrier
    ds_read_b64 v[22:23], v20
    s_waitcnt lgkmcnt(0)
    v_sub_u32 v22, v22, v23
    s_nop 0
    v_readfirstlane_b32 s24, v22
    s_min_u32 s24, s24, 10000
    s_mul_i32 s24, s24, %d
    s_memrealtime s[20:21]
    s_waitcnt lgkmcnt(0)
LR_sp:
    s_memrealtime s[22:23]
    s_waitcnt lgkmcnt(0)
    s_sub_u32 s22, s22, s20
    s_cmp_lt_u32 s22, s24
    s_cbranch_scc1 LR_sp
LR_end:
    s_endpgm
""" % (8 if fld >= 0 else 0)
        i = out.index('.section .rodata')
        out = out[:i] + body + out[i:] + kernel_desc("rep_kernel", 32, 32)
        out = out.replace('.amdgcn_target', '; @launch kernel=rep_kernel grid=(1,1,1) block=(256,1,1) lds=64\n.amdgcn_target', 1)
    wsb = int(os.environ.get("WSB", "0"), 0)
    if wsb:
        out = re.sub(r"s_mov_b32 (s\d+), s42\n\s+s_mov_b32 (s\d+), s43", lambda m: "s_add_u32 %s, s42, 0x%x\n    s_addc_u32 %s, s43, 0" % (m.group(1), wsb, m.group(2)), out)
        k2 = out.index("attn_kernel:")
        head, tail = out[:k2], out[k2:]
        tail = re.sub(r"s_mov_b32 (s\d+), s4\n\s+s_mov_b32 (s\d+), s5", lambda m: "s_add_u32 %s, s4, 0x%x\n    s_addc_u32 %s, s5, 0" % (m.group(1), wsb, m.group(2)), tail)
        tail = re.sub(r"s_add_u32 (s22|s36), s4, 0x([0-9a-f]+)", lambda m: "s_add_u32 %s, s4, 0x%x" % (m.group(1), int(m.group(2), 16) + wsb), tail)
        tail = tail.replace("s_mul_i32 s29, s16, 163840\n", "s_mul_i32 s29, s16, 163840\n    s_add_u32 s29, s29, 0x%x\n" % wsb)
        out = head + tail
    mod = os.environ.get("STMOD", "")
    if mod:
        lines = []
        for l in out.split("\n"):
            if re.match(r"\s*buffer_store_dwordx[24] ", l) and " sc" not in l and " nt" not in l:
                l = l + " " + mod
            lines.append(l)
        out = "\n".join(lines)
    return out

if __name__ == "__main__":
    which = sys.argv[1] if len(sys.argv) > 1 else "123"
    path = sys.argv[2] if len(sys.argv) > 2 else "cdna_kernels/%s.s" % NAME
    open(path, "w").write(build(which))
    print("wrote", path)
```

```python
from common import *
import os
DIAG = os.environ.get("DIAG")
SLOT = 16384 + 4 * 5152
NS = 4
L_ST = NS * SLOT
K1_LDS = L_ST + 1664
POLL_ST = int(os.environ.get('K1_POLL', '8'))
QSCALE = f2u(1.4426950408889634 * 20 ** -0.5)
SPIN_MAX = 1 << 16
QM = ' ' + os.environ.get('K1_QM', 'sc1')

S_X, S_W, S_WS, S_DBG = 8, 12, 16, 44
S_WV = 20

def gen_k1(a, name="qkv_kernel"):
    from k1s import gen_spare
    S_RB, S_CB, S_J = 21, 22, 23
    S_T = 24
    S_R4, S_C6 = 33, 34
    S_ST, S_DL, S_MASK, S_STATE = 36, 37, 38, 48
    def stamp(i):
        if DIAG:
            a("s_memtime s[%d:%d]" % (60 + 2 * i, 61 + 2 * i))
    def diag_out():
        if DIAG:
            a("s_memrealtime s[56:57]")
            a("s_waitcnt lgkmcnt(0)")
            a("s_sub_u32 s56, s56, s52")
            a("s_mov_b64 exec, -1")
            a("v_mov_b32 v3, 0")
            for i in range(6):
                a("s_sub_u32 s%d, s%d, s50" % (60 + 2 * i, 60 + 2 * i))
                a("v_mov_b32 v%d, s%d" % (4 + i, 60 + 2 * i))
            a("v_mov_b32 v10, s56")
            a("v_mov_b32 v11, s52")
            a("s_lshl_b32 s58, s2, 3")
            a("s_add_u32 s58, s58, s%d" % S_WV)
            a("s_lshl_b32 s58, s58, 5")
            a("s_add_u32 s58, s58, 0x%x" % (WS_DIAG + 0x60000))
            a("s_mov_b64 exec, 1")
            a("buffer_store_dwordx4 v[4:7], v3, %s, s58 offen" % sr(S_WS, 4))
            a("buffer_store_dwordx4 v[8:11], v3, %s, s58 offen offset:16" % sr(S_WS, 4))
    def done(nbar=0):
        if FUSE:
            for _ in range(nbar):
                a("s_barrier")
            a("s_branch L2_entry")
        else:
            a("s_endpgm")
    kernel_begin(a, name)
    a("s_cmp_ge_u32 s2, 256")
    a("s_cbranch_scc1 L1_end")
    a("s_load_dwordx4 s[4:7], s[0:1], 0")
    a("s_load_dwordx4 s[40:43], s[0:1], %d" % KA_DBG)
    if DIAG:
        a("s_memtime s[50:51]")
        a("s_memrealtime s[52:53]")
        for i in range(6):
            a("s_mov_b32 s%d, 0" % (60 + 2 * i))
    a("v_lshrrev_b32 v1, 6, v0")
    a("v_and_b32 v0, 63, v0")
    a("s_mov_b32 s%d, 0x7f000000" % S_PFL)
    a("v_readfirstlane_b32 s%d, v1" % S_WV)
    if FUSE:
        a("s_nop 0")
        a("s_cmp_ge_u32 s%d, 8" % S_WV)
        a("s_cbranch_scc1 L1_idle")
    a("s_cmp_lt_u32 s2, 64")
    a("s_cbranch_scc1 L1_spare")
    a("s_sub_u32 s%d, s2, 64" % S_T)
    a("s_lshr_b32 s%d, s%d, 3" % (S_J, S_T))
    a("s_mul_i32 s%d, s%d, 43" % (S_T + 2, S_J))
    a("s_lshr_b32 s%d, s%d, 8" % (S_T + 2, S_T + 2))
    a("s_mul_i32 s%d, s%d, 6" % (S_T + 3, S_T + 2))
    a("s_sub_u32 s%d, s%d, s%d" % (S_T + 3, S_J, S_T + 3))
    a("s_bfe_u32 s%d, s%d, 0x20001" % (S_RB, S_T))
    a("s_lshl_b32 s%d, s%d, 2" % (S_RB, S_RB))
    a("s_add_u32 s%d, s%d, s%d" % (S_RB, S_RB, S_T + 2))
    a("s_and_b32 s%d, s%d, 1" % (S_CB, S_T))
    a("s_mul_i32 s%d, s%d, 6" % (S_CB, S_CB))
    a("s_add_u32 s%d, s%d, s%d" % (S_CB, S_CB, S_T + 3))
    a("s_mov_b32 s%d, s%d" % (S_R4, S_T + 2))
    a("s_mov_b32 s%d, s%d" % (S_C6, S_T + 3))
    a("s_mov_b32 s39, %d" % SLOT)
    a("s_cmp_ge_u32 s%d, 4" % S_WV)
    a("s_cbranch_scc1 L1_compute")
    VX = [2, 3, 4, 5]; VW = [6, 7, 8, 9, 10]; T0, T1, T2 = 11, 12, 13
    S_LW, S_MX, S_MW, S_SX, S_SW = S_WV, 25, 26, 27, 28
    a("s_lshl_b32 s29, s%d, 7" % S_RB)
    a("s_lshl_b32 s30, s%d, 5" % S_LW)
    a("s_add_u32 s29, s29, s30")
    a("v_lshrrev_b32 v%d, 3, v0" % T0)
    a("v_add_u32 v%d, s29, v%d" % (T0, T0))
    a("v_mul_u32_u24 v%d, 1280, v%d" % (T0, T0))
    a("v_lshrrev_b32 v%d, 4, v0" % T1)
    a("v_and_b32 v%d, 2, v%d" % (T2, T1))
    a("v_lshlrev_b32 v%d, 1, v%d" % (T2, T2))
    a("v_xor_b32 v%d, v%d, v%d" % (T1, T1, T2))
    a("v_and_b32 v%d, 7, v0" % T2)
    a("v_xor_b32 v%d, v%d, v%d" % (T1, T1, T2))
    a("v_lshl_add_u32 v%d, v%d, 4, v%d" % (VX[0], T1, T0))
    a("v_xor_b32 v%d, 4, v%d" % (T1, T1))
    a("v_lshl_add_u32 v%d, v%d, 4, v%d" % (VX[1], T1, T0))
    a("v_add_u32 v%d, %d, v%d" % (VX[1], 8 * 1280 - 1024, VX[1]))
    a("v_add_u32 v%d, %d, v%d" % (VX[2], 16 * 1280 - 2048, VX[0]))
    a("v_add_u32 v%d, %d, v%d" % (VX[3], 16 * 1280 - 2048, VX[1]))
    a("s_mul_i32 s29, s%d, %d" % (S_LW, 16 * 3840))
    a("s_mul_i32 s30, s%d, 320" % S_CB)
    a("s_add_u32 s29, s29, s30")
    a("v_lshlrev_b32 v%d, 4, v0" % T0)
    a("v_add_u32 v%d, s29, v%d" % (T0, T0))
    a("v_mul_u32_u24 v%d, 3277, v0" % T1)
    a("s_movk_i32 s30, %d" % (3840 - 320))
    for i in range(5):
        a("v_add_u32 v%d, %d, v%d" % (T2, 64 * i * 3277, T1))
        a("v_lshrrev_b32 v%d, 16, v%d" % (T2, T2))
        a("v_mad_u32_u24 v%d, v%d, s30, v%d" % (VW[i], T2, T0))
    a("v_add_u32 v%d, 4096, v%d" % (VW[4], VW[4]))
    a("s_lshl_b32 s%d, s%d, 12" % (S_MX, S_LW))
    a("s_mul_i32 s%d, s%d, 5152" % (S_MW, S_LW))
    a("s_add_u32 s%d, s%d, 16384" % (S_MW, S_MW))
    if os.environ.get("K1_ROT", "1") == "1":
        a("s_lshl_b32 s29, s%d, 1" % S_C6)
        a("s_min_u32 s29, s29, 9")
        a("s_mul_i32 s30, s%d, 5" % S_R4)
        a("s_add_u32 s30, s30, 1")
        a("s_lshr_b32 s30, s30, 1")
        a("s_add_u32 s29, s29, s30")
        a("s_cmp_ge_u32 s29, 10")
        a("s_cselect_b32 s30, 10, 0")
        a("s_sub_u32 s29, s29, s30")
    else:
        a("s_mov_b32 s29, 0")
    a("s_lshl_b32 s%d, s29, 7" % S_SX)
    a("s_mul_i32 s%d, s29, %d" % (S_SW, 64 * 3840))
    VFL, VZ, VSA, VCA, ST0, ST1, ST2 = 14, 15, 16, 17, 20, 24, 28
    a("s_lshl_b32 s30, s%d, 12" % S_WV)
    a("v_mov_b32 v%d, s30" % VZ)
    a("s_waitcnt lgkmcnt(0)")
    srd(a, S_X, 4, 5, 2621440)
    srd(a, S_W, 6, 7, 2457600)
    def poll_issue(mode=""):
        a("s_mov_b64 exec, 1")
        a("buffer_load_dword v%d, v%d, %s, 0 offen %s" % (VFL, VZ, sr(S_DBG, 4), mode))
        a("s_mov_b64 exec, -1")
    stamp(0)
    def half(h):
        n = h // 2
        base = (n % NS) * SLOT
        if h % 2 == 0:
            a("s_add_u32 m0, s%d, %d" % (S_MX, base))
            a("s_nop 0")
            for i in range(4):
                a("buffer_load_dwordx4 v%d, %s, s%d offen offset:%d lds" % (VX[i], sr(S_X, 4), S_SX, 1024 * i))
            a("s_add_u32 s%d, s%d, 128" % (S_SX, S_SX))
            a("s_cmp_eq_u32 s%d, 1280" % S_SX)
            a("s_cselect_b32 s%d, 0, s%d" % (S_SX, S_SX))
            return 4
        a("s_add_u32 m0, s%d, %d" % (S_MW, base))
        a("s_nop 0")
        for i in range(4):
            a("buffer_load_dwordx4 v%d, %s, s%d offen offset:%d lds" % (VW[i], sr(S_W, 4), S_SW, 1024 * i))
        a("s_add_u32 m0, s%d, %d" % (S_MW, base + 4096))
        a("s_nop 0")
        a("buffer_load_dwordx4 v%d, %s, s%d offen lds" % (VW[4], sr(S_W, 4), S_SW))
        a("s_add_u32 s%d, s%d, %d" % (S_SW, S_SW, 64 * 3840))
        a("s_cmp_eq_u32 s%d, %d" % (S_SW, 640 * 3840))
        a("s_cselect_b32 s%d, 0, s%d" % (S_SW, S_SW))
        return 5
    AH = [int(x) for x in os.environ.get("K1_AHEAD", "1,1,1,2,2,2,2,2,2,2").split(",")]
    ops = []
    issued = 0
    for st in range(10):
        upto = min(20, 2 * st + 2 + AH[st])
        while issued < upto:
            ops.append((issued, half(issued)))
            if issued == 1:
                srd(a, S_WS, 42, 43, WS_END)
                srd(a, S_DBG, 40, 41, 256)
            if issued == int(os.environ.get("K1_TCH", "-1")):
                a("s_cmp_lt_u32 s%d, 4" % S_CB)
                a("s_cselect_b32 s31, 0x%x, 0" % WS_Q)
                a("s_cselect_b32 s29, 0, 1")
                a("s_lshl_b32 s32, 81920, s29")
                a("s_lshl_b32 s35, 1280, s29")
                a("s_cmp_ge_u32 s%d, 8" % S_CB)
                a("s_cselect_b32 s31, 1280, s31")
                a("s_and_b32 s29, s%d, 3" % S_CB)
                a("s_lshl_b32 s29, s29, 2")
                a("s_add_u32 s29, s29, s%d" % S_WV)
                a("s_lshl_b32 s29, s29, 1")
                a("s_mul_i32 s29, s29, s32")
                a("s_add_u32 s31, s31, s29")
                a("s_lshl_b32 s29, s%d, 2" % S_RB)
                a("s_mul_i32 s29, s29, s35")
                a("s_add_u32 s31, s31, s29")
                a("s_add_u32 s32, s32, s31")
                a("v_lshrrev_b32 v18, 4, v0")
                a("v_mul_lo_u32 v18, s35, v18")
                a("v_and_b32 v19, 15, v0")
                a("v_min_u32 v19, 9, v19")
                a("v_lshl_add_u32 v18, v19, 7, v18")
                a("buffer_load_dword v19, v18, %s, s31 offen" % sr(S_WS, 4))
                a("buffer_load_dword v19, v18, %s, s32 offen" % sr(S_WS, 4))
                ops.append((issued + 0.6, 2))
            if issued == 2 * POLL_ST + 1:
                poll_issue("offset:128 sc1")
                ops.append((issued + 0.5, 1))
            issued += 1
        a("s_waitcnt vmcnt(%d)" % sum(c for h, c in ops if h > 2 * st + 1))
        if st == POLL_ST + 1:
            break
        a("s_barrier")
    assert issued == 20, "stat loads must follow the last staging load"
    left = 9 - st
    a("s_cmp_eq_u32 s%d, 0" % S_WV)
    a("s_cbranch_scc1 L1_ld_w0")
    def tail(extra):
        a("s_barrier")
        for s2 in range(st + 1, 10):
            a("s_waitcnt vmcnt(%d)" % (extra + sum(c for h, c in ops if h > 2 * s2 + 1)))
            a("s_barrier")
    tail(0)
    stamp(1)
    diag_out()
    done(3)
    def stat_loads():
        a("buffer_load_dwordx4 %s, v%d, %s, 0 offen sc1" % (vr(ST0, 4), VSA, sr(S_WS, 4)))
        a("buffer_load_dwordx4 %s, v%d, %s, 0 offen sc1" % (vr(ST1, 4), VCA, sr(S_WS, 4)))
        a("buffer_load_dwordx4 %s, v%d, %s, s32 offen sc1" % (vr(ST2, 4), VCA, sr(S_WS, 4)))
    a("L1_ld_w0:")
    a("v_readfirstlane_b32 s31, v%d" % VFL)
    a("s_movk_i32 s32, 7680")
    a("v_and_b32 v%d, 31, v0" % VSA)
    a("v_lshlrev_b32 v%d, 4, v%d" % (VSA, VSA))
    a("v_lshrrev_b32 v%d, 5, v0" % VCA)
    a("v_lshl_add_u32 v%d, v%d, 13, v%d" % (VSA, VCA, VSA))
    a("s_lshl_b32 s29, s%d, 9" % S_RB)
    a("s_add_u32 s29, s29, 0x%x" % WS_STAT)
    a("v_add_u32 v%d, s29, v%d" % (VSA, VSA))
    a("s_mul_i32 s29, s%d, 640" % S_CB)
    a("s_add_u32 s29, s29, 0x%x" % WS_CS)
    a("v_min_u32 v%d, 39, v0" % VCA)
    a("v_lshlrev_b32 v%d, 4, v%d" % (VCA, VCA))
    a("v_add_u32 v%d, %d, v%d" % (T1, L_ST + 1024, VCA))
    a("v_add_u32 v%d, s29, v%d" % (VCA, VCA))
    a("v_lshlrev_b32 v%d, 4, v0" % T0)
    a("v_add_u32 v%d, %d, v%d" % (T0, L_ST, T0))
    a("s_cmp_lt_u32 s31, 64")
    a("s_cbranch_scc1 L1_ld_late")
    stat_loads()
    stamp(2)
    tail(3)
    a("s_barrier")
    a("L1_ld_fin:")
    a("s_waitcnt vmcnt(0)")
    a("ds_write_b128 v%d, %s" % (T0, vr(ST0, 4)))
    for i in range(4):
        a("v_add_f32 v%d, v%d, v%d" % (ST1 + i, ST1 + i, ST2 + i))
    a("ds_write_b128 v%d, %s" % (T1, vr(ST1, 4)))
    a("s_waitcnt lgkmcnt(0)")
    a("s_barrier")
    stamp(1)
    diag_out()
    done(1)
    a("L1_ld_late:")
    poll_issue("offset:128 sc1")
    tail(1)
    a("s_barrier")
    a("s_mov_b32 s30, %d" % SPIN_MAX)
    a("L1_ld_spin:")
    a("s_waitcnt vmcnt(0)")
    a("v_readfirstlane_b32 s29, v%d" % VFL)
    a("s_cmp_ge_u32 s29, 64")
    a("s_cbranch_scc1 L1_ld_got")
    a("s_sleep 2")
    poll_issue("offset:128 sc1")
    a("s_sub_u32 s30, s30, 1")
    a("s_cbranch_scc0 L1_ld_spin")
    a("L1_ld_got:")
    stat_loads()
    stamp(3)
    a("s_branch L1_ld_fin")
    a("L1_compute:")
    ACC = 4
    XF = [84, 120]
    WF = [100, 136]
    AX = [156, 157]; AW = [158]
    T0, T1, T2, T3 = 84, 85, 86, 87
    VSA, VCA, JUNK = 159, 160, 161
    SA_, SB_, SC_, SD_ = 162, 163, 164, 165
    NV = 168
    PRE = os.environ.get('K1_PRE', '0') == '1'
    S_WM, S_WN = 24, 25
    acc = lambda mt, t: ACC + (mt * 5 + t) * 4
    a("s_bfe_u32 s%d, s%d, 0x10001" % (S_WM, S_WV))
    a("s_and_b32 s%d, s%d, 1" % (S_WN, S_WV))
    a("s_waitcnt lgkmcnt(0)")
    srd(a, S_WS, 42, 43, WS_END)
    if not FUSE:
        a("s_cmp_lg_u32 s%d, 4" % S_WV)
        a("s_cbranch_scc1 L1_notouch0")
        code_prefetch(a, S_DBG, 166, JUNK, name, "L1_spare", nmax=1)
        a("L1_notouch0:")
    a("s_lshl_b32 s%d, s%d, 4" % (S_PFL, S_CB))
    a("s_add_u32 s%d, s%d, s%d" % (S_PFL, S_PFL, S_RB))
    a("s_lshl_b32 s%d, s%d, 5" % (S_PFL, S_PFL))
    a("s_lshl_b32 s32, s%d, 1" % S_WN)
    a("s_add_u32 s32, s32, s%d" % S_WM)
    a("s_add_u32 s%d, s%d, s32" % (S_PFL, S_PFL))
    a("s_lshl_b32 s%d, s%d, 2" % (S_PFL, S_PFL))
    a("s_add_u32 s%d, s%d, 0x%x" % (S_PFL, S_PFL, FLG_G))
    a("v_and_b32 v%d, 15, v0" % T0)
    a("v_lshrrev_b32 v%d, 4, v0" % T1)
    a("v_lshrrev_b32 v%d, 1, v%d" % (T2, T0))
    a("v_and_b32 v%d, 2, v%d" % (T3, T2))
    a("v_lshlrev_b32 v%d, 1, v%d" % (T3, T3))
    a("v_xor_b32 v%d, v%d, v%d" % (T2, T2, T3))
    a("v_lshlrev_b32 v%d, 1, v%d" % (T3, T1))
    a("v_xor_b32 v%d, v%d, v%d" % (T2, T2, T3))
    a("v_lshlrev_b32 v%d, 7, v%d" % (T3, T0))
    a("v_lshl_add_u32 v%d, v%d, 4, v%d" % (AX[0], T2, T3))
    a("s_lshl_b32 s32, s%d, 13" % S_WM)
    a("v_add_u32 v%d, s32, v%d" % (AX[0], AX[0]))
    a("v_xor_b32 v%d, 16, v%d" % (AX[1], AX[0]))
    a("v_mul_u32_u24 v%d, 5152, v%d" % (T2, T1))
    a("v_lshrrev_b32 v%d, 2, v%d" % (T3, T0))
    a("v_mul_u32_u24 v%d, 320, v%d" % (T3, T3))
    a("v_add_u32 v%d, v%d, v%d" % (T2, T2, T3))
    a("v_and_b32 v%d, 3, v0" % T3)
    a("v_mul_u32_u24 v%d, 40, v%d" % (T3, T3))
    a("v_add_u32 v%d, v%d, v%d" % (T2, T2, T3))
    a("s_mul_i32 s32, s%d, 160" % S_WN)
    a("s_add_u32 s32, s32, 16384")
    a("v_add_u32 v%d, s32, v%d" % (AW[0], T2))
    for i in range(80):
        a("v_mov_b32 v%d, 0" % (ACC + i))
    a("s_mov_b32 s%d, 0" % S_ST)
    a("s_lshl_b32 s26, s%d, 8" % S_WM)
    a("s_add_u32 s26, s26, %d" % L_ST)
    a("s_mul_i32 s27, s%d, 320" % S_WN)
    a("s_add_u32 s27, s27, %d" % (L_ST + 1024))
    def reads(b):
        L = []
        for t in range(5):
            for h in range(2):
                L.append("ds_read_b64_tr_b16 %s, v%d offset:%d" % (vr(WF[b] + 4 * t + 2 * h, 2), AW[0], 2560 * b + 1280 * h + 8 * t))
        X = ["ds_read_b128 %s, v%d offset:%d" % (vr(XF[b] + 4 * mt, 4), AX[b], 2048 * mt) for mt in range(4)]
        return [X[0]] + L + X[1:]
    def stat_reads(vt):
        MR, C0 = (124, 132) if vt == 0 else (124, 104)
        if vt == 0:
            for mt in range(4):
                a("ds_read2st64_b32 %s, v%d offset0:0 offset1:2" % (vr(MR + 2 * mt, 2), VSA))
                if mt < 3:
                    a("v_add_u32 v%d, 64, v%d" % (VSA, VSA))
            for t in range(5):
                a("ds_read_b128 %s, v%d offset:%d" % (vr(C0 + 4 * t, 4), VCA, 16 * t))
        else:
            for mt in range(4):
                a("ds_read_b128 %s, v%d offset:%d" % (vr(MR + 8 * mt, 4), VSA, 64 * mt))
                a("ds_read_b128 %s, v%d offset:%d" % (vr(MR + 8 * mt + 4, 4), VSA, 512 + 64 * mt))
            for t in range(5):
                a("ds_read_b32 v%d, v%d offset:%d" % (C0 + t, VCA, 16 * t))
    a("s_cmp_ge_u32 s%d, 8" % S_CB)
    a("s_cbranch_scc1 L1_preV")
    for vt in (0, 1):
        sfx = "V" if vt else "Q"
        a("L1_pre%s:" % sfx)
        if vt == 0:
            a("v_lshl_add_u32 v%d, v%d, 2, s26" % (VSA, T0))
            a("v_mul_u32_u24 v%d, 80, v%d" % (VCA, T1))
            a("v_add_u32 v%d, s27, v%d" % (VCA, VCA))
        else:
            a("v_lshl_add_u32 v%d, v%d, 4, s26" % (VSA, T1))
            a("v_lshrrev_b32 v%d, 2, v%d" % (VCA, T0))
            a("v_mul_u32_u24 v%d, 80, v%d" % (VCA, VCA))
            a("v_and_b32 v%d, 3, v0" % T3)
            a("v_lshl_add_u32 v%d, v%d, 2, v%d" % (VCA, T3, VCA))
            a("v_add_u32 v%d, s27, v%d" % (VCA, VCA))
        if vt == 0:
            assert WS_KV == 0
            a("s_cmp_lt_u32 s%d, 4" % S_CB)
            a("s_cselect_b32 s31, 0x%x, 1.0" % QSCALE)
            a("s_cselect_b32 s28, 0x%x, 0" % WS_Q)
            a("s_cselect_b32 s29, 0, 1")
            a("s_lshl_b32 s34, 81920, s29")
            a("s_lshl_b32 s35, 1280, s29")
            a("s_and_b32 s29, s%d, 3" % S_CB)
            a("s_lshl_b32 s29, s29, 3")
            a("s_lshl_b32 s30, s%d, 2" % S_WN)
            a("s_add_u32 s29, s29, s30")
            a("s_mul_i32 s29, s29, s34")
            a("s_add_u32 s28, s28, s29")
            a("s_lshl_b32 s29, s%d, 2" % S_RB)
            a("s_lshl_b32 s30, s%d, 1" % S_WM)
            a("s_add_u32 s29, s29, s30")
            a("s_mul_i32 s29, s29, s35")
            a("s_add_u32 s28, s28, s29")
            a("s_add_u32 s29, s28, s35")
            a("v_mul_lo_u32 v%d, s34, v%d" % (T3, T1))
            a("v_and_b32 v%d, 8, v%d" % (T2, T0))
            a("v_add_u32 v%d, v%d, v%d" % (T2, T2, T0))
            a("v_lshl_add_u32 v%d, v%d, 4, v%d" % (SB_, T0, T3))
            a("v_lshl_add_u32 v%d, v%d, 4, v%d" % (SA_, T2, T3))
            def stores(mt, P, PB):
                so = 28 + (mt >> 1)
                a("buffer_store_dwordx4 %s, v%d, %s, s%d offen offset:%d%s" % (vr(P, 4), SA_, sr(S_WS, 4), so, 128 * (mt & 1), QM))
                a("buffer_store_dwordx4 %s, v%d, %s, s%d offen offset:%d%s" % (vr(P + 4, 4), SA_, sr(S_WS, 4), so, 128 * (mt & 1) + 512, QM))
                if mt & 1:
                    a("buffer_store_dwordx4 %s, v%d, %s, s%d offen offset:1024%s" % (vr(PB - 2, 4), SB_, sr(S_WS, 4), so, QM))
            if PRE:
                for mt in range(4):
                    stores(mt, ACC, ACC + 2)
        else:
            a("s_and_b32 s29, s%d, 3" % S_CB)
            a("s_lshl_b32 s29, s29, 3")
            a("s_lshl_b32 s30, s%d, 2" % S_WN)
            a("s_add_u32 s29, s29, s30")
            a("s_mul_i32 s28, s29, 163840")
            a("s_lshl_b32 s29, s%d, 2" % S_RB)
            a("s_lshl_b32 s30, s%d, 1" % S_WM)
            a("s_add_u32 s29, s29, s30")
            a("s_mul_i32 s29, s29, 2560")
            a("s_add_u32 s28, s28, s29")
            a("s_add_u32 s28, s28, %d" % (WS_KV + 1280))
            a("s_mov_b32 s34, 163840")
            a("v_lshrrev_b32 v%d, 2, v%d" % (T2, T0))
            a("v_mul_lo_u32 v%d, s34, v%d" % (T0, T2))
            a("v_and_b32 v%d, 3, v0" % T2)
            a("v_lshl_add_u32 v%d, v%d, 4, v%d" % (T0, T2, T0))
            VT = [SA_, SB_, SC_, SD_]
            for t in range(4):
                a("v_add_u32 v%d, %d, v%d" % (T2, t, T1))
                a("v_and_b32 v%d, 3, v%d" % (T2, T2))
                a("v_lshl_add_u32 v%d, v%d, 6, v%d" % (VT[t], T2, T0))
            def storev(u, t, P):
                a("buffer_store_dwordx4 %s, v%d, %s, s28 offen offset:%d%s" % (vr(P, 4), VT[t & 3], sr(S_WS, 4), 2560 * u + 256 * t, QM))
            if PRE:
                for u in range(2):
                    for t in range(5):
                        storev(u, t, ACC)
        a("s_barrier")
        stamp(0)
        for l in reads(0):
            a(l)
        a(".p2align 6")
        a("L1_loop%s:" % sfx)
        for b in (0, 1):
            mf = []
            for mt in range(4):
                for t in range(5):
                    c = vr(acc(mt, t), 4)
                    x, w = vr(XF[b] + 4 * mt, 4), vr(WF[b] + 4 * t, 4)
                    mf.append("v_mfma_f32_16x16x32_bf16 %s, %s, %s, %s" % ((c, x, w, c) if vt else (c, w, x, c)))
            rd = reads(1 - b)
            if b == 0:
                rd += ["s_add_u32 s%d, s%d, 1" % (S_ST, S_ST), "s_and_b32 s%d, s%d, 3" % (S_DL, S_ST),
                       "s_cselect_b32 s%d, s39, %d" % (S_DL, -3 * SLOT & 0xffffffff),
                       "v_add_u32 v%d, s%d, v%d" % (AX[0], S_DL, AX[0]), "v_add_u32 v%d, s%d, v%d" % (AW[0], S_DL, AW[0]),
                       "v_add_u32 v%d, s%d, v%d" % (AX[1], S_DL, AX[1])]
                a("s_waitcnt lgkmcnt(0)")
            else:
                a("s_waitcnt lgkmcnt(0)")
                a(mf.pop(0))
                a("s_barrier")
            for m in mf:
                a(m)
                if rd:
                    a(rd.pop(0))
            assert not rd
        a("s_cmp_lt_u32 s%d, 10" % S_ST)
        a("s_cbranch_scc1 L1_loop%s" % sfx)
        stamp(1)
        a("s_waitcnt lgkmcnt(0)")
        a("s_barrier")
        stat_reads(vt)
        MR, C0 = (124, 132) if vt == 0 else (124, 104)
        pkfma = "v_pk_fma_f32 %s, %s, %s, %s op_sel:[%d,%d,0] op_sel_hi:[%d,%d,1] neg_lo:[1,0,0] neg_hi:[1,0,0]"
        pkmul = "v_pk_mul_f32 %s, %s, %s op_sel:[%d,0] op_sel_hi:[%d,1]"
        if vt == 0:
            a("s_waitcnt vmcnt(0) lgkmcnt(0)")
            if FUSE:
                a("s_barrier")
            stamp(4)
            for mt in range(4):
                a("v_mul_f32 v%d, s31, v%d" % (MR + 2 * mt + 1, MR + 2 * mt + 1))
            for mt in range(4):
                mr = vr(MR + 2 * mt, 2)
                for t in range(5):
                    for e in (0, 2):
                        c = vr(acc(mt, t) + e, 2)
                        a(pkfma % (c, mr, vr(C0 + 4 * t + e, 2), c, 0, 0, 0, 1))
                for t in range(5):
                    for e in (0, 2):
                        c = vr(acc(mt, t) + e, 2)
                        a(pkmul % (c, mr, c, 1, 1))
                P = 84 + 8 * mt
                PB = 116 + 2 * mt
                for t in range(5):
                    d = P + 2 * t if t < 4 else PB
                    a("v_cvt_pk_bf16_f32 v%d, v%d, v%d" % (d, acc(mt, t), acc(mt, t) + 1))
                    a("v_cvt_pk_bf16_f32 v%d, v%d, v%d" % (d + 1, acc(mt, t) + 2, acc(mt, t) + 3))
                stores(mt, P, PB)
        else:
            a("s_waitcnt vmcnt(0) lgkmcnt(0)")
            if FUSE:
                a("s_barrier")
            stamp(4)
            for u in range(2):
                for mt in (2 * u, 2 * u + 1):
                    for t in range(5):
                        for e in (0, 2):
                            c = vr(acc(mt, t) + e, 2)
                            a(pkfma % (c, vr(MR + 8 * mt + e, 2), vr(C0 + (t & ~1), 2), c, 0, t & 1, 1, t & 1))
                    for t in range(5):
                        for e in (0, 2):
                            c = vr(acc(mt, t) + e, 2)
                            a(pkmul % (c, vr(MR + 8 * mt + 4 + e, 2), c, 0, 1))
                for t in range(5):
                    P = 84 + 4 * t
                    for h in range(2):
                        mt = 2 * u + h
                        a("v_cvt_pk_bf16_f32 v%d, v%d, v%d" % (P + 2 * h, acc(mt, t), acc(mt, t) + 1))
                        a("v_cvt_pk_bf16_f32 v%d, v%d, v%d" % (P + 2 * h + 1, acc(mt, t) + 2, acc(mt, t) + 3))
                    storev(u, t, P)
        stamp(2)
        diag_out()
        done()
    if FUSE:
        a("L1_idle:")
        a("s_sub_u32 s24, s%d, 8" % S_WV)
        a("s_lshl_b32 s24, s24, 6")
        a("s_lshr_b32 s25, s2, 3")
        a("s_and_b32 s25, s25, %s" % os.environ.get("K1_CPM", "7"))
        a("s_cmp_lg_u32 s25, 0")
        a("s_cselect_b32 s24, 0x40000, s24")
        a("v_add_u32 v2, s24, v0")
        code_prefetch(a, S_DBG, 3, 4, name, "L_code_end", vlane="v2", nmax=1)
        a("v_add_u32 v3, 32768, v3")
        a("buffer_load_dword v4, v3, %s, 0 offen" % sr(S_DBG, 4))
        if os.environ.get("K1_TOUCH", "0") == "1":
            a("s_load_dwordx4 s[60:63], s[0:1], %d" % KA_WG)
            a("s_load_dwordx4 s[64:67], s[0:1], %d" % KA_WD)
            a("s_load_dwordx2 s[68:69], s[0:1], %d" % KA_WO)
            a("v_lshlrev_b32 v3, 20, v0")
            a("s_waitcnt lgkmcnt(0)")
            a("s_cmp_lg_u32 s%d, 9" % S_WV)
            a("s_cbranch_scc1 L1_idle_nt")
            for lo, n in ((42, WS_DIAG), (66, 2621440), (60, 1966080), (62, 1966080), (64, 1966080), (68, 819200)):
                srd(a, S_DBG, lo, lo + 1, n)
                a("buffer_load_dword v4, v3, %s, 0 offen sc1" % sr(S_DBG, 4))
            srd(a, S_DBG, 40, 41, 256)
            a("v_mov_b32 v5, 0")
            a("s_cmp_lt_u32 s2, 64")
            a("s_cselect_b32 s24, 32, 256")
            a("buffer_atomic_add v5, v3, %s, s24 offen sc1" % sr(S_DBG, 4))
            a("L1_idle_nt:")
        a("s_waitcnt lgkmcnt(0)")
        a("s_cmp_lt_u32 s2, 64")
        a("s_cbranch_scc1 L1_idle_sp")
        done(13)
        a("L1_idle_sp:")
        a("s_barrier")
        a("s_cmp_lg_u32 s%d, 8" % S_WV)
        a("s_cbranch_scc1 L1_idle_go")
        a("s_lshl_b32 s%d, s2, 7" % S_PFL)
        a("s_add_u32 s%d, s%d, 0x%x" % (S_PFL, S_PFL, FLG_S))
        a("L1_idle_go:")
        done(1)
    a("L1_spare:")
    nv2 = gen_spare(a, stamp, diag_out, done)
    a("L1_end:")
    a("s_endpgm")
    return kernel_desc(name, max(NV, nv2), 80)
```

```python
from common import *
import os
S_X, S_W, S_WS, S_DBG = 8, 12, 16, 44
S_WV = 20
XM = ' ' + os.environ.get('K1_XM', 'sc1')
L_CP = 65536
L_CNT = 66560

def ln_scalars(a, SUM, SQ, M, RS, T):
    a("v_mul_f32 v%d, 0x%x, v%d" % (M, f2u(1.0 / 640), SUM))
    a("v_mul_f32 v%d, 0x%x, v%d" % (T, f2u(1.0 / 640), SQ))
    a("v_fma_f32 v%d, -v%d, v%d, v%d" % (T, M, M, T))
    a("v_max_f32 v%d, 0, v%d" % (T, T))
    bf16_round(a, T, T)
    a("v_add_f32 v%d, 0x%x, v%d" % (T, f2u(1e-5), T))
    bf16_round(a, T, T)
    a("v_sqrt_f32 v%d, v%d" % (T, T))
    bf16_round(a, M, M)
    bf16_round(a, T, T)
    a("v_rcp_f32 v%d, v%d" % (RS, T))

def row16_sum(a, regs):
    for mode in ("quad_perm:[1,0,3,2]", "quad_perm:[2,3,0,1]", "row_half_mirror", "row_mirror"):
        if len(regs) < 3:
            a("s_nop %d" % (2 - len(regs)))
        for r in regs:
            a("v_add_f32_dpp v%d, v%d, v%d %s row_mask:0xf bank_mask:0xf" % (r, r, r, mode))

def gen_spare(a, stamp, diag_out, done):
    S_XC, S_IDX = 21, 22
    S_G = 24
    a("s_load_dwordx2 s[36:37], s[0:1], %d" % KA_WR)
    a("s_load_dwordx2 s[78:79], s[0:1], %d" % KA_WO)
    a("s_and_b32 s%d, s2, 7" % S_XC)
    a("s_lshr_b32 s%d, s2, 3" % S_IDX)
    a("v_mov_b32 v3, %d" % L_CNT)
    def signal1(T0, T1):
        n = len(a.lines)
        a("v_mov_b32 v%d, 1" % T1)
        a("s_mov_b64 exec, 1")
        a("ds_add_rtn_u32 v%d, v3, v%d offset:4" % (T0, T1))
        a("s_waitcnt lgkmcnt(0)")
        a("v_readfirstlane_b32 s38, v%d" % T0)
        a("v_mov_b32 v%d, 0" % T0)
        a("s_cmp_lg_u32 s38, 4")
        a("s_cbranch_scc1 LS_ns%d" % n)
        a("buffer_atomic_add v%d, v%d, %s, 0 offen sc0 sc1" % (T1, T0, sr(S_DBG, 4)))
        a("s_waitcnt vmcnt(0)")
        a("v_readfirstlane_b32 s38, v%d" % T1)
        a("v_mov_b32 v%d, 64" % T1)
        a("s_cmp_lg_u32 s38, 63")
        a("s_cbranch_scc1 LS_ns%d" % n)
        a("buffer_store_dword v%d, v%d, %s, 0 offen offset:128 sc1" % (T1, T0, sr(S_DBG, 4)))
        a("LS_ns%d:" % n)
        a("s_mov_b64 exec, -1")
    a("s_cmp_ge_u32 s%d, 4" % S_WV)
    a("s_cbranch_scc1 LS_cw")
    X = [4, 24]
    WR = 44
    F = 64
    SU = [104, 105]; SQ = [106, 107]; M = [108, 110]; RS = [109, 111]; RR = [112, 113]
    VA, VB, T0, T1, ROW, T2 = 114, 115, 116, 117, 118, 119
    a("s_lshr_b32 s38, s%d, 1" % S_XC)
    a("s_lshl_b32 s38, s38, 9")
    a("s_and_b32 s39, s%d, 1" % S_XC)
    a("s_lshl_b32 s39, s39, 3")
    a("s_add_u32 s39, s39, s%d" % S_IDX)
    a("s_lshl_b32 s39, s39, 5")
    a("s_add_u32 s38, s38, s39")
    a("s_lshl_b32 s39, s%d, 3" % S_WV)
    a("s_add_u32 s38, s38, s39")
    a("v_lshrrev_b32 v%d, 4, v0" % ROW)
    a("v_add_u32 v%d, s38, v%d" % (ROW, ROW))
    a("v_and_b32 v%d, 15, v0" % T0)
    a("v_lshlrev_b32 v%d, 4, v%d" % (VB, T0))
    a("v_mul_u32_u24 v%d, 1280, v%d" % (VA, ROW))
    a("v_add_u32 v%d, v%d, v%d" % (VA, VA, VB))
    for i in range(4):
        a("v_mov_b32 v%d, 0" % (F + i))
    a("ds_write_b128 v3, %s" % vr(F, 4))
    a("s_movk_i32 s39, 5120")
    a("s_waitcnt lgkmcnt(0)")
    srd(a, S_X, 4, 5, 2621440)
    for j in range(5):
        a("buffer_load_dwordx4 %s, v%d, %s, 0 offen offset:%d" % (vr(X[0] + 4 * j, 4), VA, sr(S_X, 4), 256 * j))
    for j in range(5):
        a("buffer_load_dwordx4 %s, v%d, %s, s39 offen offset:%d" % (vr(X[1] + 4 * j, 4), VA, sr(S_X, 4), 256 * j))
    srd(a, S_WS, 42, 43, WS_END)
    srd(a, S_DBG, 40, 41, 256)
    if FUSE:
        a("s_lshl_b32 s38, s2, 7")
        a("s_add_u32 s38, s38, 0x%x" % FLG_S)
        a("s_cmp_eq_u32 s2, 0")
        a("s_cselect_b32 s39, 0x%x, s38" % (WS_SEL + 64))
        a("s_cmp_eq_u32 s%d, 1" % S_WV)
        a("s_cselect_b32 s38, s39, s38")
        a("v_mov_b32 v%d, s38" % T1)
        a("s_mov_b64 exec, 1")
        a("buffer_store_dword v%d, v%d, %s, 0 offen sc1" % (F, T1, sr(S_WS, 4)))
        a("s_mov_b64 exec, -1")
    a("s_barrier")
    a("s_mov_b32 s38, 0x3f803f80")
    for r in SU + SQ + RR:
        a("v_mov_b32 v%d, 0" % r)
    a("v_lshl_add_u32 v%d, v%d, 2, v%d" % (ROW, T0, ROW))
    a("v_cmp_eq_u32 s[32:33], 1, v%d" % T0)
    a("v_cmp_gt_u32 s[34:35], 2, v%d" % T0)
    a("v_lshlrev_b32 v%d, 2, v%d" % (T2, ROW))
    a("s_waitcnt vmcnt(%d)" % (1 if FUSE else 0))
    stamp(0)
    for j in range(20):
        for p in range(2):
            a("v_dot2c_f32_bf16 v%d, s38, v%d" % (SU[p], X[p] + j))
            a("v_dot2c_f32_bf16 v%d, v%d, v%d" % (SQ[p], X[p] + j, X[p] + j))
    a("s_nop 2")
    row16_sum(a, SU + SQ)
    for p in range(2):
        ln_scalars(a, SU[p], SQ[p], M[p], RS[p], T0)
    a("s_mov_b32 s38, 0x%x" % WS_STAT)
    a("s_mov_b32 s39, 0x%x" % (WS_STAT + 8192))
    a("v_cndmask_b32 v%d, v%d, v%d, s[32:33]" % (T0, M[0], M[1]))
    a("v_cndmask_b32 v%d, v%d, v%d, s[32:33]" % (T1, RS[0], RS[1]))
    a("s_mov_b64 exec, s[34:35]")
    a("buffer_store_dword v%d, v%d, %s, s38 offen sc1" % (T0, T2, sr(S_WS, 4)))
    a("buffer_store_dword v%d, v%d, %s, s39 offen sc1" % (T1, T2, sr(S_WS, 4)))
    a("s_mov_b64 exec, -1")
    srd(a, S_W, 36, 37, 1280)
    for j in range(5):
        a("buffer_load_dwordx4 %s, v%d, %s, 0 offen offset:%d" % (vr(WR + 4 * j, 4), VB, sr(S_W, 4), 256 * j))
    for p in range(2):
        mr = vr(M[p], 2)
        for j in range(20):
            a("v_lshlrev_b32 v%d, 16, v%d" % (F + 2 * j, X[p] + j))
            a("v_and_b32 v%d, 0xffff0000, v%d" % (F + 2 * j + 1, X[p] + j))
        for j in range(20):
            a("v_pk_add_f32 %s, %s, %s op_sel:[0,0] op_sel_hi:[1,0] neg_lo:[0,1] neg_hi:[0,1]" % (vr(F + 2 * j, 2), vr(F + 2 * j, 2), mr))
        for j in range(20):
            a("v_cvt_pk_bf16_f32 v%d, v%d, v%d" % (X[p] + j, F + 2 * j, F + 2 * j + 1))
        if p == 0:
            a("s_waitcnt vmcnt(5)")
            signal1(T0, T1)
            stamp(1)
        for j in range(20):
            a("v_lshlrev_b32 v%d, 16, v%d" % (F + 2 * j, X[p] + j))
            a("v_and_b32 v%d, 0xffff0000, v%d" % (F + 2 * j + 1, X[p] + j))
        for j in range(20):
            a("v_pk_mul_f32 %s, %s, %s op_sel:[0,1] op_sel_hi:[1,1]" % (vr(F + 2 * j, 2), vr(F + 2 * j, 2), mr))
        for j in range(20):
            a("v_cvt_pk_bf16_f32 v%d, v%d, v%d" % (X[p] + j, F + 2 * j, F + 2 * j + 1))
        if p == 0:
            a("s_waitcnt vmcnt(0)")
        for j in range(20):
            a("v_dot2c_f32_bf16 v%d, v%d, v%d" % (RR[p], X[p] + j, WR + j))
    a("s_nop 2")
    row16_sum(a, RR)
    a("v_cndmask_b32 v%d, v%d, v%d, s[32:33]" % (RR[0], RR[0], RR[1]))
    bf16_round(a, RR[0], RR[0])
    a("v_ashrrev_i32 v%d, 31, v%d" % (T1, RR[0]))
    a("v_or_b32 v%d, 0x80000000, v%d" % (T1, T1))
    a("v_xor_b32 v%d, v%d, v%d" % (RR[0], RR[0], T1))
    a("v_and_b32 v%d, 0xffff0000, v%d" % (RR[0], RR[0]))
    a("v_sub_u32 v%d, 0xffff, v%d" % (T1, ROW))
    a("v_or_b32 v%d, v%d, v%d" % (RR[0], RR[0], T1))
    a("s_mov_b32 s49, 0x%x" % WS_KEY)
    a("s_mov_b64 exec, s[34:35]")
    a("buffer_store_dword v%d, v%d, %s, s49 offen sc1" % (RR[0], T2, sr(S_WS, 4)))
    a("s_mov_b64 exec, -1")
    def xn_stores():
        a("s_mov_b64 exec, -1")
        a("s_mov_b32 s39, 0x%x" % (WS_XN + 5120))
        a("s_mov_b32 s49, 0x%x" % WS_XN)
        for p in range(2):
            for j in range(5):
                a("buffer_store_dwordx4 %s, v%d, %s, s%d offen offset:%d%s" % (vr(X[p] + 4 * j, 4), VA, sr(S_WS, 4), (49, 39)[p], 256 * j, XM))
    stamp(2)
    a("v_mov_b32 v%d, 1" % T1)
    a("s_waitcnt vmcnt(0)")
    a("s_mov_b64 exec, 1")
    a("ds_add_rtn_u32 v%d, v3, v%d offset:8" % (T0, T1))
    a("s_waitcnt lgkmcnt(0)")
    a("v_readfirstlane_b32 s38, v%d" % T0)
    a("v_mov_b32 v%d, 64" % T0)
    a("s_cmp_eq_u32 s38, 3")
    a("s_mov_b32 s38, 0")
    a("s_cbranch_scc0 LS_xn")
    a("buffer_atomic_add v%d, v%d, %s, 0 offen sc0 sc1" % (T1, T0, sr(S_DBG, 4)))
    a("s_mov_b32 s38, 1")
    a("LS_xn:")
    xn_stores()
    a("s_cmp_eq_u32 s38, 0")
    a("s_cbranch_scc1 LS_rdone")
    a("s_waitcnt vmcnt(10)")
    a("v_readfirstlane_b32 s38, v%d" % T1)
    a("s_cmp_lg_u32 s38, 63")
    a("s_cbranch_scc1 LS_rdone")
    a("s_mov_b64 exec, -1")
    stamp(3)
    K = 64
    M1, M2, W = 96, 100, 104
    a("v_lshlrev_b32 v%d, 4, v0" % VB)
    a("s_mov_b32 s38, 0x%x" % WS_KEY)
    a("s_mov_b32 s39, 0x%x" % (WS_KEY + 4096))
    for j in range(8):
        a("buffer_load_dwordx4 %s, v%d, %s, s%d offen offset:%d sc1" % (vr(K + 4 * j, 4), VB, sr(S_WS, 4), 38 + (j >> 2), 1024 * (j & 3)))
    a("s_mov_b32 s39, 0")
    a("v_mov_b32 v%d, 0" % T2)
    a("s_waitcnt vmcnt(0)")
    stamp(4)
    a("LS_top2:")
    for c in range(4):
        a("v_max_u32 v%d, v%d, v%d" % (M1 + c, K + 8 * c, K + 8 * c + 1))
        a("v_min_u32 v%d, v%d, v%d" % (M2 + c, K + 8 * c, K + 8 * c + 1))
    for j in range(2, 8):
        for c in range(4):
            a("v_med3_u32 v%d, v%d, v%d, v%d" % (M2 + c, M1 + c, M2 + c, K + 8 * c + j))
            a("v_max_u32 v%d, v%d, v%d" % (M1 + c, M1 + c, K + 8 * c + j))
    for x, y in ((0, 1), (2, 3), (0, 2)):
        a("v_min_u32 v%d, v%d, v%d" % (W, M1 + x, M1 + y))
        a("v_max_u32 v%d, v%d, v%d" % (M1 + x, M1 + x, M1 + y))
        a("v_max3_u32 v%d, v%d, v%d, v%d" % (M2 + x, W, M2 + x, M2 + y))
    a("LS_top:")
    first = True
    for mode in ("quad_perm:[1,0,3,2] row_mask:0xf", "quad_perm:[2,3,0,1] row_mask:0xf", "row_half_mirror row_mask:0xf", "row_mirror row_mask:0xf",
                 "row_bcast:15 row_mask:0xa", "row_bcast:31 row_mask:0xc"):
        a("s_nop 1")
        src = M1 if first else W
        a("v_max_u32_dpp v%d, v%d, v%d %s bank_mask:0xf" % (W, src, src, mode))
        first = False
    a("s_mov_b32 m0, s39")
    a("v_readlane_b32 s49, v%d, 63" % W)
    a("s_add_u32 s39, s39, 1")
    a("s_cmp_lt_u32 s39, 8")
    a("v_cmp_eq_u32 vcc, s49, v%d" % M1)
    a("v_writelane_b32 v%d, s49, m0" % T2)
    a("s_cbranch_scc0 LS_topd")
    a("v_cndmask_b32 v%d, v%d, v%d, vcc" % (M1, M1, M2))
    a("v_cndmask_b32 v%d, v%d, 0, vcc" % (M2, M2))
    a("v_cmp_eq_u32 vcc, 0, v%d" % M1)
    a("s_cbranch_vccz LS_top")
    for j0 in range(0, 32, 4):
        for j in range(4):
            a("v_cmp_gt_u32 s[%d:%d], s49, v%d" % (24 + 2 * j, 25 + 2 * j, K + j0 + j))
        for j in range(4):
            a("v_cndmask_b32 v%d, 0, v%d, s[%d:%d]" % (K + j0 + j, K + j0 + j, 24 + 2 * j, 25 + 2 * j))
    a("s_branch LS_top2")
    a("LS_topd:")
    a("v_mov_b32 v%d, v%d" % (VA, T2))
    a("v_and_b32 v%d, 0xffff, v%d" % (T0, VA))
    a("v_sub_u32 v%d, 0xffff, v%d" % (T0, T0))
    a("v_and_b32 v%d, 0x7ff, v%d" % (T0, T0))
    a("v_lshlrev_b32 v%d, 2, v0" % VB)
    a("s_mov_b64 exec, 0xff")
    a("v_ashrrev_i32 v%d, 31, v%d" % (T1, VA))
    a("v_not_b32 v%d, v%d" % (T1, T1))
    a("v_or_b32 v%d, 0x80000000, v%d" % (T1, T1))
    a("v_xor_b32 v%d, v%d, v%d" % (VA, VA, T1))
    a("v_and_b32 v%d, 0xffff0000, v%d" % (VA, VA))
    a("v_mul_f32 v%d, 0xbfb8aa3b, v%d" % (VA, VA))
    a("v_exp_f32 v%d, v%d" % (VA, VA))
    a("s_mov_b32 s38, 0x%x" % WS_SEL)
    a("v_add_f32 v%d, 1.0, v%d" % (VA, VA))
    a("v_rcp_f32 v%d, v%d" % (VA, VA))
    a("buffer_store_dword v%d, v%d, %s, s38 offen sc1" % (T0, VB, sr(S_WS, 4)))
    bf16_round(a, VA, VA)
    a("buffer_store_dword v%d, v%d, %s, s38 offen offset:32 sc1" % (VA, VB, sr(S_WS, 4)))
    if FUSE:
        a("v_mov_b32 v%d, 1" % T0)
        a("s_waitcnt vmcnt(0)")
        a("s_mov_b64 exec, 1")
        a("buffer_store_dword v%d, v%d, %s, s38 offen offset:64 sc1" % (T0, VB, sr(S_WS, 4)))
    a("LS_rdone:")
    a("s_mov_b64 exec, -1")
    stamp(5)
    diag_out()
    a("s_waitcnt vmcnt(0)")
    done(1)
    a("LS_cw:")
    a("s_setprio 2")
    CW = 4
    CA = 44
    VC, VD, T0, T1, TR = 114, 115, 116, 117, 118
    a("s_sub_u32 s48, s%d, 4" % S_WV)
    a("s_lshr_b32 s38, s%d, 1" % S_XC)
    a("s_lshl_b32 s38, s38, 3")
    a("s_add_u32 s38, s38, s%d" % S_IDX)
    a("s_min_u32 s38, s38, 29")
    a("s_and_b32 s35, s38, 1")
    a("s_lshr_b32 s38, s38, 1")
    a("s_lshl_b32 s38, s38, 7")
    a("s_and_b32 s39, s%d, 1" % S_XC)
    a("s_mul_i32 s39, s39, 1920")
    a("s_add_u32 s23, s38, s39")
    a("s_lshl_b32 s39, s35, 2")
    a("s_add_u32 s39, s39, s48")
    a("s_mul_i32 s39, s39, %d" % (80 * 3840))
    a("s_add_u32 s38, s23, s39")
    a("v_lshrrev_b32 v%d, 3, v0" % T0)
    a("v_and_b32 v%d, 7, v0" % T1)
    a("v_lshlrev_b32 v%d, 4, v%d" % (T1, T1))
    a("v_mul_u32_u24 v%d, 3840, v%d" % (VC, T0))
    a("v_add_u32 v%d, v%d, v%d" % (VC, VC, T1))
    a("s_waitcnt lgkmcnt(0)")
    srd(a, S_W, 6, 7, 2457600)
    for j in range(10):
        a("buffer_load_dwordx4 %s, v%d, %s, s38 offen" % (vr(CW + 4 * j, 4), VC, sr(S_W, 4)))
        if j < 9:
            a("s_add_u32 s38, s38, %d" % (8 * 3840))
    srd(a, S_WS, 42, 43, WS_END)
    srd(a, S_G, 78, 79, 819200)
    if FUSE:
        srd(a, S_DBG, 40, 41, 256)
        NPF = 0
    else:
        a("s_cmp_lg_u32 s48, 0")
        a("s_cselect_b32 s34, 0x40000, 0")
        a("v_add_u32 v%d, s34, v0" % TR)
        code_prefetch(a, S_DBG, T0, 119, "L1_spare", "L1_end", vlane="v%d" % TR, nmax=1)
        a("s_cmp_ge_u32 s%d, 2" % S_IDX)
        a("s_cselect_b32 s34, 0x40000, s34")
        a("s_lshl_b32 s33, s%d, 6" % S_IDX)
        a("s_add_u32 s34, s34, s33")
        a("v_add_u32 v%d, s34, v0" % TR)
        code_prefetch(a, S_DBG, T0, 119, "L1_end", "L_code_end", vlane="v%d" % TR, nmax=1)
        srd(a, S_DBG, 40, 41, 256)
        a("s_lshl_b32 s34, s48, 6")
        a("v_add_u32 v%d, s34, v0" % TR)
        a("v_lshlrev_b32 v%d, 21, v%d" % (T0, TR))
        a("v_mov_b32 v%d, 0" % T1)
        a("buffer_load_dword v119, v%d, %s, 0 offen" % (T0, sr(S_WS, 4)))
        a("buffer_load_dword v119, v%d, %s, 0 offen" % (T0, sr(S_G, 4)))
        a("buffer_atomic_add v%d, v%d, %s, 0 offen offset:32 sc1" % (T1, T0, sr(S_DBG, 4)))
        NPF = 5
    a("s_barrier")
    a("s_cmp_ge_u32 s2, 40")
    a("s_cbranch_scc1 LS_noclr")
    for i in range(4):
        a("v_mov_b32 v%d, 0" % (CA + i))
    a("s_lshl_b32 s38, s2, 2")
    a("s_add_u32 s38, s38, s48")
    a("s_lshl_b32 s38, s38, 10")
    a("s_add_u32 s38, s38, 0x%x" % WS_UPD)
    a("v_lshlrev_b32 v%d, 4, v0" % T1)
    a("buffer_store_dwordx4 %s, v%d, %s, s38 offen sc1" % (vr(CA, 4), T1, sr(S_WS, 4)))
    a("LS_noclr:")
    a("s_sub_u32 s38, s2, 40")
    a("s_cmp_ge_u32 s38, 3")
    a("s_cbranch_scc1 LS_noclr2")
    a("s_lshl_b32 s38, s38, 2")
    a("s_add_u32 s38, s38, s48")
    a("s_lshl_b32 s38, s38, 13")
    a("s_add_u32 s38, s38, 0x%x" % WS_FLG)
    a("v_lshlrev_b32 v%d, 7, v0" % T1)
    for i in range(4):
        a("v_mov_b32 v%d, 0" % (CA + i))
    a("buffer_store_dwordx4 %s, v%d, %s, s38 offen sc1" % (vr(CA, 4), T1, sr(S_WS, 4)))
    a("LS_noclr2:")
    a("s_waitcnt vmcnt(%d)" % NPF)
    a("LS_cs:")
    stamp(0)
    F = 64
    for j in range(10):
        for d in range(4):
            if j == 0:
                a("v_lshlrev_b32 v%d, 16, v%d" % (CA + 2 * d, CW + d))
                a("v_and_b32 v%d, 0xffff0000, v%d" % (CA + 2 * d + 1, CW + d))
            else:
                a("v_lshlrev_b32 v%d, 16, v%d" % (F + 2 * d, CW + 4 * j + d))
                a("v_and_b32 v%d, 0xffff0000, v%d" % (F + 2 * d + 1, CW + 4 * j + d))
        if j:
            for d in range(4):
                a("v_pk_add_f32 %s, %s, %s" % (vr(CA + 2 * d, 2), vr(CA + 2 * d, 2), vr(F + 2 * d, 2)))
    a("s_nop 0")
    for mode in ("row_ror:8",):
        for d in range(8):
            a("v_add_f32_dpp v%d, v%d, v%d %s row_mask:0xf bank_mask:0xf" % (CA + d, CA + d, CA + d, mode))
    for d in range(4):
        a("v_permlane32_swap_b32 v%d, v%d" % (CA + d, CA + 4 + d))
    for d in range(4):
        a("v_add_f32 v%d, v%d, v%d" % (CA + d, CA + d, CA + 4 + d))
    a("s_nop 0")
    for d in range(2):
        a("v_permlane16_swap_b32 v%d, v%d" % (CA + d, CA + 2 + d))
    a("s_nop 0")
    for d in range(2):
        a("v_add_f32 v%d, v%d, v%d" % (CA + d, CA + d, CA + 2 + d))
    a("s_lshl_b32 s38, s48, 8")
    a("s_add_u32 s38, s38, %d" % L_CP)
    a("v_and_b32 v%d, 7, v0" % T0)
    a("v_lshlrev_b32 v%d, 5, v%d" % (T0, T0))
    a("v_lshrrev_b32 v%d, 4, v0" % T1)
    a("v_lshl_add_u32 v%d, v%d, 3, v%d" % (T0, T1, T0))
    a("v_add_u32 v%d, s38, v%d" % (T0, T0))
    a("v_mov_b32 v%d, 1" % T1)
    a("ds_write_b64 v%d, %s" % (T0, vr(CA, 2)))
    a("s_mov_b64 exec, 1")
    a("s_waitcnt vmcnt(0) lgkmcnt(0)")
    a("ds_add_rtn_u32 v%d, v3, v%d" % (T0, T1))
    a("s_mov_b64 exec, -1")
    a("s_waitcnt lgkmcnt(0)")
    a("v_readfirstlane_b32 s38, v%d" % T0)
    a("s_cmp_lg_u32 s38, 3")
    a("s_cbranch_scc1 LS_cs_done")
    a("v_lshlrev_b32 v%d, 2, v0" % T0)
    a("v_add_u32 v%d, %d, v%d" % (T1, L_CP, T0))
    for j in range(4):
        a("ds_read_b32 v%d, v%d offset:%d" % (F + j, T1, 256 * j))
    a("s_lshl_b32 s38, s23, 1")
    a("s_mul_i32 s39, s35, 7680")
    a("s_add_u32 s38, s38, s39")
    a("s_add_u32 s38, s38, 0x%x" % WS_CS)
    a("s_waitcnt lgkmcnt(0)")
    a("v_add_f32 v%d, v%d, v%d" % (F, F, F + 1))
    a("v_add_f32 v%d, v%d, v%d" % (F + 2, F + 2, F + 3))
    a("v_add_f32 v%d, v%d, v%d" % (F, F, F + 2))
    a("buffer_store_dword v%d, v%d, %s, s38 offen sc1" % (F, T0, sr(S_WS, 4)))
    a("s_waitcnt vmcnt(0)")
    signal1(T0, T1)
    a("LS_cs_done:")
    stamp(1)
    a("s_cmp_lg_u32 s%d, 7" % S_WV)
    a("s_cbranch_scc1 LS_end")
    a("s_setprio 0")
    a("s_lshr_b32 s36, s2, 2")
    a("s_and_b32 s48, s2, 3")
    a("s_lshr_b32 s38, s36, 1")
    a("s_mul_i32 s38, s38, 160")
    a("s_and_b32 s39, s36, 1")
    a("s_mul_i32 s39, s39, %d" % (320 * 1280))
    a("s_add_u32 s38, s38, s39")
    a("s_mul_i32 s39, s48, %d" % (80 * 1280))
    a("s_add_u32 s38, s38, s39")
    a("s_mov_b32 s39, 0")
    a("s_movk_i32 s37, %d" % (1280 - 160))
    a("v_lshlrev_b32 v%d, 4, v0" % T1)
    a("v_mul_u32_u24 v%d, 6554, v0" % TR)
    a("s_mov_b32 s49, 13")
    a("LS_wo_ld:")
    a("v_lshrrev_b32 v%d, 16, v%d" % (T0, TR))
    a("v_mad_u32_u24 v%d, v%d, s37, v%d" % (VD, T0, T1))
    a("s_mov_b32 m0, s39")
    a("v_add_u32 v%d, %d, v%d" % (TR, 64 * 6554, TR))
    a("s_cmp_eq_u32 s49, 1")
    a("s_cselect_b32 exec_hi, 0, -1")
    a("s_add_u32 s39, s39, 1024")
    a("buffer_load_dwordx4 v%d, %s, s38 offen lds" % (VD, sr(S_G, 4)))
    a("s_add_u32 s38, s38, 1024")
    a("s_sub_u32 s49, s49, 1")
    a("s_cmp_lg_u32 s49, 0")
    a("s_cbranch_scc1 LS_wo_ld")
    a("s_mov_b64 exec, -1")
    a("v_bfe_u32 v%d, v0, 4, 1" % T0)
    a("v_bfe_u32 v%d, v0, 2, 2" % T1)
    a("v_mul_u32_u24 v%d, 160, v%d" % (TR, T1))
    a("v_and_b32 v%d, 3, v0" % T1)
    a("v_mul_u32_u24 v%d, 40, v%d" % (T1, T1))
    a("v_add_u32 v%d, v%d, v%d" % (TR, TR, T1))
    a("v_lshrrev_b32 v%d, 5, v0" % T1)
    a("v_lshl_add_u32 v%d, v%d, 3, v%d" % (TR, T1, TR))
    a("v_mul_u32_u24 v%d, 6400, v%d" % (VC, T0))
    a("v_add_u32 v%d, v%d, v%d" % (VC, VC, TR))
    a("v_mul_u32_u24 v%d, 640, v%d" % (T0, T0))
    a("v_add_u32 v%d, v%d, v%d" % (TR, TR, T0))
    a("v_and_b32 v%d, 31, v0" % VD)
    a("v_lshlrev_b32 v%d, 4, v%d" % (VD, VD))
    a("v_lshl_add_u32 v%d, v%d, 10, v%d" % (VD, T1, VD))
    a("s_lshr_b32 s36, s2, 3")
    a("s_mul_i32 s36, s36, 102400")
    a("s_add_u32 s36, s36, 0x%x" % WS_WOT)
    a("s_and_b32 s37, s2, 7")
    a("s_mul_i32 s38, s37, 10240")
    a("s_add_u32 s38, s38, s36")
    a("s_lshr_b32 s39, s37, 1")
    a("s_mul_i32 s39, s39, 5120")
    a("s_and_b32 s37, s37, 1")
    a("s_lshl_b32 s37, s37, 9")
    a("s_add_u32 s39, s39, s37")
    a("s_add_u32 s39, s39, s36")
    a("s_add_u32 s39, s39, %d" % (16 * 5120))
    a("s_waitcnt vmcnt(0)")
    for n in range(5):
        B = 4 + 12 * n
        for ps in range(3):
            if n < 4:
                a("ds_read_b64_tr_b16 %s, v%d offset:%d" % (vr(B + 4 * ps, 2), TR, 3200 * n + 16 * ps))
                a("ds_read_b64_tr_b16 %s, v%d offset:%d" % (vr(B + 2 + 4 * ps, 2), TR, 3200 * n + 16 * ps + 1280))
            else:
                a("ds_read_b64_tr_b16 %s, v%d offset:%d" % (vr(B + 4 * ps, 2), VC, 2560 + 16 * ps))
                a("ds_read_b64_tr_b16 %s, v%d offset:%d" % (vr(B + 2 + 4 * ps, 2), VC, 2560 + 16 * ps + 3200))
        if n == 4:
            a("s_mov_b32 s38, s39")
        elif n == 2:
            a("s_add_u32 s38, s38, 5120")
        o = 512 * (n & 1)
        a("s_add_u32 s37, s38, 4096")
        a("s_waitcnt lgkmcnt(0)")
        a("buffer_store_dwordx4 %s, v%d, %s, s38 offen offset:%d%s" % (vr(B, 4), VD, sr(S_WS, 4), o, XM))
        a("buffer_store_dwordx4 %s, v%d, %s, s38 offen offset:%d%s" % (vr(B + 4, 4), VD, sr(S_WS, 4), o + 2048, XM))
        a("s_mov_b32 exec_hi, 0")
        a("buffer_store_dwordx4 %s, v%d, %s, s37 offen offset:%d%s" % (vr(B + 8, 4), VD, sr(S_WS, 4), o, XM))
        a("s_mov_b64 exec, -1")
    if FUSE:
        a("v_mov_b32 v2, 0")
        a("s_mov_b32 s30, 0x10000")
        a("s_mov_b64 exec, 1")
        a("LS_s1:")
        a("buffer_load_dword v3, v2, %s, 0 offen offset:128 sc1" % sr(S_DBG, 4))
        a("s_sub_u32 s30, s30, 1")
        a("s_cbranch_scc1 LS_s1d")
        a("s_waitcnt vmcnt(0)")
        a("v_readfirstlane_b32 s29, v3")
        a("s_cmp_ge_u32 s29, 64")
        a("s_cbranch_scc1 LS_s1d")
        a("s_sleep 24")
        a("s_branch LS_s1")
        a("LS_s1d:")
        a("s_mov_b64 exec, -1")
    a("LS_end:")
    stamp(5)
    diag_out()
    a("s_waitcnt vmcnt(0)")
    done(1)
    return 120
```

```python
from common import *
import os
DIAG = os.environ.get("DIAG")
RT = os.environ.get("RT")
ROT = os.environ.get("K2_SPEC", "1") == "1"
K2_PRIO = os.environ.get("K2_PRIO", "5,7,99")
K2_K0 = int(os.environ.get("K2_K0", "2"))
K2_NW = 12
L_MARK = 10240
L_W0, L_W1 = 11264, 92160
L_EX = 62464
L_GX = 143360
L_P2 = 2560
L_Y = 0
MARK = 0xffff7fff
SPIN = 1 << 18

def gen_k2(a, name="attn_kernel"):
    QBW, NG, KS, NT, UN = 2, 4, 2, 32, int(os.environ.get('K2_UN', '4'))
    NIT = NT // UN
    r = [4]
    def alloc(n):
        b = r[0]; r[0] += (n + 1) // 2 * 2; return b
    QA = [alloc(4) for _ in range(QBW)]
    QB = [alloc(2) for _ in range(QBW)]
    KA, KB = alloc(4), alloc(2)
    V0, V1 = alloc(4), alloc(4)
    P0, P1 = alloc(4), alloc(4)
    SA, SB = alloc(16), alloc(16)
    AKA, AKB, AV, AV1 = alloc(1), r[0] - 1, alloc(1), r[0] - 1
    assert r[0] <= 104
    O = [104, 120]
    MS, PK, A, B = 136, 120, 156, 157
    M = [162, 163]
    T0, T1, T2, T3 = 164, 165, 166, 167
    LANE = 0
    S_KV, S_Q = 8, 12
    S_H, S_QB, S_W, S_T = 16, 17, 18, 19
    S_VM, S_HI = 20, 22
    S_IT, S_FB, S_KS, S_G = 24, 25, 26, 27
    S_TMP = 28
    qk1 = lambda S, q: a("v_mfma_f32_32x32x16_bf16 %s, %s, %s, 0" % (vr(S, 16), vr(KA, 4), vr(QA[q], 4)))
    qk2 = lambda S, q: a("v_mfma_f32_32x32x8_bf16 %s, %s, %s, %s" % (vr(S, 16), vr(KB, 2), vr(QB[q], 2), vr(S, 16)))
    pv0 = lambda q: a("v_mfma_f32_32x32x16_bf16 %s, %s, %s, %s" % (vr(O[q], 16), vr(V0, 4), vr(P0, 4), vr(O[q], 16)))
    pv1 = lambda q: a("v_mfma_f32_32x32x16_bf16 %s, %s, %s, %s" % (vr(O[q], 16), vr(V1, 4), vr(P1, 4), vr(O[q], 16)))
    rka = lambda t: a("ds_read_b128 %s, v%d offset:%d" % (vr(KA, 4), AKA, t * 2560))
    rkb = lambda t: a("ds_read_b32 v%d, v%d offset:%d" % (KB, AKB, t * 2560 + 1024))
    rv0 = lambda t: a("ds_read_b128 %s, v%d offset:%d" % (vr(V0, 4), AV, t * 2560 + 1280))
    rv1 = lambda t: a("ds_read_b128 %s, v%d offset:%d" % (vr(V1, 4), AV1, t * 2560 + 1280))
    mon = lambda: a("s_mov_b64 exec, %s" % sr(S_VM, 2))
    moff = lambda: a("s_mov_b64 exec, -1")
    wl = lambda k: a("s_waitcnt lgkmcnt(%d)" % k)
    def diag(regs, base):
        if DIAG:
            a("s_memtime s[46:47]")
            a("s_memrealtime s[48:49]")
            a("s_waitcnt lgkmcnt(0)")
            a("s_sub_u32 s44, s44, s40")
            a("s_sub_u32 s46, s46, s40")
            a("s_sub_u32 s48, s48, s42")
            a("s_sub_u32 s52, s52, s40")
            a("v_mov_b32 v%d, s44" % regs)
            a("v_mov_b32 v%d, s46" % (regs + 1))
            a("v_mov_b32 v%d, s48" % (regs + 2))
            a("v_mov_b32 v%d, s52" % (regs + 3))
            a("s_lshl_b32 s50, s2, 4")
            a("s_add_u32 s50, s50, s%d" % S_W)
            a("s_lshl_b32 s50, s50, 4")
            a("s_add_u32 s50, s50, 0x%x" % WS_DIAG)
            a("v_mov_b32 v%d, 0" % base)
            a("buffer_store_dwordx4 %s, v%d, %s, s50 offen" % (vr(regs, 4), base, sr(S_Q, 4)))

    SC = " sc1" if FUSE else ""
    if FUSE:
        a("L2_entry:")
        a("s_mov_b32 s4, s42")
        a("s_mov_b32 s5, s43")
        a("s_mov_b32 s%d, s20" % S_W)
        a("s_setprio 3")
        if RT:
            a("s_memrealtime s[94:95]")
    else:
        kernel_begin(a, name)
        a("s_cmp_ge_u32 s2, 256")
        a("s_cbranch_scc1 L2_end")
        a("s_load_dwordx2 s[4:5], s[0:1], %d" % KA_WS)
        if DIAG:
            a("s_memtime s[40:41]")
            a("s_memrealtime s[42:43]")
        a("s_setprio 3")
        a("v_lshrrev_b32 v%d, 6, v0" % T0)
        a("v_and_b32 v0, 63, v0")
    a("s_and_b32 s%d, s2, 7" % S_H)
    a("s_lshl_b32 s%d, s%d, 2" % (S_H, S_H))
    a("s_bfe_u32 s%d, s2, 0x20003" % S_TMP)
    a("s_add_u32 s%d, s%d, s%d" % (S_H, S_H, S_TMP))
    if not FUSE:
        a("v_readfirstlane_b32 s%d, v%d" % (S_W, T0))
    a("s_mul_i32 s%d, s%d, 163840" % (S_TMP + 1, S_H))
    a("s_mov_b32 s%d, 163840" % (S_KV + 2))
    a("s_mov_b32 s%d, 0x20000" % (S_KV + 3))
    a("s_cmp_lt_u32 s%d, 4" % S_W)
    a("s_cbranch_scc1 L2_helper")
    a("s_lshr_b32 s%d, s2, 5" % S_QB)
    a("s_mov_b32 s%d, 0x000fffff" % S_VM)
    a("s_mov_b32 s%d, 0x000fffff" % (S_VM + 1))
    a("s_mov_b32 s%d, 0" % S_HI)
    a("s_mov_b32 s%d, -1" % (S_HI + 1))
    a("v_and_b32 v%d, 31, v%d" % (T0, LANE))
    a("v_lshrrev_b32 v%d, 5, v%d" % (T1, LANE))
    a("v_lshlrev_b32 v%d, 4, v%d" % (AKA, LANE))
    a("v_and_b32 v%d, 7, v%d" % (AKB, LANE))
    a("v_lshlrev_b32 v%d, 4, v%d" % (AKB, AKB))
    a("v_and_b32 v%d, 16, v%d" % (T2, LANE))
    a("v_lshl_add_u32 v%d, v%d, 3, v%d" % (AKB, T2, AKB))
    a("v_and_b32 v%d, 8, v%d" % (T2, LANE))
    a("v_add_u32 v%d, v%d, v%d" % (AKB, AKB, T2))
    a("v_lshl_add_u32 v%d, v%d, 2, v%d" % (AKB, T1, AKB))
    a("s_and_b32 s%d, s%d, 3" % (S_G, S_W))
    a("s_lshr_b32 s%d, s%d, 3" % (S_KS, S_W))
    a("s_lshl_b32 s%d, s%d, 3" % (S_T, S_QB))
    a("s_lshl_b32 s%d, s%d, 1" % (S_TMP, S_G))
    a("s_add_u32 s%d, s%d, s%d" % (S_T, S_T, S_TMP))
    a("s_mul_i32 s%d, s%d, 81920" % (S_TMP, S_H))
    a("s_mul_i32 s%d, s%d, 1280" % (S_TMP + 2, S_T))
    a("s_add_u32 s%d, s%d, s%d" % (S_TMP, S_TMP, S_TMP + 2))
    a("s_add_u32 s%d, s%d, 0x%x" % (S_TMP, S_TMP, WS_Q))
    a("s_mul_i32 s%d, s%d, %d" % (S_TMP + 3, S_KS, NT * 2560))
    a("s_waitcnt lgkmcnt(0)")
    srd(a, S_Q, 4, 5, WS_END)
    def qloads():
        for q in range(QBW):
            a("buffer_load_dwordx4 %s, v%d, %s, s%d offen offset:%d%s" % (vr(QA[q], 4), AKA, sr(S_Q, 4), SQ0 + q, 0, SC))
            a("buffer_load_dword v%d, v%d, %s, s%d offen offset:%d%s" % (QB[q], AKB, sr(S_Q, 4), SQ0 + q, 1024, SC))
    if FUSE:
        a("s_sub_u32 s%d, s%d, s%d" % (S_TMP, S_TMP, S_TMP + 3))
    SQ0 = 74
    a("s_mul_i32 s%d, s%d, 1280" % (SQ0 + 1, S_KS))
    a("s_add_u32 s%d, s%d, s%d" % (SQ0, S_TMP, SQ0 + 1))
    a("s_sub_u32 s%d, s%d, s%d" % (SQ0 + 1, S_TMP, SQ0 + 1))
    a("s_add_u32 s%d, s%d, 1280" % (SQ0 + 1, SQ0 + 1))
    if not FUSE:
        qloads()
    a("s_add_u32 s%d, s4, s%d" % (S_KV, S_TMP + 1))
    a("s_addc_u32 s%d, s5, 0" % (S_KV + 1))
    a("v_lshrrev_b32 v%d, 2, v%d" % (T2, T0))
    a("v_add_u32 v%d, v%d, v%d" % (AV, T2, T1))
    a("v_and_b32 v%d, 3, v%d" % (AV, AV))
    a("v_lshlrev_b32 v%d, 6, v%d" % (AV, AV))
    a("v_lshl_add_u32 v%d, v%d, 8, v%d" % (AV, T2, AV))
    a("v_and_b32 v%d, 3, v%d" % (T2, LANE))
    a("v_lshl_add_u32 v%d, v%d, 4, v%d" % (AV, T2, AV))
    a("v_add_u32 v%d, s%d, v%d" % (AKA, S_TMP + 3, AKA))
    a("v_add_u32 v%d, s%d, v%d" % (AKB, S_TMP + 3, AKB))
    a("v_add_u32 v%d, s%d, v%d" % (AV, S_TMP + 3, AV))
    a("v_xor_b32 v%d, 128, v%d" % (AV1, AV))
    a("v_mov_b32 v%d, 0x3f80" % (KB + 1))
    for q in range(QBW):
        a("v_mov_b32 v%d, 0" % (QB[q] + 1))
    for i in range(4):
        a("v_mov_b32 v%d, 0" % (P1 + i))
    for q in range(QBW):
        for i in range(16):
            a("v_mov_b32 v%d, 0" % (O[q] + i))
    a("v_mov_b32 v%d, 0x3f803f80" % T3)
    a("v_cmp_eq_u32 vcc, 20, v%d" % T0)
    a("v_cmp_eq_u32 s[%d:%d], 24, v%d" % (S_TMP + 4, S_TMP + 5, T0))
    a("s_or_b64 vcc, vcc, s[%d:%d]" % (S_TMP + 4, S_TMP + 5))
    a("s_mov_b32 s%d, 0" % S_IT)
    a("s_mov_b32 s%d, 0" % S_FB)
    a("v_cndmask_b32 v%d, 0, v%d, vcc" % (T3, T3))
    for i in range(8):
        a("v_mov_b32 v%d, v%d" % (V0 + i, T3))
    S_RB, S_CB, S_TT = 70, 71, 72
    ACC, OF, WF = 4, 24, 64
    VB = 3
    S_O, S_WA = 56, 64
    def tile_ids():
        a("s_and_b32 s%d, s2, 7" % S_RB)
        a("s_lshl_b32 s%d, s%d, 2" % (S_RB, S_RB))
        a("s_lshr_b32 s%d, s2, 6" % S_TMP)
        a("s_add_u32 s%d, s%d, s%d" % (S_RB, S_RB, S_TMP))
        a("s_bfe_u32 s%d, s2, 0x30003" % S_CB)
    tile_ids()
    a("s_lshl_b32 s%d, s%d, 2" % (S_TT, S_RB))
    a("s_add_u32 s%d, s%d, s%d" % (S_TT, S_TT, S_G))
    a("s_lshl_b32 s%d, s%d, 14" % (S_O, S_TT))
    a("s_lshl_b32 s%d, s%d, 13" % (S_TMP + 2, S_KS))
    a("s_add_u32 s%d, s%d, s%d" % (S_O, S_O, S_TMP + 2))
    a("s_add_u32 s%d, s%d, 0x%x" % (S_O, S_O, WS_O))
    a("s_lshr_b32 s60, s%d, 1" % S_TT)
    a("s_lshl_b32 s60, s60, 13")
    a("s_and_b32 s%d, s%d, 1" % (S_TMP, S_TT))
    a("s_lshl_b32 s%d, s%d, 7" % (S_TMP, S_TMP))
    a("s_add_u32 s60, s60, s%d" % S_TMP)
    a("s_lshl_b32 s%d, s%d, 12" % (S_TMP + 2, S_KS))
    a("s_add_u32 s60, s60, s%d" % (S_TMP + 2))
    a("s_add_u32 s60, s60, 0x%x" % WS_OB)
    waddr = lambda ks: L_W0 + 5120 * ks if ks < 10 else L_W1 + 5120 * (ks - 10)
    first_ks = lambda i, sp: 8 * sp + 2 * i if i < 4 else 16 + 2 * sp + (i - 4)
    a("s_cmp_eq_u32 s%d, 0" % S_KS)
    for i in (4, 5):
        a("s_mov_b32 s%d, %d" % (S_WA + i, waddr(first_ks(i, 1))))
        a("s_cselect_b32 s%d, %d, s%d" % (S_WA + i, waddr(first_ks(i, 0)), S_WA + i))
    a("s_lshl_b32 s%d, s%d, 2" % (S_TMP + 3, S_KS))
    for i in (3, 2, 1, 0):
        a("s_add_u32 s%d, s%d, %d" % (S_TMP, S_CB, i) if ROT else "s_mov_b32 s%d, %d" % (S_TMP, i))
        a("s_and_b32 s%d, s%d, 3" % (S_TMP, S_TMP))
        a("s_lshl_b32 s%d, s%d, 11" % (S_TMP + 1, S_TMP))
        a("s_add_u32 s%d, s%d, s%d" % (S_O + i, S_O, S_TMP + 1))
        a("s_add_u32 s%d, s%d, s%d" % (S_TMP, S_TMP, S_TMP + 3))
        a("s_mul_i32 s%d, s%d, 10240" % (S_TMP + 1, S_TMP))
        a("s_cmp_ge_u32 s%d, 5" % S_TMP)
        a("s_cselect_b32 s%d, %d, 0" % (S_TMP, L_W1 - 51200 - L_W0))
        a("s_add_u32 s%d, s%d, s%d" % (S_TMP, S_TMP, S_TMP + 1))
        a("s_add_u32 s%d, s%d, %d" % (S_WA + i, S_TMP, L_W0))
    a("v_lshlrev_b32 v1, 4, v0")
    a("v_and_b32 v2, 15, v0")
    a("v_lshrrev_b32 v%d, 4, v0" % VB)
    a("v_lshlrev_b32 v%d, 9, v%d" % (VB, VB))
    a("v_lshl_add_u32 v%d, v2, 3, v%d" % (VB, VB))
    a("v_bfe_u32 v%d, v%d, 4, 1" % (T1, LANE))
    a("v_and_b32 v%d, 7, v%d" % (T2, LANE))
    a("v_lshl_add_u32 v%d, v%d, 3, v%d" % (T1, T1, T2))
    a("v_bfe_u32 v%d, v%d, 3, 1" % (T2, LANE))
    a("v_lshlrev_b32 v%d, 14, v%d" % (A, T2))
    a("v_lshl_add_u32 v%d, v%d, 4, v%d" % (A, T1, A))
    a("v_lshlrev_b32 v%d, 7, v%d" % (B, T2))
    a("v_lshl_add_u32 v%d, v%d, 3, v%d" % (B, T1, B))
    a("v_lshrrev_b32 v%d, 5, v%d" % (T1, LANE))
    a("v_lshl_add_u32 v%d, v%d, 8, v%d" % (A, T1, A))
    a("s_add_u32 s%d, s%d, s%d" % (S_T, S_T, S_KS))
    a("s_lshl_b32 s61, s%d, 15" % S_T)
    a("s_lshl_b32 s%d, s%d, 9" % (S_TMP + 1, S_H))
    a("s_add_u32 s61, s61, s%d" % (S_TMP + 1))
    a("s_lshl_b32 s62, s%d, 13" % S_T)
    a("s_lshl_b32 s%d, s%d, 8" % (S_TMP + 2, S_H))
    a("s_add_u32 s62, s62, s%d" % (S_TMP + 2))
    a("s_add_u32 s61, s61, 0x%x" % WS_O)
    a("s_add_u32 s62, s62, 0x%x" % WS_OB)
    a("s_mul_i32 s%d, s%d, 7168" % (S_TMP, S_G))
    a("s_add_u32 s%d, s%d, %d" % (S_TMP, S_TMP, L_EX))
    VF = 155
    a("v_and_b32 v%d, 3, v0" % VF)
    a("v_lshlrev_b32 v%d, 3, v%d" % (VF, VF))
    a("v_bfe_u32 v%d, v0, 2, 2" % T1)
    a("v_add_u32 v%d, v%d, v%d" % (VF, VF, T1))
    a("v_lshlrev_b32 v%d, 7, v%d" % (VF, VF))
    a("s_lshr_b32 s63, s%d, 2" % S_RB)
    a("s_lshl_b32 s63, s63, 3")
    a("s_add_u32 s63, s63, s%d" % S_KS)
    a("s_lshl_b32 s63, s63, 9")
    a("s_add_u32 s63, s63, 0x%x" % (FLG_A + 4))
    a("s_lshl_b32 s73, s2, 7")
    a("s_add_u32 s73, s73, 0x%x" % (FLG_A + 4))
    a("s_cmp_eq_u32 s%d, 4" % S_W)
    a("s_cselect_b32 s73, s73, 0x7f000000")
    XR, XW = 158, 159
    a("s_mul_i32 s%d, s%d, 3584" % (S_TMP + 1, S_KS))
    a("s_add_u32 s%d, s%d, s%d" % (S_TMP + 2, S_TMP, S_TMP + 1))
    a("s_sub_u32 s%d, s%d, s%d" % (S_TMP, S_TMP, S_TMP + 1))
    a("s_add_u32 s%d, s%d, 3584" % (S_TMP, S_TMP))
    a("v_lshl_add_u32 v%d, v%d, 4, s%d" % (XR, LANE, S_TMP + 2))
    a("v_lshl_add_u32 v%d, v%d, 4, s%d" % (XW, LANE, S_TMP))
    a("v_lshl_add_u32 v%d, v%d, 3, s%d" % (XR + 2, LANE, S_TMP + 2))
    a("v_lshl_add_u32 v%d, v%d, 3, s%d" % (XW + 2, LANE, S_TMP))
    if FUSE:
        a("v_mov_b32 v%d, 0" % T0)
        a("v_mov_b32 v2, 1")
        a("s_waitcnt vmcnt(0)")
        a("s_mov_b64 exec, 1")
        a("buffer_store_dword v2, v%d, %s, s%d offen sc1" % (T0, sr(S_Q, 4), S_PFL))
        a("s_mov_b64 exec, -1")
        if RT:
            a("s_memrealtime s[96:97]")
        a("s_barrier")
        a("s_barrier")
        qloads()
    a("s_barrier")
    if RT:
        a("s_memrealtime s[98:99]")
    if DIAG:
        a("s_memtime s[52:53]")
    rka(0); rkb(0)
    mon(); rv0(0); moff()
    a("s_waitcnt vmcnt(0) lgkmcnt(%d)" % (0 if (DIAG or RT) else 1))
    def rowmax(dst, S, first):
        a("v_max3_f32 v%d, v%d, v%d, v%d" % (T0, S, S + 1, S + 2))
        a("v_max3_f32 v%d, v%d, v%d, v%d" % (T1, S + 3, S + 4, S + 5))
        a("v_max3_f32 v%d, v%d, v%d, v%d" % (T0, T0, S + 6, S + 7))
        a("v_max3_f32 v%d, v%d, v%d, v%d" % (T1, T1, S + 8, S + 9))
        a("v_max3_f32 v%d, v%d, v%d, v%d" % (T0, T0, S + 10, S + 11))
        a("v_max3_f32 v%d, v%d, v%d, v%d" % (T1, T1, S + 12, S + 13))
        a("v_max3_f32 v%d, v%d, v%d, v%d" % (T0, T0, S + 14, S + 15))
        if first:
            a("v_max_f32 v%d, v%d, v%d" % (dst, T0, T1))
        else:
            a("v_max3_f32 v%d, v%d, v%d, v%d" % (dst, T0, T1, dst))
    def xhalf_max(rr):
        a("v_mov_b32 v%d, v%d" % (T1, rr))
        a("s_nop 1")
        a("v_permlane32_swap_b32 v%d, v%d" % (rr, T1))
        a("s_nop 1")
        a("v_max_f32 v%d, v%d, v%d" % (rr, rr, T1))
    SS = [SA, SB]
    for q in range(QBW):
        qk1(SS[q], q); qk2(SS[q], q)
    a("s_nop 9")
    for q in range(QBW):
        rowmax(M[q], SS[q], True)
        xhalf_max(M[q])
        a("v_and_b32 v%d, 0xffff0000, v%d" % (T0, M[q]))
        a("v_sub_f32 v%d, v%d, v%d" % (T1, M[q], T0))
        a("v_and_b32 v%d, 0xffff0000, v%d" % (T1, T1))
        a("v_add_f32 v%d, v%d, v%d" % (M[q], T0, T1))
        a("v_cndmask_b32 v%d, v%d, v%d, %s" % (T0, T0, T1, sr(S_HI, 2)))
        a("v_xor_b32 v%d, 0x80000000, v%d" % (T0, T0))
        a("v_lshrrev_b32 v%d, 16, v%d" % (QB[q] + 1, T0))
        if q == 0:
            qk1(SA, 0)
            a("s_nop 0")
            qk2(SA, 0)
    if DIAG:
        a("s_memtime s[44:45]")
        a("s_waitcnt lgkmcnt(0)")
    a(".p2align 6")
    a("L2_loop:")
    def adv():
        a("v_add_u32 v%d, %d, v%d" % (AKA, UN * 2560, AKA))
        a("v_add_u32 v%d, %d, v%d" % (AKB, UN * 2560, AKB))
        a("v_add_u32 v%d, %d, v%d" % (AV, UN * 2560, AV))
        a("v_add_u32 v%d, %d, v%d" % (AV1, UN * 2560, AV1))
    for n in range(UN):
        for ph in range(2):
            Sc, Sn = (SA, SB) if ph == 0 else (SB, SA)
            ex = lambda i: a("v_exp_f32 v%d, v%d" % (Sc + i, Sc + i))
            cv = lambda i: a("v_cvt_pk_bf16_f32 v%d, v%d, v%d" % (P0 + i, Sc + 2 * i, Sc + 2 * i + 1))
            if ph == 0:
                qk1(Sn, 1); rka(n + 1); ex(0); ex(1); ex(2); ex(3); cv(0); cv(1)
                pv1(1); mon(); rv1(n); moff(); ex(4); ex(5); ex(6); ex(7); cv(2); cv(3)
                qk2(Sn, 1); rkb(n + 1); ex(8); ex(9); ex(10); ex(11); cv(4); cv(5); wl(2)
                pv0(0); ex(12); ex(13); ex(14); ex(15); cv(6); cv(7)
            else:
                qk1(Sn, 0); ex(0); ex(1); ex(2); ex(3); cv(0); cv(1); wl(0)
                pv1(0); ex(4); ex(5); ex(6); ex(7); cv(2); cv(3)
                qk2(Sn, 0); ex(8); ex(9); ex(10); ex(11); cv(4); cv(5)
                pv0(1); mon(); rv0(n + 1); moff(); ex(12); ex(13); ex(14); ex(15)
                if n == UN - 1:
                    adv()
                cv(6); cv(7)
    if DIAG == "2":
        a("s_sub_u32 s54, s54, s40")
        a("s_mov_b32 m0, s%d" % S_IT)
        a("s_nop 0")
        a("v_writelane_b32 v2, s54, m0")
        a("s_memtime s[54:55]")
    a("s_add_u32 s%d, s%d, 1" % (S_IT, S_IT))
    pr = [int(x) for x in K2_PRIO.split(",")]
    SYNC_IT = 4 // UN
    MARK_IT = [16 // UN, 24 // UN]
    special = sorted(set([SYNC_IT] + MARK_IT + [p for p in pr if p < NIT] + [NIT]))
    mask = sum(1 << s for s in special)
    a("s_bitcmp1_b32 0x%x, s%d" % (mask, S_IT))
    a("s_cbranch_scc0 L2_loop")
    for s in special:
        if s == NIT:
            continue
        a("s_cmp_lg_u32 s%d, %d" % (S_IT, s))
        a("s_cbranch_scc1 L2_sp%d" % s)
        if s in pr:
            a("s_setprio %d" % (2 - pr.index(s)))
        if s == SYNC_IT:
            a("s_barrier")
        if s in MARK_IT:
            a("s_lshl_b32 s%d, s%d, 2" % (S_TMP, S_W))
            a("s_add_u32 s%d, s%d, %d" % (S_TMP, S_TMP, L_MARK - 16 + 32 * MARK_IT.index(s)))
            a("v_mov_b32 v%d, s%d" % (T0, S_TMP))
            a("v_mov_b32 v%d, 0x%x" % (T1, MARK))
            a("ds_write_b32 v%d, v%d" % (T0, T1))
            wl(0)
        a("s_branch L2_loop")
        a("L2_sp%d:" % s)
    wl(0)
    pv1(QBW - 1)
    a("L2_epi:")
    if RT:
        a("s_memrealtime s[44:45]")
    if DIAG == "2":
        a("s_lshl_b32 s50, s2, 4")
        a("s_add_u32 s50, s50, s%d" % S_W)
        a("s_lshl_b32 s50, s50, 8")
        a("s_add_u32 s50, s50, 0x%x" % (WS_DIAG - 0x100000))
        a("v_lshlrev_b32 v3, 2, v%d" % LANE)
        a("buffer_store_dword v2, v3, %s, s50 offen" % sr(S_Q, 4))
    diag(P0, T0)
    a("s_nop 15")
    a("v_mov_b32 v%d, 0x%x" % (T2, (127 - 30) << 23))
    a("v_mov_b32 v%d, 0x%x" % (T3, (127 + 30) << 23))
    a("s_mov_b64 vcc, 0")
    for q in range(QBW):
        Oq = O[q]
        a("v_cndmask_b32 v%d, v%d, v%d, %s" % (Oq + 12, Oq + 12, Oq + 8, sr(S_HI, 2)))
        a("v_mov_b32 v%d, v%d" % (Oq + 13, M[q]))
        a("v_cmp_nge_f32 s[%d:%d], v%d, v%d" % (S_TMP + 4, S_TMP + 5, Oq + 12, T2))
        a("v_cmp_nle_f32 s[%d:%d], v%d, v%d" % (S_TMP + 6, S_TMP + 7, Oq + 12, T3))
        a("s_or_b64 vcc, vcc, s[%d:%d]" % (S_TMP + 4, S_TMP + 5))
        a("s_or_b64 vcc, vcc, s[%d:%d]" % (S_TMP + 6, S_TMP + 7))
    a("s_cselect_b32 s%d, 1, 0" % S_TMP)
    a("s_andn2_b32 s%d, s%d, s%d" % (S_TMP, S_TMP, S_FB))
    a("s_cbranch_scc1 L2_fallback")
    a("s_setprio 3")
    a("s_barrier")
    a("ds_write_b64 v%d, %s offset:%d" % (XW + 2, vr(O[1] + 12, 2), 3072))
    for c in range(3):
        a("ds_write_b128 v%d, %s offset:%d" % (XW, vr(O[1] + 4 * c, 4), 1024 * c))
    def bloads(i):
        if i < 4:
            return ["buffer_load_dwordx4 %s, v1, %s, s%d offen offset:%d sc1" % (vr(OF + 8 * i + 4 * q, 4), sr(S_Q, 4), S_O + i, 1024 * q) for q in range(2)]
        return ["buffer_load_dwordx2 %s, v%d, %s, s60 offen offset:%d sc1" % (vr(OF + 32 + 4 * (i - 4) + 2 * h, 2), VB, sr(S_Q, 4), 2048 * (i - 4) + 256 * h) for h in range(2)]
    SPEC = os.environ.get("K2_SPEC", "1") == "1"
    EARLY = os.environ.get("K2_EARLY", "1") == "1" and not SPEC
    if EARLY:
        for l in bloads(4) + bloads(5):
            a(l)
    wl(0)
    a("s_barrier")
    Oq = O[0]
    a("ds_read_b64 %s, v%d offset:%d" % (vr(MS + 12, 2), XR + 2, 3072))
    for c in range(3):
        a("ds_read_b128 %s, v%d offset:%d" % (vr(MS + 4 * c, 4), XR, 1024 * c))
    wl(3)
    a("v_max_f32 v%d, v%d, v%d" % (T1, Oq + 13, MS + 13))
    a("v_sub_f32 v%d, v%d, v%d" % (T2, Oq + 13, T1))
    a("v_sub_f32 v%d, v%d, v%d" % (T3, MS + 13, T1))
    a("v_exp_f32 v%d, v%d" % (T2, T2))
    a("v_exp_f32 v%d, v%d" % (T3, T3))
    a("v_mul_f32 v%d, v%d, v%d" % (PK, Oq + 12, T2))
    a("v_fmac_f32 v%d, v%d, v%d" % (PK, MS + 12, T3))
    a("v_rcp_f32 v%d, v%d" % (PK + 1, PK))
    a("s_nop 0")
    a("v_mul_f32 v%d, v%d, v%d" % (T2, T2, PK + 1))
    a("v_mul_f32 v%d, v%d, v%d" % (T3, T3, PK + 1))
    for i in range(12):
        a("v_mul_f32 v%d, v%d, v%d" % (Oq + i, Oq + i, T2))
    wl(0)
    for i in range(12):
        a("v_fmac_f32 v%d, v%d, v%d" % (Oq + i, MS + i, T3))
    for i in range(6):
        a("v_cvt_pk_bf16_f32 v%d, v%d, v%d" % (PK + i, Oq + 2 * i, Oq + 2 * i + 1))
    for i in range(6):
        a("v_min_u32 v%d, -2, v%d" % (PK + i, PK + i))
    a("buffer_store_dwordx4 %s, v%d, %s, s61 offen sc1" % (vr(PK, 4), A, sr(S_Q, 4)))
    a("s_mov_b32 exec_hi, 0")
    a("buffer_store_dwordx2 %s, v%d, %s, s62 offen sc1" % (vr(PK + 4, 2), B, sr(S_Q, 4)))
    a("s_mov_b64 exec, -1")
    if RT:
        a("s_memrealtime s[52:53]")
        a("s_mov_b32 s91, 0")
    if os.environ.get("K2_ACK", "1") == "1":
        a("s_waitcnt vmcnt(0)")
    a("s_barrier")
    if RT == "2":
        a("s_waitcnt vmcnt(0)")
        a("s_memrealtime s[44:45]")
    if os.environ.get("K2_DLY"):
        a("s_sleep %s" % os.environ.get("K2_DLY"))
    FLAGW = os.environ.get("K2_FLAGW", "0") == "1"
    if FLAGW:
        a("v_mov_b32 v%d, 0" % T0)
        a("v_mov_b32 v%d, 1" % T1)
        a("s_mov_b64 exec, 1")
        a("buffer_store_dword v%d, v%d, %s, s73 offen sc1" % (T1, T0, sr(S_Q, 4)))
        a("s_mov_b64 exec, -1")
        a("buffer_load_dword v%d, v%d, %s, s63 offen sc1" % (T2, VF, sr(S_Q, 4)))
    if not EARLY and not SPEC:
        for l in bloads(4) + bloads(5):
            a(l)
    S_PEND = S_TMP + 2
    if SPEC:
        order = [int(c) for c in os.environ.get('K2_ORD', '041523')]
        AHD = int(os.environ.get("K2_AHD", "1"))
        WB = [WF, 104]
        nkf = lambda i: 2 if i < 4 else 1
        bof = lambda i: OF + 8 * i if i < 4 else OF + 32 + 4 * (i - 4)
        def wreads(pos):
            i = order[pos]
            a("v_add_u32 v2, s%d, v1" % (S_WA + i))
            for n in range(5 * nkf(i)):
                a("ds_read_b128 %s, v2 offset:%d" % (vr(WB[pos & 1] + 4 * n, 4), 1024 * n))
        def chk(i):
            b0 = bof(i)
            a("v_max3_u32 v%d, v%d, v%d, v%d" % (T0, b0, b0 + 1, b0 + 2))
            if nkf(i) == 2:
                a("v_max3_u32 v%d, v%d, v%d, v%d" % (T1, b0 + 3, b0 + 4, b0 + 5))
                a("v_max3_u32 v%d, v%d, v%d, v%d" % (T0, T0, b0 + 6, b0 + 7))
                a("v_max_u32 v%d, v%d, v%d" % (T0, T0, T1))
            else:
                a("v_max_u32 v%d, v%d, v%d" % (T0, T0, b0 + 3))
            a("v_cmp_eq_u32 vcc, -1, v%d" % T0)
        if not FLAGW:
            for i in order[:AHD]:
                for l in bloads(i):
                    a(l)
        wreads(0)
        for i in range(20):
            a("v_mov_b32 v%d, 0" % (ACC + i))
        a("s_mov_b32 s%d, 63" % S_PEND)
        a("s_mov_b32 s%d, %d" % (S_TMP + 1, SPIN))
        if FLAGW:
            a("L2_fw:")
            a("s_waitcnt vmcnt(0)")
            a("v_cmp_eq_u32 vcc, 0, v%d" % T2)
            a("s_cbranch_vccz L2_fg")
            a("s_sleep %s" % os.environ.get("K2_FS", "1"))
            a("buffer_load_dword v%d, v%d, %s, s63 offen sc1" % (T2, VF, sr(S_Q, 4)))
            a("s_sub_u32 s%d, s%d, 1" % (S_TMP + 1, S_TMP + 1))
            a("s_cbranch_scc0 L2_fw")
            a("s_waitcnt vmcnt(0)")
            a("L2_fg:")
            a("s_mov_b32 s%d, %d" % (S_TMP + 1, SPIN))
            if RT == "1":
                a("s_memrealtime s[44:45]")
            for i in order[:AHD]:
                for l in bloads(i):
                    a(l)
        for pos, i in enumerate(order):
            if pos + AHD < 6:
                for l in bloads(order[pos + AHD]):
                    a(l)
            wl(0)
            if pos < 5:
                wreads(pos + 1)
            a("s_waitcnt vmcnt(%d)" % (2 * (min(5, pos + AHD) - pos)))
            chk(i)
            a("s_cbranch_vccnz L2_f%d" % i)
            a("s_bitset0_b32 s%d, %d" % (S_PEND, i))
            for n in range(5 * nkf(i)):
                c = vr(ACC + 4 * (n % 5), 4)
                a("v_mfma_f32_16x16x32_bf16 %s, %s, %s, %s" % (c, vr(WB[pos & 1] + 4 * n, 4), vr(bof(i) + 4 * (n // 5), 4), c))
            a("L2_f%d:" % i)
        a("s_branch L2_pchk")
        a("L2_pass:")
        for pos, i in enumerate(order):
            nk = 2 if i < 4 else 1
            b0 = OF + 8 * i if i < 4 else OF + 32 + 4 * (i - 4)
            a("s_bitcmp1_b32 s%d, %d" % (S_PEND, i))
            a("s_cbranch_scc0 L2_pn%d" % i)
            a("v_add_u32 v2, s%d, v1" % (S_WA + i))
            for n in range(5 * nk):
                a("ds_read_b128 %s, v2 offset:%d" % (vr(WF + 4 * n, 4), 1024 * n))
            a("v_max3_u32 v%d, v%d, v%d, v%d" % (T0, b0, b0 + 1, b0 + 2))
            if nk == 2:
                a("v_max3_u32 v%d, v%d, v%d, v%d" % (T1, b0 + 3, b0 + 4, b0 + 5))
                a("v_max3_u32 v%d, v%d, v%d, v%d" % (T0, T0, b0 + 6, b0 + 7))
                a("v_max_u32 v%d, v%d, v%d" % (T0, T0, T1))
            else:
                a("v_max_u32 v%d, v%d, v%d" % (T0, T0, b0 + 3))
            a("v_cmp_eq_u32 vcc, -1, v%d" % T0)
            a("s_cbranch_vccnz L2_ps%d" % i)
            a("s_bitset0_b32 s%d, %d" % (S_PEND, i))
            for n in range(5 * nk):
                if n % 2 == 0 or n == 5 * nk - 1:
                    a("s_waitcnt lgkmcnt(%d)" % (0 if RT else max(0, 5 * nk - n - 2)))
                c = vr(ACC + 4 * (n % 5), 4)
                a("v_mfma_f32_16x16x32_bf16 %s, %s, %s, %s" % (c, vr(WF + 4 * n, 4), vr(b0 + 4 * (n // 5), 4), c))
            a("L2_ps%d:" % i)
            wl(0)
            a("L2_pn%d:" % i)
        a("L2_pchk:")
        if RT:
            a("s_cmp_lg_u32 s%d, %d" % (S_TMP + 1, SPIN))
            a("s_cbranch_scc1 L2_rt1")
            a("s_memrealtime s[54:55]")
            a("s_memrealtime s[90:91]")
            a("s_bcnt1_i32_b32 s88, s%d" % S_PEND)
            a("L2_rt1:")
        for i in order:
            a("s_bitcmp1_b32 s%d, %d" % (S_PEND, i))
            a("s_cbranch_scc0 L2_pl%d" % i)
            for l in bloads(i):
                a(l)
            a("L2_pl%d:" % i)
    else:
        S_PEND, S_NREQ, S_GO = S_TMP + 2, S_TMP + 3, 37
        a("s_mov_b32 s%d, 63" % S_PEND)
        a("s_mov_b32 s%d, 15" % S_NREQ)
        a("s_mov_b32 s%d, %d" % (S_TMP + 1, SPIN))
        a("s_waitcnt vmcnt(%d)" % (2 if EARLY else 0))
        a("L2_pass:")
        a("s_andn2_b32 s%d, s%d, s%d" % (S_GO, S_PEND, S_NREQ))
        for j in range(2):
            b0 = OF + 32 + 4 * j
            a("s_bitcmp1_b32 s%d, %d" % (S_PEND, 4 + j))
            a("s_cbranch_scc0 L2_q%d" % j)
            a("v_max3_u32 v%d, v%d, v%d, v%d" % (T0, b0, b0 + 1, b0 + 2))
            a("v_max_u32 v%d, v%d, v%d" % (T0, T0, b0 + 3))
            a("v_cmp_eq_u32 vcc, -1, v%d" % T0)
            for m in range(2):
                i = 2 * j + m
                a("s_bitcmp1_b32 s%d, %d" % (S_NREQ, i))
                a("s_cbranch_scc0 L2_r%d" % i)
                a("s_cmp_lg_u32 %s, 0" % ("vcc_lo", "vcc_hi")[m])
                a("s_cbranch_scc1 L2_r%d" % i)
                for l in bloads(i):
                    a(l)
                a("s_bitset0_b32 s%d, %d" % (S_NREQ, i))
                a("L2_r%d:" % i)
            a("s_cbranch_vccz L2_q%d" % j)
            a("s_bitset0_b32 s%d, %d" % (S_GO, 4 + j))
            for l in bloads(4 + j):
                a(l)
            a("L2_q%d:" % j)
        if RT:
            a("s_cmp_lg_u32 s%d, %d" % (S_TMP + 1, SPIN))
            a("s_cbranch_scc1 L2_rt1")
            a("s_memrealtime s[54:55]")
            a("s_bcnt1_i32_b32 s88, s%d" % S_NREQ)
            a("L2_rt1:")
            a("s_cmp_lg_u32 s%d, 0" % S_NREQ)
            a("s_cbranch_scc1 L2_rt2")
            a("s_cmp_lg_u32 s91, 0")
            a("s_cbranch_scc1 L2_rt2")
            a("s_memrealtime s[90:91]")
            a("s_waitcnt lgkmcnt(0)")
            a("s_mov_b32 s91, 1")
            a("L2_rt2:")
        for i in (4, 5, 0, 1, 2, 3):
            nk = 2 if i < 4 else 1
            b0 = OF + 8 * i if i < 4 else OF + 32 + 4 * (i - 4)
            a("s_bitcmp1_b32 s%d, %d" % (S_GO, i))
            a("s_cbranch_scc0 L2_pn%d" % i)
            a("v_add_u32 v2, s%d, v1" % (S_WA + i))
            for n in range(5 * nk):
                a("ds_read_b128 %s, v2 offset:%d" % (vr(WF + 4 * n, 4), 1024 * n))
            if nk == 2:
                a("v_max3_u32 v%d, v%d, v%d, v%d" % (T0, b0, b0 + 1, b0 + 2))
                a("v_max3_u32 v%d, v%d, v%d, v%d" % (T1, b0 + 3, b0 + 4, b0 + 5))
                a("v_max3_u32 v%d, v%d, v%d, v%d" % (T0, T0, b0 + 6, b0 + 7))
                a("v_max_u32 v%d, v%d, v%d" % (T0, T0, T1))
                a("v_cmp_eq_u32 vcc, -1, v%d" % T0)
                a("s_cbranch_vccnz L2_pr%d" % i)
            a("s_bitset0_b32 s%d, %d" % (S_PEND, i))
            for n in range(5 * nk):
                if n % 2 == 0 or n == 5 * nk - 1:
                    a("s_waitcnt lgkmcnt(%d)" % (0 if RT else max(0, 5 * nk - n - 2)))
                c = vr(ACC + 4 * (n % 5), 4)
                a("v_mfma_f32_16x16x32_bf16 %s, %s, %s, %s" % (c, vr(WF + 4 * n, 4), vr(b0 + 4 * (n // 5), 4), c))
            a("L2_pn%d:" % i)
    a("s_cmp_eq_u32 s%d, 0" % S_PEND)
    a("s_cbranch_scc1 L2_fin")
    a("s_waitcnt vmcnt(0)")
    a("s_sub_u32 s%d, s%d, 1" % (S_TMP + 1, S_TMP + 1))
    a("s_cbranch_scc0 L2_pass")
    a("L2_fin:")
    if RT:
        a("s_sub_u32 s92, %d, s%d" % (SPIN, S_TMP + 1))
    a("s_mul_i32 s%d, s%d, 5120" % (S_TMP, S_G))
    a("s_add_u32 s%d, s%d, %d" % (S_TMP, S_TMP, L_GX))
    a("s_mul_i32 s%d, s%d, 7168" % (S_TMP + 3, S_G))
    a("s_add_u32 s%d, s%d, %d" % (S_TMP + 3, S_TMP + 3, L_EX + 3584))
    a("s_lshl_b32 s%d, s%d, 11" % (S_TMP + 1, S_G))
    a("s_add_u32 s%d, s%d, %d" % (S_TMP + 1, S_TMP + 1, L_P2))
    a("s_add_u32 s%d, s%d, 3072" % (S_TMP + 2, S_TMP))
    a("s_cmp_eq_u32 s%d, 0" % S_KS)
    a("s_cselect_b32 s%d, s%d, s%d" % (S_TMP, S_TMP, S_TMP + 3))
    a("s_cselect_b32 s%d, s%d, s%d" % (S_TMP + 1, S_TMP + 2, S_TMP + 1))
    a("v_add_u32 v2, s%d, v1" % S_TMP)
    a("v_add_u32 v3, s%d, v1" % (S_TMP + 1))
    for t in range(5):
        a("ds_write_b128 v%d, %s offset:%d" % (2 if t < 3 else 3, vr(ACC + 4 * t, 4), 1024 * (t % 3)))
    wl(0)
    a("s_barrier")
    if RT:
        a("s_memrealtime s[46:47]")
        a("s_waitcnt lgkmcnt(0)")
        for i, r_ in enumerate((44, 52, 54, 46)):
            a("v_mov_b32 v%d, s%d" % (4 + i, r_))
        a("s_lshl_b32 s50, s2, 4")
        a("s_add_u32 s50, s50, s%d" % S_W)
        a("s_lshl_b32 s50, s50, 5")
        a("s_add_u32 s50, s50, 0x%x" % (WS_DIAG + 0x20000))
        a("v_mov_b32 v8, 0")
        a("buffer_store_dwordx4 v[4:7], v8, %s, s50 offen" % sr(S_Q, 4))
        for i, r_ in enumerate((94, 96, 98, 100) if FUSE else (90, 91, 92, 88)):
            a("v_mov_b32 v%d, s%d" % (12 + i, r_))
        a("buffer_store_dwordx4 v[12:15], v8, %s, s50 offen offset:16" % sr(S_Q, 4))
    a("L2_end:")
    a("s_endpgm")
    for i in range(0 if SPEC else 4):
        a("L2_pr%d:" % i)
        for l in bloads(i):
            a(l)
        wl(0)
        a("s_branch L2_pn%d" % i)
    a("L2_fallback:")
    gka = lambda: a("buffer_load_dwordx4 %s, v%d, %s, 0 offen sc1" % (vr(KA, 4), AKA, sr(S_KV, 4)))
    gkb = lambda: a("buffer_load_dword v%d, v%d, %s, 0 offen offset:1024 sc1" % (KB, AKB, sr(S_KV, 4)))
    def back(regs):
        for x in regs:
            a("v_subrev_u32 v%d, %d, v%d" % (x, NT * 2560, x))
    back([AKA, AKB, AV, AV1])
    for q in range(QBW):
        a("v_mov_b32 v%d, 0" % (QB[q] + 1))
        a("v_mov_b32 v%d, 0xff800000" % M[q])
    a("s_mov_b32 s%d, 0" % S_IT)
    wl(0)
    a("L2_fb1:")
    gka(); gkb()
    a("s_waitcnt vmcnt(0)")
    for q in range(QBW):
        qk1(SS[q], q); qk2(SS[q], q)
    a("v_add_u32 v%d, 2560, v%d" % (AKA, AKA))
    a("v_add_u32 v%d, 2560, v%d" % (AKB, AKB))
    a("s_nop 15")
    for q in range(QBW):
        rowmax(M[q], SS[q], False)
    a("s_add_u32 s%d, s%d, 1" % (S_IT, S_IT))
    a("s_cmp_lt_u32 s%d, %d" % (S_IT, NT))
    a("s_cbranch_scc1 L2_fb1")
    for q in range(QBW):
        xhalf_max(M[q])
        for i in range(16):
            a("v_mov_b32 v%d, 0" % (O[q] + i))
    back([AKA, AKB])
    a("s_mov_b32 s%d, 0" % S_IT)
    a("L2_fb2:")
    gka(); gkb(); mon()
    a("buffer_load_dwordx4 %s, v%d, %s, 0 offen offset:1280 sc1" % (vr(V0, 4), AV, sr(S_KV, 4)))
    a("buffer_load_dwordx4 %s, v%d, %s, 0 offen offset:1280 sc1" % (vr(V1, 4), AV1, sr(S_KV, 4)))
    moff()
    a("s_waitcnt vmcnt(0)")
    for q in range(QBW):
        qk1(SA, q); qk2(SA, q)
        a("s_nop 15")
        for i in range(16):
            a("v_sub_f32 v%d, v%d, v%d" % (SA + i, SA + i, M[q]))
        for i in range(16):
            a("v_exp_f32 v%d, v%d" % (SA + i, SA + i))
        a("s_nop 0")
        for i in range(8):
            a("v_cvt_pk_bf16_f32 v%d, v%d, v%d" % (P0 + i, SA + 2 * i, SA + 2 * i + 1))
        a("s_nop 1")
        pv0(q); pv1(q)
    a("v_add_u32 v%d, 2560, v%d" % (AKA, AKA))
    a("v_add_u32 v%d, 2560, v%d" % (AKB, AKB))
    a("v_add_u32 v%d, 2560, v%d" % (AV, AV))
    a("v_add_u32 v%d, 2560, v%d" % (AV1, AV1))
    a("s_add_u32 s%d, s%d, 1" % (S_IT, S_IT))
    a("s_cmp_lt_u32 s%d, %d" % (S_IT, NT))
    a("s_cbranch_scc1 L2_fb2")
    a("s_mov_b32 s%d, 1" % S_FB)
    a("s_branch L2_epi")

    a("L2_helper:")
    S_RB, S_CB, S_TT = 20, 21, 25
    VL = 1
    a("s_load_dwordx4 s[56:59], s[0:1], %d" % KA_WG)
    a("s_load_dwordx2 s[76:77], s[0:1], %d" % KA_WD)
    a("s_load_dwordx2 s[62:63], s[0:1], %d" % KA_X)
    a("s_load_dwordx2 s[60:61], s[0:1], %d" % KA_OUT)
    XS, AF, D, U, H = 4, 84, 104, 108, 112
    TA, TB, TC, TR, TR2, TG = 2, 3, 114, 115, 110, 111
    S_GT, S_UP, S_DN = 64, 68, 72
    a("v_lshlrev_b32 v%d, 4, v%d" % (VL, LANE))
    a("v_and_b32 v%d, 7, v%d" % (TA, LANE))
    a("v_lshlrev_b32 v%d, 2, v%d" % (TA, TA))
    a("s_lshr_b32 s%d, s%d, 1" % (S_TMP + 2, S_W))
    a("s_mul_i32 s%d, s%d, 81920" % (S_TMP + 2, S_TMP + 2))
    a("s_and_b32 s%d, s%d, 1" % (S_TMP + 3, S_W))
    a("s_lshl_b32 s%d, s%d, 12" % (S_TMP + 3, S_TMP + 3))
    a("s_add_u32 s%d, s%d, s%d" % (S_TMP + 2, S_TMP + 2, S_TMP + 3))
    a("s_mov_b32 m0, s%d" % (S_TMP + 2))
    S_SRC, S_LIM = 78, 79
    a("s_bfe_u32 s%d, s2, 0x20005" % S_QB)
    if os.environ.get("K2_KROT", "0") != "1":
        a("s_mov_b32 s%d, 0" % S_QB)
    a("s_mul_i32 s%d, s%d, 20480" % (S_SRC, S_QB))
    a("s_add_u32 s%d, s%d, s%d" % (S_SRC, S_SRC, S_TMP + 2))
    a("s_sub_u32 s%d, s%d, s%d" % (S_LIM, S_TMP + 2, S_TMP + 3))
    a("s_add_u32 s%d, s%d, 81920" % (S_LIM, S_LIM))
    a("s_mov_b32 s%d, 0" % S_IT)
    a("s_waitcnt lgkmcnt(0)")
    a("s_add_u32 s%d, s4, s%d" % (S_KV, S_TMP + 1))
    a("s_addc_u32 s%d, s5, 0" % (S_KV + 1))
    srd(a, S_Q, 4, 5, WS_END)
    def selload():
        a("s_mov_b32 s%d, 0x%x" % (S_TMP, WS_SEL))
        a("buffer_load_dword v%d, v%d, %s, s%d offen%s" % (TA, TA, sr(S_Q, 4), S_TMP, SC))
    def kvwait(lo, hi, tag, pre=False):
        a("s_mov_b32 s37, %d" % SPIN)
        if pre:
            a("s_branch L2_kc%s" % tag)
        a("L2_kw%s:" % tag)
        a("buffer_load_dwordx2 v[6:7], v5, %s, s36 offen sc1" % sr(S_Q, 4))
        a("L2_kc%s:" % tag)
        a("s_sub_u32 s37, s37, 1")
        a("s_cbranch_scc1 L2_kg%s" % tag)
        a("s_waitcnt vmcnt(0)")
        a("v_min_u32 v6, v6, v7")
        a("v_cmp_eq_u32 vcc, 0, v6")
        a("s_and_b32 s38, vcc_lo, %s" % lo)
        a("s_and_b32 s39, vcc_hi, %s" % hi)
        a("s_or_b32 s38, s38, s39")
        a("s_cbranch_scc0 L2_kg%s" % tag)
        a("s_sleep %s" % os.environ.get("K2_PS", "4"))
        a("s_branch L2_kw%s" % tag)
        a("L2_kg%s:" % tag)
    if FUSE:
        a("v_and_b32 v5, 15, v0")
        a("v_bfe_u32 v6, v0, 4, 1")
        a("v_lshl_add_u32 v5, v6, 6, v5")
        a("v_add_u32 v5, 64, v5")
        a("s_lshr_b32 s37, s2, 5")
        a("s_lshl_b32 s37, s37, 1")
        a("v_and_b32 v6, 1, v0")
        a("v_add_u32 v6, s37, v6")
        a("v_cmp_gt_u32 vcc, 32, v0")
        a("s_lshr_b32 s36, s%d, 3" % S_H)
        a("s_lshl_b32 s36, s36, 11")
        a("v_cndmask_b32 v5, v6, v5, vcc")
        a("v_lshlrev_b32 v5, 7, v5")
        a("s_bfe_u32 s37, s%d, 0x10002" % S_H)
        a("s_lshl_b32 s37, s37, 3")
        a("s_add_u32 s36, s36, s37")
        a("s_add_u32 s36, s36, 0x%x" % FLG_G)
    else:
        selload()
    def group():
        for j in range(4):
            a("buffer_load_dwordx4 v%d, %s, s%d offen offset:%d%s lds" % (VL, sr(S_KV, 4), S_SRC, 1024 * j, SC))
        a("s_add_u32 s%d, s%d, 8192" % (S_SRC, S_SRC))
        a("s_cmp_ge_u32 s%d, s%d" % (S_SRC, S_LIM))
        a("s_cselect_b32 s%d, 81920, 0" % (S_TMP + 3))
        a("s_sub_u32 s%d, s%d, s%d" % (S_SRC, S_SRC, S_TMP + 3))
        a("s_add_u32 s%d, s%d, 8192" % (S_TMP + 2, S_TMP + 2))
        a("s_mov_b32 m0, s%d" % (S_TMP + 2))
        a("s_add_u32 s%d, s%d, 1" % (S_IT, S_IT))
    if FUSE:
        a("v_mul_u32_u24 v%d, 3072, v%d" % (TG, LANE))
        a("v_lshrrev_b32 v%d, 4, v%d" % (TC, LANE))
        a("v_bfe_u32 v%d, v%d, 2, 2" % (TB, LANE))
        a("v_lshl_add_u32 v%d, v%d, 3, v%d" % (TR, TC, TB))
        a("v_lshlrev_b32 v%d, 4, v%d" % (TR, TR))
        a("v_bfe_u32 v4, v%d, 1, 1" % LANE)
        a("v_lshl_add_u32 v%d, v4, 3, v%d" % (TR, TR))
        a("v_and_b32 v4, 1, v%d" % LANE)
        a("v_mul_u32_u24 v4, 81920, v4")
        a("v_add_u32 v%d, v%d, v4" % (TR, TR))
        a("v_lshrrev_b32 v4, 5, v%d" % LANE)
        a("v_lshl_add_u32 v%d, v4, 2, v%d" % (TR2, TB))
        a("v_mul_u32_u24 v%d, 1280, v%d" % (TR2, TR2))
        a("v_mul_u32_u24 v%d, 10240, v4" % TB)
        a("v_and_b32 v4, 31, v%d" % LANE)
        a("v_lshl_add_u32 v%d, v4, 2, v%d" % (TB, TB))
        a("v_and_b32 v4, 16, v%d" % LANE)
        a("v_lshl_add_u32 v%d, v4, 1, v%d" % (TR2, TR2))
        a("v_and_b32 v4, 3, v%d" % LANE)
        a("v_lshl_add_u32 v%d, v4, 3, v%d" % (TR2, TR2))
        a("s_barrier")
        a("s_cmp_lg_u32 s%d, 0" % S_W)
        a("s_cbranch_scc1 L2_kga")
        assert K2_K0 == 2
        a("s_lshl_b32 s%d, s%d, 1" % (S_TMP, S_QB))
        a("s_lshl_b32 s%d, 0x03030303, s%d" % (S_TMP, S_TMP))
        kvwait("s%d" % S_TMP, "3", "a")
        a("s_barrier")
    for _ in range(K2_K0):
        group()
    if FUSE:
        a("buffer_load_dwordx2 v[6:7], v5, %s, s36 offen sc1" % sr(S_Q, 4))
    if not FUSE:
        a("v_mul_u32_u24 v%d, 3072, v%d" % (TG, LANE))
        a("v_lshrrev_b32 v%d, 4, v%d" % (TC, LANE))
        a("v_bfe_u32 v%d, v%d, 2, 2" % (TB, LANE))
        a("v_lshl_add_u32 v%d, v%d, 3, v%d" % (TR, TC, TB))
        a("v_lshlrev_b32 v%d, 4, v%d" % (TR, TR))
        a("v_bfe_u32 v4, v%d, 1, 1" % LANE)
        a("v_lshl_add_u32 v%d, v4, 3, v%d" % (TR, TR))
        a("v_and_b32 v4, 1, v%d" % LANE)
        a("v_mul_u32_u24 v4, 81920, v4")
        a("v_add_u32 v%d, v%d, v4" % (TR, TR))
        a("v_lshrrev_b32 v4, 5, v%d" % LANE)
        a("v_lshl_add_u32 v%d, v4, 2, v%d" % (TR2, TB))
        a("v_mul_u32_u24 v%d, 1280, v%d" % (TR2, TR2))
        a("v_mul_u32_u24 v%d, 10240, v4" % TB)
        a("v_and_b32 v4, 31, v%d" % LANE)
        a("v_lshl_add_u32 v%d, v4, 2, v%d" % (TB, TB))
        a("v_and_b32 v4, 16, v%d" % LANE)
        a("v_lshl_add_u32 v%d, v4, 1, v%d" % (TR2, TR2))
        a("v_and_b32 v4, 3, v%d" % LANE)
        a("v_lshl_add_u32 v%d, v4, 3, v%d" % (TR2, TR2))
    a("s_waitcnt vmcnt(%d)" % (1 if FUSE else 4 * (K2_K0 - 2)))
    def seladdr():
        a("v_mul_u32_u24 v%d, 1280, v%d" % (TA, TA))
        a("v_lshl_add_u32 v%d, v%d, 4, v%d" % (TA, TC, TA))
    if not FUSE:
        seladdr()
    a("s_barrier")
    if FUSE:
        a("s_lshr_b32 s%d, s%d, 1" % (S_TMP, S_W))
        a("s_lshl_b32 s%d, s%d, 3" % (S_TMP, S_TMP))
        a("s_lshl_b32 s%d, 0x00ff00ff, s%d" % (S_TMP, S_TMP))
        kvwait("s%d" % S_TMP, "0", "b", pre=True)
    a("L2_hld:")
    group()
    a("s_cmp_lt_u32 s%d, 10" % S_IT)
    a("s_cbranch_scc1 L2_hld")
    a("s_lshr_b32 s%d, s2, 3" % S_G)
    a("s_and_b32 s%d, s2, 7" % S_KS)
    a("s_mul_i32 s%d, s%d, 24" % (S_FB, S_KS))
    a("s_add_u32 s%d, s%d, s%d" % (S_FB, S_FB, S_G))
    srd(a, S_GT, 56, 57, 1966080)
    srd(a, S_UP, 58, 59, 1966080)
    srd(a, S_DN, 76, 77, 1966080)
    if DIAG:
        a("s_memtime s[52:53]")
    a("s_waitcnt vmcnt(0)")
    if DIAG:
        a("s_memtime s[44:45]")
    a("s_barrier")
    if FUSE:
        a("v_lshlrev_b32 v5, 7, v0")
        a("v_mov_b32 v4, 0")
        a("s_mov_b32 s36, 0x%x" % FLG_S)
        a("s_mov_b32 s38, 0x%x" % WS_SEL)
        a("s_mov_b32 s37, %d" % SPIN)
        a("L2_sw:")
        a("buffer_load_dword v6, v5, %s, s36 offen sc1" % sr(S_Q, 4))
        a("buffer_load_dword v7, v4, %s, s38 offen offset:64 sc1" % sr(S_Q, 4))
        a("s_sub_u32 s37, s37, 1")
        a("s_cbranch_scc1 L2_sg")
        a("s_waitcnt vmcnt(0)")
        a("v_min_u32 v6, v6, v7")
        a("v_cmp_eq_u32 vcc, 0, v6")
        a("s_cbranch_vccz L2_sg")
        a("s_sleep 8")
        a("s_branch L2_sw")
        a("L2_sg:")
    a("s_setprio %s" % os.environ.get("K2_HPRIO", "3"))
    a("s_and_b32 s%d, s%d, 3" % (S_TMP, S_G))
    a("s_cmp_lg_u32 s%d, s%d" % (S_TMP, S_W))
    a("s_cbranch_scc1 L2_hwarm")
    a("s_cmp_ge_u32 s2, %s" % os.environ.get("K2_MOE", "192"))
    a("s_cbranch_scc1 L2_hend")
    if FUSE:
        selload()
    a("s_lshl_b32 s%d, s%d, 4" % (S_TMP + 1, S_FB))
    a("s_and_b32 s%d, s%d, 7" % (S_TMP + 2, S_G))
    a("s_mov_b32 s%d, 10" % S_IT)
    a("L2_hgu:")
    a("s_mul_i32 s%d, s%d, %d" % (S_TMP + 3, S_TMP + 2, 64 * 3072))
    a("s_add_u32 s%d, s%d, s%d" % (S_TMP + 3, S_TMP + 3, S_TMP + 1))
    a("s_lshl_b32 s%d, s%d, 10" % (S_TMP + 4, S_TMP + 2))
    a("s_mov_b32 m0, s%d" % (S_TMP + 4))
    a("s_add_u32 s%d, s%d, 81920" % (S_TMP + 4, S_TMP + 4))
    a("buffer_load_dwordx4 v%d, %s, s%d offen lds" % (TG, sr(S_GT, 4), S_TMP + 3))
    a("s_mov_b32 m0, s%d" % (S_TMP + 4))
    a("s_add_u32 s%d, s%d, 1" % (S_TMP + 2, S_TMP + 2))
    a("buffer_load_dwordx4 v%d, %s, s%d offen lds" % (TG, sr(S_UP, 4), S_TMP + 3))
    a("s_cmp_eq_u32 s%d, 10" % (S_TMP + 2))
    a("s_cselect_b32 s%d, 0, s%d" % (S_TMP + 2, S_TMP + 2))
    a("s_sub_u32 s%d, s%d, 1" % (S_IT, S_IT))
    a("s_cmp_lg_u32 s%d, 0" % S_IT)
    a("s_cbranch_scc1 L2_hgu")
    if FUSE:
        a("s_waitcnt vmcnt(20)")
        seladdr()
    a("s_mov_b32 s%d, 0x%x" % (S_TMP, WS_XN))
    for j in range(20):
        a("buffer_load_dwordx4 %s, v%d, %s, s%d offen offset:%d" % (vr(XS + 4 * j, 4), TA, sr(S_Q, 4), S_TMP, 64 * j))
    a("s_waitcnt vmcnt(0)")
    for j in range(20):
        for h in range(2):
            a("ds_read_b64_tr_b16 %s, v%d offset:%d" % (vr(AF + 4 * (j & 1) + 2 * h, 2), TR, 512 * j + 64 * h))
        wl(0)
        a("v_mfma_f32_16x16x32_bf16 %s, %s, %s, %s" % (vr(D, 4), vr(AF + 4 * (j & 1), 4), vr(XS + 4 * j, 4), "0" if j == 0 else vr(D, 4)))
    a("s_mul_i32 s%d, s%d, 10240" % (S_TMP + 3, S_FB))
    for j in range(10):
        if j % 4 == 0:
            a("s_mov_b32 m0, %d" % (1024 * j))
            if j:
                a("s_add_u32 s%d, s%d, 4096" % (S_TMP + 3, S_TMP + 3))
            else:
                a("s_nop 0")
        a("buffer_load_dwordx4 v%d, %s, s%d offen offset:%d lds" % (VL, sr(S_DN, 4), S_TMP + 3, 1024 * (j % 4)))
    a("v_cvt_pk_bf16_f32 v%d, v%d, v%d" % (H, D, D + 1))
    a("v_cvt_pk_bf16_f32 v%d, v%d, v%d" % (H + 1, D + 2, D + 3))
    a("v_mov_b32 v%d, v%d" % (U, H))
    a("v_mov_b32 v%d, v%d" % (U + 1, H + 1))
    a("s_nop 0")
    a("v_permlane16_swap_b32 v%d, v%d" % (H, U))
    a("v_permlane16_swap_b32 v%d, v%d" % (H + 1, U + 1))
    E = XS
    for e in range(2):
        a("v_lshlrev_b32 v%d, 16, v%d" % (D + 2 * e, H + e))
        a("v_and_b32 v%d, 0xffff0000, v%d" % (D + 2 * e + 1, H + e))
    for e in range(4):
        a("v_mul_f32 v%d, 0xbfb8aa3b, v%d" % (E + e, D + e))
    for e in range(4):
        a("v_exp_f32 v%d, v%d" % (E + e, E + e))
    for e in range(4):
        a("v_add_f32 v%d, 1.0, v%d" % (E + e, E + e))
    for e in range(4):
        a("v_rcp_f32 v%d, v%d" % (E + e, E + e))
    for e in range(4):
        a("v_mul_f32 v%d, v%d, v%d" % (D + e, D + e, E + e))
    a("v_cvt_pk_bf16_f32 v%d, v%d, v%d" % (H, D, D + 1))
    a("v_cvt_pk_bf16_f32 v%d, v%d, v%d" % (H + 1, D + 2, D + 3))
    for e in range(2):
        a("v_lshlrev_b32 v%d, 16, v%d" % (D + 2 * e, H + e))
        a("v_and_b32 v%d, 0xffff0000, v%d" % (D + 2 * e + 1, H + e))
        a("v_lshlrev_b32 v%d, 16, v%d" % (E + 2 * e, U + e))
        a("v_and_b32 v%d, 0xffff0000, v%d" % (E + 2 * e + 1, U + e))
    for e in range(4):
        a("v_mul_f32 v%d, v%d, v%d" % (D + e, D + e, E + e))
    a("v_cvt_pk_bf16_f32 v%d, v%d, v%d" % (H, D, D + 1))
    a("v_cvt_pk_bf16_f32 v%d, v%d, v%d" % (H + 1, D + 2, D + 3))
    a("s_mul_i32 s%d, s%d, 20480" % (S_IT, S_KS))
    for e in range(4):
        a("s_add_u32 s%d, s%d, 0x%x" % (S_TMP + e, S_IT, WS_UPD + 2560 * e))
    a("s_waitcnt vmcnt(0)")
    Y = 4
    for j in range(22):
        if j < 20:
            a("ds_read_b64_tr_b16 %s, v%d offset:%d" % (vr(AF + 2 * (j & 1), 2), TR2, 64 * j))
            wl(0)
            a("v_mfma_f32_32x32x8_bf16 %s, %s, %s, 0" % (vr(Y + 16 * (j % 3), 16), vr(H, 2), vr(AF + 2 * (j & 1), 2)))
        else:
            a("s_nop 3")
        if j == 1:
            a("s_nop 7")
        if j >= 2:
            a("s_nop 1")
            for e in range(4):
                a("buffer_atomic_add_f32 v%d, v%d, %s, s%d offen offset:%d" % (Y + 16 * ((j - 2) % 3) + e, TB, sr(S_Q, 4), S_TMP + e, 128 * (j - 2)))
    a("s_lshl_b32 s%d, s2, 7" % S_TMP)
    a("s_add_u32 s%d, s%d, 0x%x" % (S_TMP, S_TMP, WS_FLG + 32768))
    a("v_mov_b32 v2, 0")
    a("v_mov_b32 v3, 1")
    a("s_waitcnt vmcnt(0)")
    a("s_mov_b64 exec, 1")
    a("buffer_store_dword v3, v2, %s, s%d offen sc1" % (sr(S_Q, 4), S_TMP))
    a("s_mov_b64 exec, -1")
    a("s_branch L2_hend")
    a("L2_hwarm:")
    a("s_sub_u32 s%d, s%d, s%d" % (S_FB, S_W, S_TMP))
    a("s_sub_u32 s%d, s%d, 1" % (S_FB, S_FB))
    a("s_and_b32 s%d, s%d, 3" % (S_FB, S_FB))
    a("s_cmp_lg_u32 s%d, 1" % S_FB)
    a("s_cbranch_scc1 L2_hnofill")
    for i in range(4):
        a("v_mov_b32 v%d, -1" % (4 + i))
    a("v_lshrrev_b32 v2, 5, v0")
    a("v_lshlrev_b32 v2, 14, v2")
    a("v_and_b32 v3, 31, v0")
    a("v_lshl_add_u32 v2, v3, 4, v2")
    a("v_lshrrev_b32 v3, 4, v0")
    a("v_lshlrev_b32 v3, 13, v3")
    a("v_and_b32 v8, 15, v0")
    a("v_lshl_add_u32 v3, v8, 4, v3")
    a("s_lshr_b32 s%d, s2, 5" % S_TMP)
    a("s_lshl_b32 s%d, s%d, 18" % (S_TMP + 1, S_TMP))
    a("s_lshl_b32 s%d, s%d, 9" % (S_TMP + 2, S_H))
    a("s_add_u32 s%d, s%d, s%d" % (S_TMP + 1, S_TMP + 1, S_TMP + 2))
    a("s_add_u32 s%d, s%d, 0x%x" % (S_TMP + 1, S_TMP + 1, WS_O))
    for j in range(8):
        a("buffer_store_dwordx4 v[4:7], v2, %s, s%d offen sc1" % (sr(S_Q, 4), S_TMP + 1))
        if j < 7:
            a("s_add_u32 s%d, s%d, 32768" % (S_TMP + 1, S_TMP + 1))
    a("s_lshl_b32 s%d, s%d, 16" % (S_TMP + 1, S_TMP))
    a("s_lshl_b32 s%d, s%d, 8" % (S_TMP + 2, S_H))
    a("s_add_u32 s%d, s%d, s%d" % (S_TMP + 1, S_TMP + 1, S_TMP + 2))
    a("s_add_u32 s%d, s%d, 0x%x" % (S_TMP + 1, S_TMP + 1, WS_OB))
    a("s_add_u32 s%d, s%d, 32768" % (S_TMP + 2, S_TMP + 1))
    a("buffer_store_dwordx4 v[4:7], v3, %s, s%d offen sc1" % (sr(S_Q, 4), S_TMP + 1))
    a("buffer_store_dwordx4 v[4:7], v3, %s, s%d offen sc1" % (sr(S_Q, 4), S_TMP + 2))
    a("s_lshl_b32 s%d, s2, 7" % S_TMP)
    a("s_add_u32 s%d, s%d, 0x%x" % (S_TMP, S_TMP, WS_FLG))
    a("v_mov_b32 v2, 0")
    a("s_waitcnt vmcnt(0)")
    a("s_mov_b64 exec, 1")
    a("buffer_store_dword v4, v2, %s, s%d offen sc1" % (sr(S_Q, 4), S_TMP))
    a("s_mov_b64 exec, -1")
    a("L2_hnofill:")
    tile_ids()
    a("s_add_u32 s36, s4, 0x%x" % WS_SEL)
    a("s_addc_u32 s37, s5, 0")
    a("s_load_dwordx8 s[64:71], s[36:37], 0")
    a("s_mul_i32 s38, s%d, 102400" % S_CB)
    a("s_add_u32 s38, s38, 0x%x" % WS_WOT)
    a("v_lshlrev_b32 v2, 7, v0")
    a("s_lshr_b32 s%d, s2, 6" % S_TMP)
    a("s_mul_i32 s%d, s%d, 25600" % (S_TMP, S_TMP))
    a("s_mul_i32 s%d, s%d, 12800" % (S_TMP + 1, S_FB))
    a("s_add_u32 s%d, s%d, s%d" % (S_TMP, S_TMP, S_TMP + 1))
    a("s_add_u32 s%d, s%d, s38" % (S_TMP, S_TMP))
    a("s_add_u32 s%d, s%d, 4608" % (S_TMP + 1, S_TMP))
    a("s_cmp_eq_u32 s%d, 2" % S_FB)
    a("s_cbranch_scc1 L2_hx")
    a("buffer_load_dword v4, v2, %s, s%d offen" % (sr(S_Q, 4), S_TMP))
    a("buffer_load_dword v4, v2, %s, s%d offen" % (sr(S_Q, 4), S_TMP + 1))
    a("s_branch L2_hx1")
    a("L2_hx:")
    a("v_and_b32 v2, 31, v0")
    a("v_lshlrev_b32 v2, 7, v2")
    a("s_lshr_b32 s%d, s%d, 2" % (S_TMP, S_RB))
    a("s_lshl_b32 s%d, s%d, 12" % (S_TMP, S_TMP))
    a("s_add_u32 s%d, s%d, 0x%x" % (S_TMP, S_TMP, WS_FLG))
    a("s_mov_b32 s%d, %d" % (S_TMP + 1, SPIN))
    a("L2_hp2:")
    a("s_sleep 32")
    a("buffer_load_dword v4, v2, %s, s%d offen sc1" % (sr(S_Q, 4), S_TMP))
    a("s_sub_u32 s%d, s%d, 1" % (S_TMP + 1, S_TMP + 1))
    a("s_cbranch_scc1 L2_hp2d")
    a("s_waitcnt vmcnt(0)")
    a("v_cmp_eq_u32 vcc, 0, v4")
    a("s_cbranch_vccnz L2_hp2")
    a("L2_hp2d:")
    a("L2_hx1:")
    a("v_and_b32 v2, 3, v0")
    a("v_lshlrev_b32 v2, 2, v2")
    a("s_mov_b32 s%d, 0" % S_G)
    a("L2_hph:")
    a("s_lshl_b32 s%d, s%d, 3" % (S_TMP + 1, S_G))
    a("s_lshr_b32 s%d, 0x%x, s%d" % (S_TMP, 0 | 50 << 8 | 30 << 16 | 81 << 24, S_TMP + 1))
    a("s_and_b32 s%d, s%d, 255" % (S_TMP, S_TMP))
    a("s_lshr_b32 s%d, 0x%x, s%d" % (S_KS, 30 | 81 << 8 | 50 << 16 | 100 << 24, S_TMP + 1))
    a("s_and_b32 s%d, s%d, 255" % (S_KS, S_KS))
    a("s_add_u32 s%d, s%d, s%d" % (S_TMP, S_TMP, S_FB))
    a("s_mov_b32 s%d, %d" % (S_TMP + 1, SPIN))
    a("L2_hwait:")
    a("ds_read_b32 v3, v2 offset:%d" % L_MARK)
    a("s_sub_u32 s%d, s%d, 1" % (S_TMP + 1, S_TMP + 1))
    a("s_cbranch_scc1 L2_hw")
    wl(0)
    a("v_cmp_ne_u32 vcc, 0x%x, v3" % MARK)
    a("s_cbranch_vccz L2_hw")
    a("s_sleep 8")
    a("s_branch L2_hwait")
    a("L2_hw:")
    a("s_lshl_b32 s%d, s%d, 10" % (S_TMP + 1, S_TMP))
    a("s_add_u32 s%d, s%d, s38" % (S_TMP + 1, S_TMP + 1))
    a("s_cmp_ge_u32 s%d, 50" % S_TMP)
    a("s_cselect_b32 s%d, %d, 0" % (S_TMP + 2, L_W1 - 51200 - L_W0))
    a("s_lshl_b32 s%d, s%d, 10" % (S_TMP + 3, S_TMP))
    a("s_add_u32 s%d, s%d, s%d" % (S_TMP + 2, S_TMP + 2, S_TMP + 3))
    a("s_add_u32 m0, s%d, %d" % (S_TMP + 2, L_W0))
    a("s_add_u32 s%d, s%d, 3" % (S_TMP, S_TMP))
    a("buffer_load_dwordx4 v%d, %s, s%d offen lds" % (VL, sr(S_Q, 4), S_TMP + 1))
    a("s_cmp_lt_u32 s%d, s%d" % (S_TMP, S_KS))
    a("s_cbranch_scc1 L2_hw")
    a("v_add_u32 v2, 16, v2")
    a("s_add_u32 s%d, s%d, 1" % (S_G, S_G))
    a("s_cmp_lt_u32 s%d, 4" % S_G)
    a("s_cbranch_scc1 L2_hph")
    a("s_cmp_lg_u32 s%d, 0" % S_FB)
    a("s_cbranch_scc1 L2_hdone")
    a("s_mov_b32 s%d, 0" % S_TMP)
    for sl in range(8):
        a("s_lshr_b32 s%d, s%d, 6" % (S_TMP + 1, 64 + sl))
        a("s_cmp_eq_u32 s%d, s%d" % (S_TMP + 1, S_RB))
        a("s_cselect_b32 s%d, 1, s%d" % (S_TMP, S_TMP))
    a("s_cmp_eq_u32 s%d, 0" % S_TMP)
    a("s_cbranch_scc1 L2_hdone")
    a("v_lshlrev_b32 v2, 7, v0")
    for j in range(3):
        a("s_mov_b32 s%d, 0x%x" % (S_TMP + 2 + j, WS_FLG + 32768 + 8192 * j))
    a("s_mov_b32 s%d, %d" % (S_TMP + 1, SPIN))
    a("L2_hpoll:")
    for j in range(3):
        a("buffer_load_dword v%d, v2, %s, s%d offen sc1" % (4 + j, sr(S_Q, 4), S_TMP + 2 + j))
    a("s_sub_u32 s%d, s%d, 1" % (S_TMP + 1, S_TMP + 1))
    a("s_cbranch_scc1 L2_hpolled")
    a("s_waitcnt vmcnt(0)")
    a("v_min3_u32 v4, v4, v5, v6")
    a("v_cmp_eq_u32 vcc, 0, v4")
    a("s_cbranch_vccz L2_hpolled")
    a("s_sleep 8")
    a("s_branch L2_hpoll")
    a("L2_hpolled:")
    a("v_lshrrev_b32 v2, 3, v0")
    a("v_and_b32 v3, 7, v0")
    a("v_lshlrev_b32 v3, 4, v3")
    a("v_mul_u32_u24 v100, 2560, v2")
    a("v_add_u32 v100, v100, v3")
    a("v_mul_u32_u24 v101, 320, v2")
    a("v_add_u32 v101, v101, v3")
    a("s_mul_i32 s%d, s%d, 320" % (S_TMP, S_CB))
    a("s_add_u32 s%d, s%d, 0x%x" % (S_TMP, S_TMP, WS_UPD))
    for rp in range(8):
        for j in range(3):
            a("buffer_load_dwordx4 %s, v100, %s, s%d offen offset:%d sc1" % (vr(4 + 12 * rp + 4 * j, 4), sr(S_Q, 4), S_TMP, 128 * j))
        if rp < 7:
            a("s_add_u32 s%d, s%d, 20480" % (S_TMP, S_TMP))
    a("v_cmp_gt_u32 vcc, 64, v3")
    a("s_waitcnt vmcnt(0)")
    for rp in range(1, 8):
        for j in range(6):
            a("v_pk_add_f32 %s, %s, %s" % (vr(4 + 2 * j, 2), vr(4 + 2 * j, 2), vr(4 + 12 * rp + 2 * j, 2)))
    a("ds_write_b128 v101, v[4:7] offset:%d" % L_Y)
    a("ds_write_b128 v101, v[8:11] offset:%d" % (L_Y + 128))
    a("s_mov_b64 exec, vcc")
    a("ds_write_b128 v101, v[12:15] offset:%d" % (L_Y + 256))
    a("s_mov_b64 exec, -1")
    a("L2_hdone:")
    a("s_waitcnt vmcnt(0) lgkmcnt(0)")
    a("L2_hend:")
    diag(4, 8)
    tile_ids()
    X, G, R, U, XF, MRS, ROW, CO, SG, VX, P1_, P2_ = 4, 14, 24, 44, 64, 84, 86, 87, 88, 89, 90, 91
    S_X, S_OUT = 8, 56
    a("s_add_u32 s36, s4, 0x%x" % WS_SEL)
    a("s_addc_u32 s37, s5, 0")
    srd(a, S_X, 62, 63, 2621440)
    srd(a, S_OUT, 60, 61, 2621440)
    a("s_load_dwordx16 s[64:79], s[36:37], 0")
    a("s_lshl_b32 s%d, s%d, 2" % (S_TT, S_RB))
    a("s_add_u32 s%d, s%d, s%d" % (S_TT, S_TT, S_W))
    a("v_and_b32 v%d, 15, v0" % ROW)
    a("v_lshrrev_b32 v%d, 4, v0" % CO)
    a("s_lshl_b32 s%d, s%d, 4" % (S_TMP, S_TT))
    a("v_add_u32 v%d, s%d, v%d" % (ROW, S_TMP, ROW))
    a("v_mul_u32_u24 v%d, 1280, v%d" % (VX, ROW))
    a("v_mul_u32_u24 v%d, 40, v%d" % (CO, CO))
    a("s_mul_i32 s%d, s%d, 160" % (S_TMP, S_CB))
    a("v_add3_u32 v%d, v%d, v%d, s%d" % (VX, VX, CO, S_TMP))
    a("v_lshlrev_b32 v2, 2, v%d" % ROW)
    a("s_mov_b32 s%d, 0x%x" % (S_TMP, WS_STAT))
    a("s_mov_b32 s%d, 0x%x" % (S_TMP + 1, WS_STAT + 8192))
    a("buffer_load_dwordx4 %s, v%d, %s, 0 offen" % (vr(X, 4), VX, sr(S_X, 4)))
    a("buffer_load_dwordx4 %s, v%d, %s, 0 offen offset:16" % (vr(X + 4, 4), VX, sr(S_X, 4)))
    a("buffer_load_dwordx2 %s, v%d, %s, 0 offen offset:32" % (vr(X + 8, 2), VX, sr(S_X, 4)))
    a("buffer_load_dword v%d, v2, %s, s%d offen sc1" % (MRS, sr(S_Q, 4), S_TMP))
    a("buffer_load_dword v%d, v2, %s, s%d offen sc1" % (MRS + 1, sr(S_Q, 4), S_TMP + 1))
    a("s_setprio 0")
    a("s_waitcnt lgkmcnt(0)")
    a("s_barrier")
    a("s_barrier")
    a("s_barrier")
    for i in range(20):
        a("v_mov_b32 v%d, 0" % (U + i))
    a("s_mov_b64 s[38:39], 0")
    for sl in range(8):
        a("v_cmp_eq_u32 vcc, s%d, v%d" % (64 + sl, ROW))
        a("v_mov_b32 v%d, %d" % (R, L_Y + 320 * sl))
        a("v_mov_b32 v%d, s%d" % (R + 1, 72 + sl))
        a("s_or_b64 s[38:39], s[38:39], vcc")
        a("v_cndmask_b32 v2, v2, v%d, vcc" % R)
        a("v_cndmask_b32 v%d, v%d, v%d, vcc" % (SG, SG, R + 1))
    a("s_cbranch_scc0 L2_noupd")
    a("v_lshl_add_u32 v2, v%d, 1, v2" % CO)
    a("s_mov_b64 exec, s[38:39]")
    for c in range(5):
        a("ds_read_b128 %s, v2 offset:%d" % (vr(U + 4 * c, 4), 16 * c))
    wl(0)
    for i in range(20):
        bf16_round(a, U + i, U + i)
    for i in range(20):
        a("v_mul_f32 v%d, v%d, v%d" % (U + i, U + i, SG))
    for i in range(20):
        bf16_round(a, U + i, U + i)
    a("s_mov_b64 exec, -1")
    a("L2_noupd:")
    a("s_waitcnt vmcnt(0)")
    def unpack(dst, src):
        for i in range(10):
            a("v_lshlrev_b32 v%d, 16, v%d" % (dst + 2 * i, src + i))
            a("v_and_b32 v%d, 0xffff0000, v%d" % (dst + 2 * i + 1, src + i))
    def pack(dst, src):
        for i in range(10):
            a("v_cvt_pk_bf16_f32 v%d, v%d, v%d" % (dst + i, src + 2 * i, src + 2 * i + 1))
    unpack(XF, X)
    for i in range(20):
        a("v_sub_f32 v%d, v%d, v%d" % (R + i, XF + i, MRS))
    pack(G, R)
    unpack(R, G)
    for i in range(20):
        a("v_mul_f32 v%d, v%d, v%d" % (R + i, R + i, MRS + 1))
    pack(G, R)
    unpack(R, G)
    for i in range(20):
        a("v_add_f32 v%d, v%d, v%d" % (U + i, U + i, R + i))
    for i in range(20):
        a("v_mul_f32 v%d, 0xbfb8aa3b, v%d" % (R + i, U + i))
    for i in range(20):
        a("v_exp_f32 v%d, v%d" % (R + i, R + i))
    for i in range(20):
        a("v_add_f32 v%d, 1.0, v%d" % (R + i, R + i))
    for i in range(20):
        a("v_rcp_f32 v%d, v%d" % (R + i, R + i))
    for i in range(20):
        a("v_mul_f32 v%d, v%d, v%d" % (U + i, U + i, R + i))
    a("s_mul_i32 s%d, s%d, 5120" % (S_TMP, S_W))
    a("s_add_u32 s%d, s%d, %d" % (S_TMP, S_TMP, L_GX))
    a("v_add_u32 v%d, s%d, v1" % (P1_, S_TMP))
    a("s_mul_i32 s%d, s%d, 7168" % (S_TMP, S_W))
    a("s_add_u32 s%d, s%d, %d" % (S_TMP, S_TMP, L_EX + 3584))
    a("v_add_u32 v%d, s%d, v1" % (P2_, S_TMP))
    a("s_lshl_b32 s%d, s%d, 11" % (S_TMP, S_W))
    a("s_add_u32 s%d, s%d, %d" % (S_TMP, S_TMP, L_P2))
    a("v_add_u32 v3, s%d, v1" % S_TMP)
    a("s_barrier")
    S0, S1 = 24, 104
    for t in range(5):
        a("ds_read_b128 %s, v%d offset:%d" % (vr(S0 + 4 * t, 4), P1_, 1024 * t))
        a("ds_read_b128 %s, v%d offset:%d" % (vr(S1 + 4 * t, 4), P2_ if t < 3 else 3, 1024 * (t % 3)))
    for i in range(20):
        if i % 4 == 0:
            wl(8 - i // 2)
        a("v_add_f32 v%d, v%d, v%d" % (S0 + i, S0 + i, S1 + i))
        a("v_fmac_f32 v%d, v%d, v%d" % (XF + i, S0 + i, U + i))
        if i & 1:
            a("v_cvt_pk_bf16_f32 v%d, v%d, v%d" % (X + i // 2, XF + i - 1, XF + i))
        if i == 7:
            a("buffer_store_dwordx4 %s, v%d, %s, 0 offen" % (vr(X, 4), VX, sr(S_OUT, 4)))
        if i == 15:
            a("buffer_store_dwordx4 %s, v%d, %s, 0 offen offset:16" % (vr(X + 4, 4), VX, sr(S_OUT, 4)))
    a("buffer_store_dwordx2 %s, v%d, %s, 0 offen offset:32" % (vr(X + 8, 2), VX, sr(S_OUT, 4)))
    a("s_endpgm")
    a("L2_code_end:")
    return kernel_desc(name, 168, 102 if RT else 80)
```
